```python
import torch

def _softmax(x, axis=-1):
    return torch.softmax(x, dim=axis)
def _gelu(x):
    return torch.nn.functional.gelu(x, approximate="tanh")
def _silu(x):
    return torch.nn.functional.silu(x)
def _sigmoid(x):
    return torch.sigmoid(x)
def _layernorm(x, axis=-1, eps=1e-5):
    m = x.mean(dim=axis, keepdim=True)
    v = x.var(dim=axis, keepdim=True, unbiased=False)
    return (x - m) / torch.sqrt(v + eps)
def _scatter_add(tgt, idx, src, axis=0):
    return tgt.clone().index_add_(axis, idx, src)
def _segment_sum(src, seg, n):
    out = torch.zeros((n,) + src.shape[1:], dtype=src.dtype)
    return out.index_add_(0, seg, src)
def _pad(x, pw):
    flat = tuple(v for pair in reversed(pw) for v in pair)
    return torch.nn.functional.pad(x, flat)

kernel_name = 'standalone__spectral_conv_chebnet__graph'

def setup_inputs():

    _w = (lambda a: (lambda t: t.to(torch.bfloat16) if t.is_floating_point() else t)(torch.as_tensor(a)))
    N, deg, D, K = 50000, 16, 64, 3
    E = N * deg
    src = (lambda lo, hi, *s: torch.randint(lo, hi, s))(0, N, E).to(torch.int64)
    dst = (lambda lo, hi, *s: torch.randint(lo, hi, s))(0, N, E).to(torch.int64)
    deg_cnt = torch.bincount(dst, minlength=N).to(float) + 1.0
    dis = (1.0 / (lambda _x: torch.sqrt(torch.as_tensor(_x)))(deg_cnt)).to(float)
    ew = -(dis[src] * dis[dst])
    return {
        "x": _w((lambda *s: torch.randn(*s, dtype=torch.bfloat16) * 0.05)(N, D)),
        "src": _w(src),
        "dst": _w(dst),
        "ew": _w(ew),
        "w": _w((lambda *s: torch.randn(*s, dtype=torch.bfloat16) * 0.05)(K, D, D) * 0.2),
    }

def reference(x, src, dst, ew, w):
    N, K = x.shape[0], w.shape[0]
    Ts = [x]
    if K > 1:
        Ts.append(_segment_sum(ew[:, None] * x[src], dst, N))
    for k in range(2, K):
        Tk = 2.0 * _segment_sum(ew[:, None] * Ts[-1][src], dst, N) - Ts[-2]
        Ts.append(Tk)
    T = torch.stack(Ts, 0)
    return torch.einsum('knd,kde->ne', T, w)
```

```python
import sys

N = 50000
E = 800000
NCH = 250
CH = 3200
CHB = CH * 8
NB = 256
TCAP = 384
TLB = TCAP * 6

WS_ENT = 0
WS_TABLE = 0x680000
WS_T1P = 0x700000
WS_LISTS = 0xE00000
WS_HDR = 0x1500000
WS_WF = 0x1510000
WS_USED = 0x1520000

L_BINS = 0
L_MAXC = 512
L_MORE = 516
L_LISTS = 1024
L_WF = L_LISTS + 13 * TLB
L_STAGE = L_WF + 24576
L_TOTAL = L_STAGE + 13 * 8192
assert L_STAGE % 256 == 0 and L_TOTAL <= 163840

out = []


def e(s=""):
    out.append("    " + s if s and not s.endswith(":") else s)


def srd(d, plo, phi, size):
    e(f"s_mov_b32 s{d}, s{plo}")
    e(f"s_and_b32 s{d+1}, s{phi}, 0xffff")
    e(f"s_mov_b32 s{d+2}, {size}")
    e(f"s_mov_b32 s{d+3}, 0x00020000")


def srd_off(d, plo, phi, off, size):
    e(f"s_add_u32 s{d}, s{plo}, {off}")
    e(f"s_addc_u32 s{d+1}, s{phi}, 0")
    e(f"s_and_b32 s{d+1}, s{d+1}, 0xffff")
    e(f"s_mov_b32 s{d+2}, {size}")
    e(f"s_mov_b32 s{d+3}, 0x00020000")


def wave_scan(v, full=True):
    shifts = [1, 2, 4, 8] if full else [1, 2, 4]
    for sh in shifts:
        e("s_nop 1")
        e(f"v_add_u32_dpp v{v}, v{v}, v{v} row_shr:{sh} row_mask:0xf bank_mask:0xf bound_ctrl:0")
    if full:
        e("s_nop 1")
        e(f"v_add_u32_dpp v{v}, v{v}, v{v} row_bcast:15 row_mask:0xa bank_mask:0xf")
        e("s_nop 1")
        e(f"v_add_u32_dpp v{v}, v{v}, v{v} row_bcast:31 row_mask:0xc bank_mask:0xf")
    e("s_nop 1")


def kernel_header(name):
    e(".text")
    e(f".globl {name}")
    e(".p2align 8")
    e(f".type {name},@function")
    e(f"{name}:")


def kernel_desc(name, vgpr, sgpr):
    acc = (vgpr + 3) // 4 * 4
    e('.section .rodata,"a"')
    e(".p2align 6")
    e(f".amdhsa_kernel {name}")
    e(f"  .amdhsa_next_free_vgpr {vgpr}")
    e(f"  .amdhsa_next_free_sgpr {sgpr}")
    e(f"  .amdhsa_accum_offset {acc}")
    e("  .amdhsa_group_segment_fixed_size 0")
    e("  .amdhsa_kernarg_size 64")
    e("  .amdhsa_user_sgpr_count 2")
    e("  .amdhsa_user_sgpr_kernarg_segment_ptr 1")
    e("  .amdhsa_system_sgpr_workgroup_id_x 1")
    e("  .amdhsa_float_denorm_mode_32 3")
    e("  .amdhsa_float_denorm_mode_16_64 3")
    e(".end_amdhsa_kernel")


def gen_part():
    kernel_header("cheb_part_kernel")
    e(f"s_cmp_ge_u32 s2, {NCH}")
    e("s_cbranch_scc1 P_END")
    e("s_load_dwordx4 s[4:7], s[0:1], 8")
    e("s_load_dwordx4 s[8:11], s[0:1], 24")
    e("s_load_dwordx2 s[12:13], s[0:1], 56")
    e(f"s_mul_i32 s3, s2, {CH*4}")
    e("v_lshlrev_b32 v1, 4, v0")
    e("v_add_u32 v1, s3, v1")
    e("v_lshrrev_b32 v2, 1, v1")
    e("v_and_b32 v3, 0xff, v0")
    e("v_lshlrev_b32 v3, 2, v3")
    e("v_mov_b32 v22, 0")
    e("v_mov_b32 v23, 1")
    e("ds_write_b32 v3, v22")
    e("s_waitcnt lgkmcnt(0)")
    srd(16, 4, 5, E * 4)
    srd(20, 6, 7, E * 4)
    srd(24, 8, 9, E * 2)
    srd(28, 12, 13, WS_USED)
    srd(32, 10, 11, 3 * 64 * 64 * 2)
    e("s_mov_b32 s40, 0xffff0000")
    e(f"v_cmp_gt_u32 vcc, {CH//4}, v0")
    e("s_and_saveexec_b64 s[36:37], vcc")
    e("s_mov_b64 s[38:39], exec")
    e("s_cbranch_execz P_SKIP1")
    e("buffer_load_dwordx4 v[4:7], v1, s[20:23], 0 offen")
    e("buffer_load_dwordx4 v[8:11], v1, s[16:19], 0 offen")
    e("buffer_load_dwordx2 v[12:13], v2, s[24:27], 0 offen")
    e("P_SKIP1:")
    e("s_mov_b64 exec, s[36:37]")
    e("s_cmp_ge_u32 s2, 48")
    e("s_cbranch_scc1 P_NOW")
    e("v_cmp_le_u32 vcc, 896, v0")
    e("s_and_saveexec_b64 s[36:37], vcc")
    e("s_cbranch_execz P_NOW2")
    e("s_lshr_b32 s41, s2, 1")
    e("s_and_b32 s42, s2, 1")
    e("s_lshl_b32 s42, s42, 7")
    e("v_subrev_u32 v30, 896, v0")
    e("v_add_u32 v30, s42, v30")
    e("s_lshr_b32 s43, s41, 3")
    e("s_bfe_u32 s44, s41, 0x10002")
    e("s_and_b32 s45, s41, 3")
    e("v_and_b32 v31, 3, v30")
    e("v_bfe_u32 v32, v30, 2, 4")
    e("v_lshrrev_b32 v33, 6, v30")
    e("v_lshrrev_b32 v34, 2, v32")
    e("v_lshlrev_b32 v34, 4, v34")
    e("v_and_b32 v35, 3, v32")
    e("v_add_u32 v34, v34, v35")
    e("s_lshl_b32 s46, s45, 2")
    e("v_add_u32 v34, s46, v34")
    e("v_lshlrev_b32 v36, 4, v33")
    e("v_lshl_add_u32 v36, v31, 1, v36")
    e("s_lshl_b32 s47, s44, 3")
    e("v_add_u32 v36, s47, v36")
    e("v_lshrrev_b32 v37, 1, v31")
    e("v_lshlrev_b32 v37, 4, v37")
    e("v_lshl_add_u32 v37, v33, 2, v37")
    e("v_and_b32 v35, 1, v31")
    e("v_lshl_add_u32 v37, v35, 1, v37")
    e("s_lshl_b32 s47, s44, 5")
    e("v_add_u32 v37, s47, v37")
    e("s_cmp_eq_u32 s43, 1")
    e("s_cselect_b64 vcc, -1, 0")
    e("s_nop 1")
    e("v_cndmask_b32 v36, v36, v37, vcc")
    e("v_lshlrev_b32 v36, 7, v36")
    e("v_lshl_add_u32 v36, v34, 1, v36")
    e("s_lshl_b32 s47, s43, 13")
    e("v_add_u32 v36, s47, v36")
    e("buffer_load_ushort v37, v36, s[32:35], 0 offen")
    e("buffer_load_ushort v38, v36, s[32:35], 0 offen offset:128")
    e("s_lshl_b32 s47, s41, 10")
    e(f"s_add_u32 s47, s47, {WS_WF}")
    e("v_lshlrev_b32 v39, 2, v30")
    e("v_add_u32 v39, s47, v39")
    e("s_waitcnt vmcnt(0)")
    e("v_lshl_or_b32 v37, v38, 16, v37")
    e("buffer_store_dword v37, v39, s[28:31], 0 offen")
    e("P_NOW2:")
    e("s_mov_b64 exec, s[36:37]")
    e("P_NOW:")
    e("s_barrier")
    e("s_mov_b64 exec, s[38:39]")
    e("s_cbranch_execz P_SKIP2")
    e("s_waitcnt vmcnt(2)")
    for i in range(4):
        e(f"v_lshrrev_b32 v{14+i}, 4, v{4+i}")
        e(f"v_mul_u32_u24 v{14+i}, 5369, v{14+i}")
        e(f"v_lshrrev_b32 v{14+i}, 16, v{14+i}")
        e(f"v_lshlrev_b32 v{14+i}, 2, v{14+i}")
        e(f"ds_add_rtn_u32 v{18+i}, v{14+i}, v23")
    e("P_SKIP2:")
    e("s_mov_b64 exec, -1")
    e("s_waitcnt lgkmcnt(0)")
    e("s_barrier")
    e("v_cmp_gt_u32 vcc, 64, v0")
    e("s_and_saveexec_b64 s[36:37], vcc")
    e("s_cbranch_execz P_SKIP3")
    e("v_lshlrev_b32 v30, 4, v0")
    e("ds_read_b128 v[32:35], v30")
    e("s_waitcnt lgkmcnt(0)")
    e("v_add_u32 v36, v32, v33")
    e("v_add_u32 v37, v36, v34")
    e("v_add_u32 v38, v37, v35")
    e("v_mov_b32 v39, v38")
    wave_scan(39)
    e("v_sub_u32 v40, v39, v38")
    e("v_add_u32 v41, v40, v32")
    e("v_add_u32 v42, v40, v36")
    e("v_add_u32 v43, v40, v37")
    for i in range(4):
        e(f"v_lshl_or_b32 v{44+i}, v{32+i}, 16, v{40+i}")
        e(f"v_add_u32 v{48+i}, 128, v{40+i}")
    e("ds_write_b128 v30, v[48:51]")
    e("s_lshl_b32 s41, s2, 2")
    e(f"s_add_u32 s41, s41, {WS_TABLE}")
    e("v_lshlrev_b32 v31, 12, v0")
    e("v_add_u32 v31, s41, v31")
    for i in range(4):
        e(f"buffer_store_dword v{44+i}, v31, s[28:31], 0 offen offset:{i*1024}")
    e("P_SKIP3:")
    e("s_mov_b64 exec, -1")
    e("s_waitcnt lgkmcnt(0)")
    e("s_barrier")
    e("s_mov_b64 exec, s[38:39]")
    e("s_cbranch_execz P_SKIP4")
    for i in range(4):
        e(f"ds_read_b32 v{14+i}, v{14+i}")
    e("s_waitcnt vmcnt(0)")
    e("v_lshl_or_b32 v8, v12, 16, v8")
    e("v_and_or_b32 v9, v12, s40, v9")
    e("v_lshl_or_b32 v10, v13, 16, v10")
    e("v_and_or_b32 v11, v13, s40, v11")
    for i in range(4):
        e(f"s_waitcnt lgkmcnt({3-i})")
        e(f"v_add_lshl_u32 v{14+i}, v{14+i}, v{18+i}, 3")
    for i in range(4):
        e(f"ds_write2_b32 v{14+i}, v{8+i}, v{4+i} offset0:0 offset1:1")
    e("P_SKIP4:")
    e("s_mov_b64 exec, -1")
    e("s_waitcnt lgkmcnt(0)")
    e("s_barrier")
    e("v_lshlrev_b32 v30, 4, v0")
    e("ds_read_b128 v[32:35], v30 offset:1024")
    e(f"s_mul_i32 s41, s2, {CHB}")
    e("v_add_u32 v31, s41, v30")
    e(f"v_cmp_gt_u32 vcc, {CHB//16 - 1024}, v0")
    e("s_and_saveexec_b64 s[36:37], vcc")
    e("s_cbranch_execz P_SKIP5")
    e(f"ds_read_b128 v[36:39], v30 offset:{1024+16384}")
    e("v_add_u32 v40, 0x4000, v31")
    e("s_waitcnt lgkmcnt(0)")
    e("buffer_store_dwordx4 v[36:39], v40, s[28:31], 0 offen")
    e("P_SKIP5:")
    e("s_mov_b64 exec, -1")
    e("s_waitcnt lgkmcnt(0)")
    e("buffer_store_dwordx4 v[32:35], v31, s[28:31], 0 offen")
    e("P_END:")
    e("s_endpgm")


ACC = 4
A = 20
BF = 36
EW4 = 40
OH4 = 44
SRC2 = 48
GOFF = 50
LOFF = 54
TRA = 58
ASRC = 62
AEW = 63
SHAMT = 64
T0 = 65
DESC = 72
EN = 76
POS = 92
XT = 100
T1T = 108
J16 = 116
GBASE = 117
ONE = 118
ZERO = 119
NV = 120

S_B, S_T0, S_NT, S_TAU = 28, 29, 30, 31
S_128, S_F, S_SB, S_LB = 32, 33, 34, 35
S_W32, S_U, S_CNT, S_REM, S_MAXC, S_MORE = 36, 37, 38, 39, 40, 41
S_TMP = 42
S_MASK = 48
S_X = 64
S_NWIN = 66
S_HDR = 67


def issue_gather(slot):
    for i in range(4):
        e(f"s_add_u32 m0, s{S_SB}, {slot*4096 + i*1024}")
        sel = " op_sel:[1,0,0,0]" if i & 1 else ""
        e(f"v_mad_u32_u16 v{GOFF+i}, v{SRC2 + i//2}, s{S_128}, v{LOFF+i}{sel}")
        e(f"buffer_load_dwordx4 v{GOFF+i}, s[12:15], 0 offen lds")


def main_loop(p, barrier_after_issue=False):
    e(f"s_cmp_eq_u32 s{S_REM}, 0")
    e(f"s_cbranch_scc1 {p}_NOSTEP")
    e(f"ds_read_b64 v[{SRC2}:{SRC2+1}], v{ASRC}")
    e(f"ds_read_b64 v[{T0+1}:{T0+2}], v{ASRC} offset:64")
    e("s_waitcnt lgkmcnt(1)")
    issue_gather(0)
    e(f"s_cmp_lt_u32 s{S_REM}, 2")
    e(f"s_cbranch_scc1 {p}_NOSTEP")
    e("s_waitcnt lgkmcnt(0)")
    e(f"v_mov_b32 v{SRC2}, v{T0+1}")
    e(f"v_mov_b32 v{SRC2+1}, v{T0+2}")
    issue_gather(1)
    e(f"{p}_NOSTEP:")
    if barrier_after_issue:
        e("s_barrier")
    e(f"s_cmp_eq_u32 s{S_REM}, 0")
    e(f"s_cbranch_scc1 {p}_DONE")
    for P in range(2):
        e(f"{p}_LOOP{P}:")
        e(f"ds_read_b128 v[{EW4}:{EW4+3}], v{AEW} offset:{TCAP*2}")
        e(f"ds_read_b128 v[{OH4}:{OH4+3}], v{AEW} offset:{TCAP*4}")
        e(f"ds_read_b64 v[{SRC2}:{SRC2+1}], v{ASRC} offset:128")
        e(f"s_cmp_eq_u32 s{S_REM}, 1")
        e(f"s_cbranch_scc1 {p}_W0_{P}")
        e("s_waitcnt vmcnt(4)")
        e(f"s_branch {p}_W1_{P}")
        e(f"{p}_W0_{P}:")
        e("s_waitcnt vmcnt(0)")
        e(f"{p}_W1_{P}:")
        for t in range(4):
            for h in range(2):
                r = A + t * 4 + h * 2
                e(f"ds_read_b64_tr_b16 v[{r}:{r+1}], v{TRA+t} offset:{P*4096 + h*256}")
        e("s_waitcnt lgkmcnt(9)")
        for i in range(4):
            e(f"v_pk_lshlrev_b16 v{BF+i}, v{SHAMT}, v{OH4+i}")
        for i in range(4):
            e(f"v_pk_ashrrev_i16 v{BF+i}, s{S_F}, v{BF+i}")
        for i in range(4):
            e(f"v_and_b32 v{BF+i}, v{BF+i}, v{EW4+i}")
        e(f"v_add_u32 v{AEW}, 64, v{AEW}")
        e(f"v_add_u32 v{ASRC}, 64, v{ASRC}")
        e("s_waitcnt lgkmcnt(0)")
        e(f"s_cmp_lt_u32 s{S_REM}, 3")
        e(f"s_cbranch_scc1 {p}_NI_{P}")
        issue_gather(P)
        e(f"{p}_NI_{P}:")
        for t in range(4):
            a = A + t * 4
            c = ACC + t * 4
            e(f"v_mfma_f32_16x16x32_bf16 v[{c}:{c+3}], v[{a}:{a+3}], v[{BF}:{BF+3}], v[{c}:{c+3}]")
        e(f"s_sub_u32 s{S_REM}, s{S_REM}, 1")
        e(f"s_cmp_eq_u32 s{S_REM}, 0")
        e(f"s_cbranch_scc1 {p}_DONE")
        if P == 1:
            e(f"s_branch {p}_LOOP0")
    e(f"{p}_DONE:")


def set_list_ptrs():
    e(f"v_and_b32 v{T0}, 8, v1")
    e(f"v_lshlrev_b32 v{T0}, 1, v{T0}")
    e(f"v_and_b32 v{T0+1}, 16, v1")
    e(f"v_lshrrev_b32 v{T0+1}, 1, v{T0+1}")
    e(f"v_or_b32 v{T0}, v{T0}, v{T0+1}")
    e(f"v_and_b32 v{T0+1}, 32, v1")
    e(f"v_or_b32 v{T0}, v{T0}, v{T0+1}")
    e(f"v_add_u32 v{ASRC}, s{S_LB}, v{T0}")
    e(f"v_and_b32 v{T0}, 48, v1")
    e(f"v_add_u32 v{AEW}, s{S_LB}, v{T0}")


def generic_sort_and_loop(p):
    e(f"s_lshl_b32 s{S_TMP}, s{S_B}, 10")
    e(f"s_add_u32 s{S_TMP}, s{S_TMP}, {WS_TABLE}")
    e(f"v_lshrrev_b32 v{T0}, 4, v0")
    e(f"v_lshlrev_b32 v{T0+1}, 4, v{T0}")
    e(f"v_add_u32 v{T0+1}, s{S_TMP}, v{T0+1}")
    e(f"buffer_load_dwordx4 v[{DESC}:{DESC+3}], v{T0+1}, s[16:19], 0 offen")
    e(f"v_and_b32 v{J16}, 15, v0")
    e(f"v_mul_u32_u24 v{GBASE}, {4*CHB}, v{T0}")
    e(f"v_lshl_add_u32 v{GBASE}, v{J16}, 3, v{GBASE}")
    e(f"v_lshlrev_b32 v{T0}, 2, v{T0}")
    e(f"s_mov_b32 s{S_W32}, 0")
    e(f"s_mov_b32 s{S_NWIN}, 0")
    e("s_waitcnt vmcnt(0)")
    for r in range(4):
        e(f"v_cmp_gt_u32 vcc, {NCH - r}, v{T0}")
        e("s_nop 1")
        e(f"v_cndmask_b32 v{DESC+r}, 0, v{DESC+r}, vcc")
    e(f"{p}_WIN:")
    e(f"v_lshlrev_b32 v{T0}, 2, v0")
    e("v_cmp_gt_u32 vcc, 130, v0")
    e(f"s_and_saveexec_b64 s[{S_X}:{S_X+1}], vcc")
    e(f"ds_write_b32 v{T0}, v{ZERO}")
    e(f"s_mov_b64 exec, s[{S_X}:{S_X+1}]")
    e(f"s_lshl_b32 s{S_TMP+1}, s{S_W32}, 3")
    e(f"v_add_u32 v{T0+3}, 16, v{J16}")
    e(f"v_mov_b32 v{T0+4}, 0x7f000000")
    e(f"v_mov_b32 v{T0+6}, 0")
    for r in range(4):
        m0 = S_MASK + 4 * r
        m1 = m0 + 2
        e(f"v_lshrrev_b32 v{T0}, 16, v{DESC+r}")
        e(f"v_subrev_u32 v{T0}, s{S_W32}, v{T0}")
        e(f"v_max_i32 v{T0+6}, v{T0+6}, v{T0}")
        e(f"v_cmp_gt_i32 s[{m0}:{m0+1}], v{T0}, v{J16}")
        e(f"v_cmp_gt_i32 s[{m1}:{m1+1}], v{T0}, v{T0+3}")
        e(f"v_and_b32 v{T0+1}, 0xffff, v{DESC+r}")
        e(f"v_lshl_add_u32 v{T0+1}, v{T0+1}, 3, v{GBASE}")
        e(f"s_add_u32 s{S_TMP}, s{S_TMP+1}, {r*CHB}")
        e(f"v_cndmask_b32 v{T0+2}, v{T0+4}, v{T0+1}, s[{m0}:{m0+1}]")
        e(f"v_cndmask_b32 v{T0+5}, v{T0+4}, v{T0+1}, s[{m1}:{m1+1}]")
        en0 = EN + 4 * r
        e(f"buffer_load_dwordx2 v[{en0}:{en0+1}], v{T0+2}, s[16:19], s{S_TMP} offen")
        e(f"buffer_load_dwordx2 v[{en0+2}:{en0+3}], v{T0+5}, s[16:19], s{S_TMP} offen offset:128")
    e("s_waitcnt lgkmcnt(0)")
    e("s_barrier")
    e(f"v_cmp_lt_i32 vcc, 32, v{T0+6}")
    e(f"s_and_saveexec_b64 s[{S_X}:{S_X+1}], vcc")
    e(f"v_mov_b32 v{T0}, {L_MORE}")
    e(f"ds_write_b32 v{T0}, v{ONE}")
    e(f"s_mov_b64 exec, s[{S_X}:{S_X+1}]")
    e(f"s_lshl_b32 s{S_TMP}, s{S_T0}, 5")
    e(f"s_sub_u32 s{S_TMP}, {L_BINS}, s{S_TMP}")
    for k in range(8):
        en = EN + 2 * k
        ba = A + k
        m = S_MASK + 2 * k
        e(f"s_waitcnt vmcnt({7-k})")
        e(f"v_and_b32 v{ba}, 0xfff0, v{en+1}")
        e(f"v_lshl_add_u32 v{ba}, v{ba}, 1, s{S_TMP}")
        e(f"v_bfe_u32 v{T0}, v{en}, 13, 3")
        e(f"v_lshl_add_u32 v{ba}, v{T0}, 2, v{ba}")
        e(f"s_mov_b64 exec, s[{m}:{m+1}]")
        e(f"ds_add_rtn_u32 v{POS+k}, v{ba}, v{ONE}")
        e("s_mov_b64 exec, -1")
    e("s_waitcnt lgkmcnt(0)")
    e("s_barrier")
    e(f"s_mov_b32 s{S_CNT}, 0")
    e(f"s_cmp_ge_u32 s{S_TAU}, s{S_NT}")
    e(f"s_cbranch_scc1 {p}_NOSCAN")
    e(f"s_lshl_b32 s{S_TMP}, s{S_TAU}, 5")
    e(f"v_lshlrev_b32 v{T0}, 2, v1")
    e(f"v_add_u32 v{T0}, s{S_TMP}, v{T0}")
    e(f"v_mov_b32 v{T0+1}, 0")
    e("s_mov_b64 exec, 0xff")
    e(f"ds_read_b32 v{T0+1}, v{T0} offset:{L_BINS}")
    e("s_mov_b64 exec, -1")
    e("s_waitcnt lgkmcnt(0)")
    e(f"v_mov_b32 v{T0+2}, v{T0+1}")
    wave_scan(T0 + 2, full=False)
    e(f"v_sub_u32 v{T0+3}, v{T0+2}, v{T0+1}")
    e(f"v_readlane_b32 s{S_CNT}, v{T0+2}, 7")
    e("s_mov_b64 exec, 0xff")
    e(f"ds_write_b32 v{T0}, v{T0+3} offset:{L_BINS}")
    e("s_mov_b64 exec, 1")
    e(f"v_mov_b32 v{T0}, {L_MAXC}")
    e(f"v_mov_b32 v{T0+1}, s{S_CNT}")
    e(f"ds_max_u32 v{T0}, v{T0+1}")
    e("s_mov_b64 exec, -1")
    e(f"{p}_NOSCAN:")
    e("s_waitcnt lgkmcnt(0)")
    e("s_barrier")
    e(f"v_mov_b32 v{T0}, {L_MAXC}")
    e(f"ds_read_b64 v[{T0+1}:{T0+2}], v{T0}")
    for k in range(8):
        m = S_MASK + 2 * k
        e(f"s_mov_b64 exec, s[{m}:{m+1}]")
        e(f"ds_read_b32 v{A+k}, v{A+k}")
    e("s_mov_b64 exec, -1")
    e("s_waitcnt lgkmcnt(0)")
    e(f"v_readfirstlane_b32 s{S_MAXC}, v{T0+1}")
    e(f"v_readfirstlane_b32 s{S_MORE}, v{T0+2}")
    for k in range(8):
        e(f"v_add_u32 v{POS+k}, v{POS+k}, v{A+k}")
    e(f"s_mov_b32 s{S_U}, 0")
    e(f"{p}_SUB:")
    e(f"s_mul_i32 s{S_TMP}, s{S_T0}, {TLB}")
    e(f"s_sub_u32 s{S_TMP}, 0, s{S_TMP}")
    e(f"s_mov_b32 s{S_TMP+2}, {TLB}")
    for k in range(8):
        en = EN + 2 * k
        m = S_MASK + 2 * k
        e(f"v_subrev_u32 v{T0}, s{S_U}, v{POS+k}")
        e(f"v_cmp_gt_u32 vcc, {TCAP}, v{T0}")
        e(f"v_lshrrev_b32 v{T0+1}, 4, v{en+1}")
        e(f"v_mul_u32_u24 v{T0+1}, s{S_TMP+2}, v{T0+1}")
        e(f"v_lshl_add_u32 v{T0}, v{T0}, 1, s{S_TMP}")
        e(f"v_add_u32 v{T0}, v{T0}, v{T0+1}")
        e(f"v_and_b32 v{T0+1}, 15, v{en+1}")
        e(f"v_lshlrev_b32 v{T0+1}, v{T0+1}, v{ONE}")
        e(f"s_and_b64 exec, vcc, s[{m}:{m+1}]")
        e(f"ds_write_b16 v{T0}, v{en} offset:{L_LISTS}")
        e(f"ds_write_b16_d16_hi v{T0}, v{en} offset:{L_LISTS + TCAP*2}")
        e(f"ds_write_b16 v{T0}, v{T0+1} offset:{L_LISTS + TCAP*4}")
        e("s_mov_b64 exec, -1")
    e(f"s_sub_i32 s{S_TMP}, s{S_CNT}, s{S_U}")
    e(f"s_max_i32 s{S_TMP}, s{S_TMP}, 0")
    e(f"s_min_i32 s{S_TMP}, s{S_TMP}, {TCAP}")
    e(f"s_add_u32 s{S_REM}, s{S_TMP}, 31")
    e(f"s_lshr_b32 s{S_REM}, s{S_REM}, 5")
    e(f"s_lshl_b32 s{S_TMP+1}, s{S_REM}, 5")
    e(f"v_add_u32 v{T0}, s{S_TMP}, v1")
    e(f"v_cmp_gt_u32 vcc, s{S_TMP+1}, v{T0}")
    e(f"v_lshl_add_u32 v{T0}, v{T0}, 1, s{S_LB}")
    e("s_mov_b64 exec, vcc")
    e(f"ds_write_b16 v{T0}, v{ZERO}")
    e(f"ds_write_b16 v{T0}, v{ZERO} offset:{TCAP*2}")
    e(f"ds_write_b16 v{T0}, v{ZERO} offset:{TCAP*4}")
    e("s_mov_b64 exec, -1")
    e(f"s_mov_b32 s{S_HDR}, s{S_REM}")
    set_list_ptrs()
    e("s_waitcnt lgkmcnt(0)")
    e("s_barrier")
    main_loop(p + "G")
    e(f"s_add_u32 s{S_NWIN}, s{S_NWIN}, 1")
    e(f"s_add_u32 s{S_U}, s{S_U}, {TCAP}")
    e(f"s_cmp_lt_u32 s{S_U}, s{S_MAXC}")
    e(f"s_cbranch_scc0 {p}_SUBDONE")
    e("s_barrier")
    e(f"s_branch {p}_SUB")
    e(f"{p}_SUBDONE:")
    e(f"s_cmp_eq_u32 s{S_MORE}, 0")
    e(f"s_cbranch_scc1 {p}_WINDONE")
    e(f"s_add_u32 s{S_W32}, s{S_W32}, 32")
    e("s_barrier")
    e(f"s_branch {p}_WIN")
    e(f"{p}_WINDONE:")


def spmm_common_setup(p, second):
    e(f"s_cmp_ge_u32 s2, {NB}")
    e(f"s_cbranch_scc1 {p}_END")
    e("s_load_dwordx2 s[4:5], s[0:1], 0")
    e("s_load_dwordx2 s[6:7], s[0:1], 56")
    if second:
        e("s_load_dwordx2 s[8:9], s[0:1], 40")
    e(f"s_and_b32 s{S_B}, s2, 7")
    e(f"s_lshl_b32 s{S_B}, s{S_B}, 5")
    e(f"s_lshr_b32 s{S_TMP}, s2, 3")
    e(f"s_add_u32 s{S_B}, s{S_B}, s{S_TMP}")
    e(f"s_mul_i32 s{S_T0}, s{S_B}, 99995")
    e(f"s_add_u32 s{S_T0}, s{S_T0}, 8160")
    e(f"s_add_u32 s{S_NT}, s{S_T0}, 99995")
    e(f"s_lshr_b32 s{S_T0}, s{S_T0}, 13")
    e(f"s_lshr_b32 s{S_NT}, s{S_NT}, 13")
    e(f"s_sub_u32 s{S_NT}, s{S_NT}, s{S_T0}")
    e("v_and_b32 v1, 63, v0")
    e(f"v_lshrrev_b32 v{T0}, 6, v0")
    e("s_nop 0")
    e(f"v_readfirstlane_b32 s{S_TAU}, v{T0}")
    e(f"s_movk_i32 s{S_128}, 128")
    e(f"s_mov_b32 s{S_F}, 0x000f000f")
    e(f"v_mov_b32 v{ONE}, 1")
    e(f"v_mov_b32 v{ZERO}, 0")
    e(f"s_min_u32 s{S_TMP}, s{S_TAU}, 12")
    e(f"s_lshl_b32 s{S_SB}, s{S_TMP}, 13")
    e(f"s_add_u32 s{S_SB}, s{S_SB}, {L_STAGE}")
    e(f"s_mul_i32 s{S_LB}, s{S_TMP}, {TLB}")
    e(f"s_add_u32 s{S_LB}, s{S_LB}, {L_LISTS}")
    e(f"v_and_b32 v{T0}, 7, v1")
    for i in range(4):
        e(f"v_xor_b32 v{LOFF+i}, {2*i}, v{T0}")
        e(f"v_lshlrev_b32 v{LOFF+i}, 4, v{LOFF+i}")
    e(f"v_bfe_u32 v{T0}, v1, 2, 2")
    e(f"v_lshlrev_b32 v{T0+1}, 10, v{T0}")
    e(f"v_and_b32 v{T0+2}, 16, v1")
    e(f"v_lshl_add_u32 v{T0+1}, v{T0+2}, 3, v{T0+1}")
    e(f"v_and_b32 v{T0+2}, 32, v1")
    e(f"v_lshl_add_u32 v{T0+1}, v{T0+2}, 4, v{T0+1}")
    e(f"v_and_b32 v{T0+2}, 3, v1")
    e(f"v_lshl_add_u32 v{T0+1}, v{T0+2}, 3, v{T0+1}")
    e(f"v_add_u32 v{T0+1}, s{S_SB}, v{T0+1}")
    for t in range(4):
        e(f"v_xor_b32 v{T0+2}, {t}, v{T0}")
        e(f"v_lshl_add_u32 v{TRA+t}, v{T0+2}, 5, v{T0+1}")
    e(f"v_and_b32 v{T0}, 15, v1")
    e(f"v_sub_u32 v{T0}, 15, v{T0}")
    e(f"v_lshl_or_b32 v{SHAMT}, v{T0}, 16, v{T0}")
    for i in range(16):
        e(f"v_mov_b32 v{ACC+i}, 0")
    e("s_waitcnt lgkmcnt(0)")
    srd(16, 6, 7, WS_USED)
    if not second:
        srd(12, 4, 5, N * 128)
    else:
        srd_off(12, 6, 7, WS_T1P, N * 128)
        srd(20, 4, 5, N * 128)
        srd(24, 8, 9, N * 128)


def tile_row_off(vdst):
    e(f"s_add_u32 s{S_TMP}, s{S_T0}, s{S_TAU}")
    e(f"s_lshl_b32 s{S_TMP}, s{S_TMP}, 11")
    e(f"v_and_b32 v{vdst}, 15, v1")
    e(f"v_lshlrev_b32 v{vdst}, 7, v{vdst}")
    e(f"v_and_b32 v{T0+6}, 48, v1")
    e(f"v_lshl_add_u32 v{vdst}, v{T0+6}, 1, v{vdst}")
    e(f"v_add_u32 v{vdst}, s{S_TMP}, v{vdst}")


def gen_spmm1():
    p = "A"
    kernel_header("cheb_spmm1_kernel")
    spmm_common_setup(p, False)
    generic_sort_and_loop(p)
    e(f"s_cmp_ge_u32 s{S_TAU}, s{S_NT}")
    e(f"s_cbranch_scc1 {p}_END")
    tile_row_off(T0)
    e(f"v_add_u32 v{T0}, {WS_T1P}, v{T0}")
    e("s_nop 7")
    for t in range(4):
        e(f"v_cvt_pk_bf16_f32 v{A+2*t}, v{ACC+4*t}, v{ACC+4*t+1}")
        e(f"v_cvt_pk_bf16_f32 v{A+2*t+1}, v{ACC+4*t+2}, v{ACC+4*t+3}")
    e(f"buffer_store_dwordx4 v[{A}:{A+3}], v{T0}, s[16:19], 0 offen")
    e(f"buffer_store_dwordx4 v[{A+4}:{A+7}], v{T0}, s[16:19], 0 offen offset:16")
    e(f"v_lshlrev_b32 v{T0+1}, 4, v1")
    e(f"v_add_u32 v{T0+2}, s{S_LB}, v{T0+1}")
    e(f"ds_read_b128 v[{EN}:{EN+3}], v{T0+2}")
    e(f"ds_read_b128 v[{EN+4}:{EN+7}], v{T0+2} offset:1024")
    e(f"ds_read_b128 v[{EN+8}:{EN+11}], v{T0+2} offset:2048")
    e(f"s_add_u32 s{S_TMP}, s{S_T0}, s{S_TAU}")
    e(f"s_mul_i32 s{S_TMP+1}, s{S_TMP}, {TLB}")
    e(f"s_add_u32 s{S_TMP+1}, s{S_TMP+1}, {WS_LISTS}")
    e(f"v_add_u32 v{T0+1}, s{S_TMP+1}, v{T0+1}")
    e(f"s_cmp_eq_u32 s{S_NWIN}, 1")
    e(f"s_cselect_b32 s{S_HDR}, s{S_HDR}, -1")
    e(f"s_lshl_b32 s{S_TMP}, s{S_TMP}, 2")
    e(f"s_add_u32 s{S_TMP}, s{S_TMP}, {WS_HDR}")
    e(f"v_mov_b32 v{T0+3}, s{S_TMP}")
    e(f"v_mov_b32 v{T0+4}, s{S_HDR}")
    e("s_waitcnt lgkmcnt(0)")
    e(f"buffer_store_dwordx4 v[{EN}:{EN+3}], v{T0+1}, s[16:19], 0 offen")
    e(f"buffer_store_dwordx4 v[{EN+4}:{EN+7}], v{T0+1}, s[16:19], 0 offen offset:1024")
    e("s_mov_b64 exec, 0xffff")
    e(f"buffer_store_dwordx4 v[{EN+8}:{EN+11}], v{T0+1}, s[16:19], 0 offen offset:2048")
    e("s_mov_b64 exec, 1")
    e(f"buffer_store_dword v{T0+4}, v{T0+3}, s[16:19], 0 offen")
    e(f"{p}_END:")
    e("s_endpgm")


def gen_spmm2():
    p = "B"
    kernel_header("cheb_spmm2_kernel")
    spmm_common_setup(p, True)
    e(f"s_sub_u32 s{S_TMP}, s{S_NT}, 1")
    e(f"s_min_u32 s{S_TMP}, s{S_TMP}, s{S_TAU}")
    e(f"s_add_u32 s{S_TMP}, s{S_TMP}, s{S_T0}")
    e(f"s_lshl_b32 s{S_TMP+1}, s{S_TMP}, 2")
    e(f"s_add_u32 s{S_TMP+1}, s{S_TMP+1}, {WS_HDR}")
    e(f"s_load_dword s{S_HDR}, s[6:7], s{S_TMP+1}")
    e(f"v_lshlrev_b32 v{T0+1}, 4, v1")
    e(f"s_cmp_ge_u32 s{S_TAU}, 13")
    e(f"s_cbranch_scc1 {p}_HELP")
    e(f"s_cmp_ge_u32 s{S_TAU}, s{S_NT}")
    e(f"s_cbranch_scc1 {p}_PRE")
    e(f"s_mul_i32 s{S_TMP+1}, s{S_TMP}, {TLB}")
    e(f"s_add_u32 s{S_TMP+1}, s{S_TMP+1}, {WS_LISTS}")
    e(f"s_mov_b32 m0, s{S_LB}")
    e(f"v_add_u32 v{T0+2}, s{S_TMP+1}, v{T0+1}")
    e(f"buffer_load_dwordx4 v{T0+2}, s[16:19], 0 offen lds")
    e(f"buffer_load_dwordx4 v{T0+2}, s[16:19], 0 offen offset:1024 lds")
    e("s_mov_b64 exec, 0xffff")
    e(f"buffer_load_dwordx4 v{T0+2}, s[16:19], 0 offen offset:2048 lds")
    e("s_mov_b64 exec, -1")
    tile_row_off(T0)
    e(f"buffer_load_dwordx4 v[{XT}:{XT+3}], v{T0}, s[20:23], 0 offen")
    e(f"buffer_load_dwordx4 v[{XT+4}:{XT+7}], v{T0}, s[20:23], 0 offen offset:16")
    e(f"buffer_load_dwordx4 v[{T1T}:{T1T+3}], v{T0}, s[12:15], 0 offen")
    e(f"buffer_load_dwordx4 v[{T1T+4}:{T1T+7}], v{T0}, s[12:15], 0 offen offset:16")
    e(f"s_branch {p}_PRE")
    e(f"{p}_HELP:")
    e(f"s_sub_u32 s{S_TMP}, s{S_TAU}, 13")
    e(f"s_lshl_b32 s{S_TMP}, s{S_TMP}, 13")
    e(f"s_add_u32 s{S_TMP+1}, s{S_TMP}, {WS_WF}")
    e(f"v_add_u32 v{T0+2}, s{S_TMP+1}, v{T0+1}")
    e(f"v_add_u32 v{T0+3}, 0x1000, v{T0+2}")
    e(f"s_add_u32 m0, s{S_TMP}, {L_WF}")
    e("s_nop 0")
    for i in range(4):
        e(f"buffer_load_dwordx4 v{T0+2}, s[16:19], 0 offen offset:{i*1024} lds")
    e(f"s_add_u32 m0, s{S_TMP}, {L_WF + 4096}")
    e("s_nop 0")
    for i in range(4):
        e(f"buffer_load_dwordx4 v{T0+3}, s[16:19], 0 offen offset:{i*1024} lds")
    e("s_waitcnt vmcnt(0)")
    e(f"{p}_PRE:")
    e("s_waitcnt lgkmcnt(0)")
    e(f"s_cmp_eq_u32 s{S_HDR}, -1")
    e(f"s_cbranch_scc1 {p}_SLOW")
    e(f"s_cmp_lt_u32 s{S_TAU}, s{S_NT}")
    e(f"s_cbranch_scc1 {p}_FAST")
    e("s_barrier")
    e(f"s_branch {p}_END")
    e(f"{p}_FAST:")
    e(f"s_mov_b32 s{S_REM}, s{S_HDR}")
    set_list_ptrs()
    e("s_waitcnt vmcnt(4)")
    main_loop(p + "F", barrier_after_issue=True)
    e(f"s_branch {p}_EPI")
    e(f"{p}_SLOW:")
    e("s_waitcnt vmcnt(0)")
    generic_sort_and_loop(p)
    e(f"s_cmp_ge_u32 s{S_TAU}, s{S_NT}")
    e(f"s_cbranch_scc1 {p}_END")
    e(f"{p}_EPI:")
    e("s_waitcnt vmcnt(0)")
    e(f"v_lshlrev_b32 v{T0+1}, 4, v1")
    e(f"v_add_u32 v{T0+1}, {L_WF}, v{T0+1}")
    e(f"s_mov_b32 s{S_TMP+2}, 0xffff0000")
    e("s_nop 7")
    T2 = EN
    TMPA = EN + 8
    for i in range(8):
        a = ACC + 2 * i
        e(f"v_cvt_pk_bf16_f32 v{TMPA}, v{a}, v{a+1}")
        e(f"v_lshlrev_b32 v{TMPA+1}, 16, v{XT+i}")
        e(f"v_and_b32 v{TMPA+2}, s{S_TMP+2}, v{XT+i}")
        e(f"v_lshlrev_b32 v{TMPA+3}, 16, v{TMPA}")
        e(f"v_and_b32 v{TMPA+4}, s{S_TMP+2}, v{TMPA}")
        e(f"v_fma_f32 v{TMPA+3}, 2.0, v{TMPA+3}, -v{TMPA+1}")
        e(f"v_fma_f32 v{TMPA+4}, 2.0, v{TMPA+4}, -v{TMPA+2}")
        e(f"v_cvt_pk_bf16_f32 v{T2+i}, v{TMPA+3}, v{TMPA+4}")
    Bsrc = {0: XT, 1: T1T, 2: T2}
    WB = [A, BF]
    steps = [(k, s) for k in range(3) for s in range(2)]

    def ldw(idx):
        k, s = steps[idx]
        wb = WB[idx & 1]
        for t in range(4):
            f = k * 8 + s * 4 + t
            e(f"ds_read_b128 v[{wb+4*t}:{wb+4*t+3}], v{T0+1} offset:{f*1024}")
    ldw(0)
    for idx in range(6):
        if idx + 1 < 6:
            ldw(idx + 1)
            e("s_waitcnt lgkmcnt(4)")
        else:
            e("s_waitcnt lgkmcnt(0)")
        k, s = steps[idx]
        wb = WB[idx & 1]
        b = Bsrc[k] + 4 * s
        for t in range(4):
            c = ACC + 4 * t
            src_c = "0" if idx == 0 else f"v[{c}:{c+3}]"
            e(f"v_mfma_f32_16x16x32_bf16 v[{c}:{c+3}], v[{wb+4*t}:{wb+4*t+3}], v[{b}:{b+3}], {src_c}")
    tile_row_off(T0)
    e("s_nop 7")
    e("s_nop 3")
    for t in range(4):
        e(f"v_cvt_pk_bf16_f32 v{A+2*t}, v{ACC+4*t}, v{ACC+4*t+1}")
        e(f"v_cvt_pk_bf16_f32 v{A+2*t+1}, v{ACC+4*t+2}, v{ACC+4*t+3}")
    e(f"buffer_store_dwordx4 v[{A}:{A+3}], v{T0}, s[24:27], 0 offen")
    e(f"buffer_store_dwordx4 v[{A+4}:{A+7}], v{T0}, s[24:27], 0 offen offset:16")
    e(f"{p}_END:")
    e("s_endpgm")


HEADER = """; Kernarg layout for this problem (64 bytes, ptrs only, base s[0:1]):
"""


def main():
    out.append(HEADER.rstrip())
    out.append(f"; @launch kernel=cheb_part_kernel grid=({NCH},1,1) block=(1024,1,1) lds={1024+CHB}")
    out.append(f"; @launch kernel=cheb_spmm1_kernel grid=({NB},1,1) block=(1024,1,1) lds={L_TOTAL}")
    out.append(f"; @launch kernel=cheb_spmm2_kernel grid=({NB},1,1) block=(1024,1,1) lds={L_TOTAL}")
    out.append('.amdgcn_target "amdgcn-amd-amdhsa--gfx950"')
    gen_part()
    gen_spmm1()
    gen_spmm2()
    kernel_desc("cheb_part_kernel", 56, 64)
    kernel_desc("cheb_spmm1_kernel", NV, 80)
    kernel_desc("cheb_spmm2_kernel", NV, 80)
    path = sys.argv[1] if len(sys.argv) > 1 else "standalone__spectral_conv_chebnet__graph.s"
    open(path, "w").write("\n".join(out) + "\n")


if __name__ == "__main__":
    main()
```

```python
import sys

N = 50000
E = 800000
NCH = 250
CH = 3200
CHB = CH * 8
NB = 256
TCAP = 384
TLB = TCAP * 6

WS_ENT = 0
WS_TABLE = 0x680000
WS_T1P = 0x700000
WS_LISTS = 0xE00000
WS_HDR = 0x1500000
WS_WF = 0x1510000
WS_USED = 0x1520000

L_BINS = 0
L_MAXC = 512
L_MORE = 516
L_LISTS = 1024
L_WF = L_LISTS + 13 * TLB
L_STAGE = L_WF + 24576
L_TOTAL = L_STAGE + 13 * 8192
assert L_STAGE % 256 == 0 and L_TOTAL <= 163840

out = []
import os
DIAG = bool(os.environ.get("DIAG"))
WS_DIAG = 0x1600000
if DIAG:
    WS_USED = 0x1800000
S_ST = 80


def stamp(i):
    if DIAG:
        e("s_waitcnt lgkmcnt(0)")
        e(f"s_memrealtime s[{S_ST+2*i}:{S_ST+2*i+1}]")
        e("s_waitcnt lgkmcnt(0)")


def stamp_store(kidx, srd, n, vt):
    if not DIAG:
        return
    e("s_mov_b64 exec, 1")
    e(f"v_lshrrev_b32 v{vt}, 6, v0")
    e(f"v_lshlrev_b32 v{vt}, 5, v{vt}")
    e(f"s_lshl_b32 s{S_ST+16}, s2, 9")
    e(f"s_add_u32 s{S_ST+16}, s{S_ST+16}, {WS_DIAG + kidx*0x40000}")
    e(f"v_add_u32 v{vt}, s{S_ST+16}, v{vt}")
    for i in range(n):
        e(f"v_mov_b32 v{vt+1}, s{S_ST+2*i}")
        e(f"buffer_store_dword v{vt+1}, v{vt}, s[{srd}:{srd+3}], 0 offen offset:{4*i}")


def e(s=""):
    out.append("    " + s if s and not s.endswith(":") else s)


def srd(d, plo, phi, size):
    e(f"s_mov_b32 s{d}, s{plo}")
    e(f"s_and_b32 s{d+1}, s{phi}, 0xffff")
    e(f"s_mov_b32 s{d+2}, {size}")
    e(f"s_mov_b32 s{d+3}, 0x00020000")


def srd_off(d, plo, phi, off, size):
    e(f"s_add_u32 s{d}, s{plo}, {off}")
    e(f"s_addc_u32 s{d+1}, s{phi}, 0")
    e(f"s_and_b32 s{d+1}, s{d+1}, 0xffff")
    e(f"s_mov_b32 s{d+2}, {size}")
    e(f"s_mov_b32 s{d+3}, 0x00020000")


def wave_scan(v, full=True):
    shifts = [1, 2, 4, 8] if full else [1, 2, 4]
    for sh in shifts:
        e("s_nop 1")
        e(f"v_add_u32_dpp v{v}, v{v}, v{v} row_shr:{sh} row_mask:0xf bank_mask:0xf bound_ctrl:0")
    if full:
        e("s_nop 1")
        e(f"v_add_u32_dpp v{v}, v{v}, v{v} row_bcast:15 row_mask:0xa bank_mask:0xf")
        e("s_nop 1")
        e(f"v_add_u32_dpp v{v}, v{v}, v{v} row_bcast:31 row_mask:0xc bank_mask:0xf")
    e("s_nop 1")


def kernel_header(name):
    e(".text")
    e(f".globl {name}")
    e(".p2align 8")
    e(f".type {name},@function")
    e(f"{name}:")


def kernel_desc(name, vgpr, sgpr):
    acc = (vgpr + 3) // 4 * 4
    e('.section .rodata,"a"')
    e(".p2align 6")
    e(f".amdhsa_kernel {name}")
    e(f"  .amdhsa_next_free_vgpr {vgpr}")
    e(f"  .amdhsa_next_free_sgpr {sgpr}")
    e(f"  .amdhsa_accum_offset {acc}")
    e("  .amdhsa_group_segment_fixed_size 0")
    e("  .amdhsa_kernarg_size 64")
    e("  .amdhsa_user_sgpr_count 2")
    e("  .amdhsa_user_sgpr_kernarg_segment_ptr 1")
    e("  .amdhsa_system_sgpr_workgroup_id_x 1")
    e("  .amdhsa_float_denorm_mode_32 3")
    e("  .amdhsa_float_denorm_mode_16_64 3")
    e(".end_amdhsa_kernel")


def gen_part():
    kernel_header("cheb_part_kernel")
    e(f"s_cmp_ge_u32 s2, {NCH}")
    e("s_cbranch_scc1 P_END")
    e("s_load_dwordx4 s[4:7], s[0:1], 8")
    e("s_load_dwordx4 s[8:11], s[0:1], 24")
    e("s_load_dwordx2 s[12:13], s[0:1], 56")
    e(f"s_mul_i32 s3, s2, {CH*4}")
    e("v_lshlrev_b32 v1, 4, v0")
    e("v_add_u32 v1, s3, v1")
    e("v_lshrrev_b32 v2, 1, v1")
    e("v_and_b32 v3, 0xff, v0")
    e("v_lshlrev_b32 v3, 2, v3")
    e("v_mov_b32 v22, 0")
    e("v_mov_b32 v23, 1")
    e("ds_write_b32 v3, v22")
    e("s_waitcnt lgkmcnt(0)")
    stamp(0)
    srd(16, 4, 5, E * 4)
    srd(20, 6, 7, E * 4)
    srd(24, 8, 9, E * 2)
    srd(28, 12, 13, WS_USED)
    srd(32, 10, 11, 3 * 64 * 64 * 2)
    e("s_mov_b32 s40, 0xffff0000")
    e(f"v_cmp_gt_u32 vcc, {CH//4}, v0")
    e("s_and_saveexec_b64 s[36:37], vcc")
    e("s_mov_b64 s[38:39], exec")
    e("s_cbranch_execz P_SKIP1")
    e("buffer_load_dwordx4 v[4:7], v1, s[20:23], 0 offen")
    e("buffer_load_dwordx4 v[8:11], v1, s[16:19], 0 offen")
    e("buffer_load_dwordx2 v[12:13], v2, s[24:27], 0 offen")
    e("P_SKIP1:")
    e("s_mov_b64 exec, s[36:37]")
    e("s_cmp_ge_u32 s2, 48")
    e("s_cbranch_scc1 P_NOW")
    e("v_cmp_le_u32 vcc, 896, v0")
    e("s_and_saveexec_b64 s[36:37], vcc")
    e("s_cbranch_execz P_NOW2")
    e("s_lshr_b32 s41, s2, 1")
    e("s_and_b32 s42, s2, 1")
    e("s_lshl_b32 s42, s42, 7")
    e("v_subrev_u32 v30, 896, v0")
    e("v_add_u32 v30, s42, v30")
    e("s_lshr_b32 s43, s41, 3")
    e("s_bfe_u32 s44, s41, 0x10002")
    e("s_and_b32 s45, s41, 3")
    e("v_and_b32 v31, 3, v30")
    e("v_bfe_u32 v32, v30, 2, 4")
    e("v_lshrrev_b32 v33, 6, v30")
    e("v_lshrrev_b32 v34, 2, v32")
    e("v_lshlrev_b32 v34, 4, v34")
    e("v_and_b32 v35, 3, v32")
    e("v_add_u32 v34, v34, v35")
    e("s_lshl_b32 s46, s45, 2")
    e("v_add_u32 v34, s46, v34")
    e("v_lshlrev_b32 v36, 4, v33")
    e("v_lshl_add_u32 v36, v31, 1, v36")
    e("s_lshl_b32 s47, s44, 3")
    e("v_add_u32 v36, s47, v36")
    e("v_lshrrev_b32 v37, 1, v31")
    e("v_lshlrev_b32 v37, 4, v37")
    e("v_lshl_add_u32 v37, v33, 2, v37")
    e("v_and_b32 v35, 1, v31")
    e("v_lshl_add_u32 v37, v35, 1, v37")
    e("s_lshl_b32 s47, s44, 5")
    e("v_add_u32 v37, s47, v37")
    e("s_cmp_eq_u32 s43, 1")
    e("s_cselect_b64 vcc, -1, 0")
    e("s_nop 1")
    e("v_cndmask_b32 v36, v36, v37, vcc")
    e("v_lshlrev_b32 v36, 7, v36")
    e("v_lshl_add_u32 v36, v34, 1, v36")
    e("s_lshl_b32 s47, s43, 13")
    e("v_add_u32 v36, s47, v36")
    e("buffer_load_ushort v37, v36, s[32:35], 0 offen")
    e("buffer_load_ushort v38, v36, s[32:35], 0 offen offset:128")
    e("s_lshl_b32 s47, s41, 10")
    e(f"s_add_u32 s47, s47, {WS_WF}")
    e("v_lshlrev_b32 v39, 2, v30")
    e("v_add_u32 v39, s47, v39")
    e("s_waitcnt vmcnt(0)")
    e("v_lshl_or_b32 v37, v38, 16, v37")
    e("buffer_store_dword v37, v39, s[28:31], 0 offen")
    e("P_NOW2:")
    e("s_mov_b64 exec, s[36:37]")
    e("P_NOW:")
    e("s_barrier")
    e("s_mov_b64 exec, s[38:39]")
    e("s_cbranch_execz P_SKIP2")
    e("s_waitcnt vmcnt(2)")
    stamp(1)
    for i in range(4):
        e(f"v_lshrrev_b32 v{14+i}, 4, v{4+i}")
        e(f"v_mul_u32_u24 v{14+i}, 5369, v{14+i}")
        e(f"v_lshrrev_b32 v{14+i}, 16, v{14+i}")
        e(f"v_lshlrev_b32 v{14+i}, 2, v{14+i}")
        e(f"ds_add_rtn_u32 v{18+i}, v{14+i}, v23")
    e("P_SKIP2:")
    e("s_mov_b64 exec, -1")
    e("s_waitcnt lgkmcnt(0)")
    e("s_barrier")
    stamp(2)
    e("v_cmp_gt_u32 vcc, 64, v0")
    e("s_and_saveexec_b64 s[36:37], vcc")
    e("s_cbranch_execz P_SKIP3")
    e("v_lshlrev_b32 v30, 4, v0")
    e("ds_read_b128 v[32:35], v30")
    e("s_waitcnt lgkmcnt(0)")
    e("v_add_u32 v36, v32, v33")
    e("v_add_u32 v37, v36, v34")
    e("v_add_u32 v38, v37, v35")
    e("v_mov_b32 v39, v38")
    wave_scan(39)
    e("v_sub_u32 v40, v39, v38")
    e("v_add_u32 v41, v40, v32")
    e("v_add_u32 v42, v40, v36")
    e("v_add_u32 v43, v40, v37")
    for i in range(4):
        e(f"v_lshl_or_b32 v{44+i}, v{32+i}, 16, v{40+i}")
        e(f"v_add_u32 v{48+i}, 128, v{40+i}")
    e("ds_write_b128 v30, v[48:51]")
    e("s_lshl_b32 s41, s2, 2")
    e(f"s_add_u32 s41, s41, {WS_TABLE}")
    e("v_lshlrev_b32 v31, 12, v0")
    e("v_add_u32 v31, s41, v31")
    for i in range(4):
        e(f"buffer_store_dword v{44+i}, v31, s[28:31], 0 offen offset:{i*1024}")
    e("P_SKIP3:")
    e("s_mov_b64 exec, -1")
    e("s_waitcnt lgkmcnt(0)")
    e("s_barrier")
    stamp(3)
    e("s_mov_b64 exec, s[38:39]")
    e("s_cbranch_execz P_SKIP4")
    for i in range(4):
        e(f"ds_read_b32 v{14+i}, v{14+i}")
    e("s_waitcnt vmcnt(0)")
    e("v_lshl_or_b32 v8, v12, 16, v8")
    e("v_and_or_b32 v9, v12, s40, v9")
    e("v_lshl_or_b32 v10, v13, 16, v10")
    e("v_and_or_b32 v11, v13, s40, v11")
    for i in range(4):
        e(f"s_waitcnt lgkmcnt({3-i})")
        e(f"v_add_lshl_u32 v{14+i}, v{14+i}, v{18+i}, 3")
    for i in range(4):
        e(f"ds_write2_b32 v{14+i}, v{8+i}, v{4+i} offset0:0 offset1:1")
    e("P_SKIP4:")
    e("s_mov_b64 exec, -1")
    e("s_waitcnt lgkmcnt(0)")
    e("s_barrier")
    stamp(4)
    e("v_lshlrev_b32 v30, 4, v0")
    e("ds_read_b128 v[32:35], v30 offset:1024")
    e(f"s_mul_i32 s41, s2, {CHB}")
    e("v_add_u32 v31, s41, v30")
    e(f"v_cmp_gt_u32 vcc, {CHB//16 - 1024}, v0")
    e("s_and_saveexec_b64 s[36:37], vcc")
    e("s_cbranch_execz P_SKIP5")
    e(f"ds_read_b128 v[36:39], v30 offset:{1024+16384}")
    e("v_add_u32 v40, 0x4000, v31")
    e("s_waitcnt lgkmcnt(0)")
    e("buffer_store_dwordx4 v[36:39], v40, s[28:31], 0 offen")
    e("P_SKIP5:")
    e("s_mov_b64 exec, -1")
    e("s_waitcnt lgkmcnt(0)")
    e("buffer_store_dwordx4 v[32:35], v31, s[28:31], 0 offen")
    if DIAG:
        e("s_waitcnt vmcnt(0)")
    stamp(5)
    stamp_store(0, 28, 6, 50)
    e("P_END:")
    e("s_endpgm")


ACC = 4
A = 20
BF = 36
EW4 = 40
OH4 = 44
SRC2 = 48
GOFF = 50
LOFF = 54
TRA = 58
ASRC = 62
AEW = 63
SHAMT = 64
T0 = 65
DESC = 72
EN = 76
POS = 92
XT = 100
T1T = 108
J16 = 116
GBASE = 117
ONE = 118
ZERO = 119
NV = 120

S_B, S_T0, S_NT, S_TAU = 28, 29, 30, 31
S_128, S_F, S_SB, S_LB = 32, 33, 34, 35
S_W32, S_U, S_CNT, S_REM, S_MAXC, S_MORE = 36, 37, 38, 39, 40, 41
S_TMP = 42
S_MASK = 48
S_X = 64
S_NWIN = 66
S_HDR = 67


def issue_gather(slot):
    for i in range(4):
        e(f"s_add_u32 m0, s{S_SB}, {slot*4096 + i*1024}")
        sel = " op_sel:[1,0,0,0]" if i & 1 else ""
        e(f"v_mad_u32_u16 v{GOFF+i}, v{SRC2 + i//2}, s{S_128}, v{LOFF+i}{sel}")
        e(f"buffer_load_dwordx4 v{GOFF+i}, s[12:15], 0 offen lds")


def main_loop(p, barrier_after_issue=False):
    e(f"s_cmp_eq_u32 s{S_REM}, 0")
    e(f"s_cbranch_scc1 {p}_NOSTEP")
    e(f"ds_read_b64 v[{SRC2}:{SRC2+1}], v{ASRC}")
    e(f"ds_read_b64 v[{T0+1}:{T0+2}], v{ASRC} offset:64")
    e("s_waitcnt lgkmcnt(1)")
    issue_gather(0)
    e(f"s_cmp_lt_u32 s{S_REM}, 2")
    e(f"s_cbranch_scc1 {p}_NOSTEP")
    e("s_waitcnt lgkmcnt(0)")
    e(f"v_mov_b32 v{SRC2}, v{T0+1}")
    e(f"v_mov_b32 v{SRC2+1}, v{T0+2}")
    issue_gather(1)
    e(f"{p}_NOSTEP:")
    if barrier_after_issue:
        e("s_barrier")
    e(f"s_cmp_eq_u32 s{S_REM}, 0")
    e(f"s_cbranch_scc1 {p}_DONE")
    for P in range(2):
        e(f"{p}_LOOP{P}:")
        e(f"ds_read_b128 v[{EW4}:{EW4+3}], v{AEW} offset:{TCAP*2}")
        e(f"ds_read_b128 v[{OH4}:{OH4+3}], v{AEW} offset:{TCAP*4}")
        e(f"ds_read_b64 v[{SRC2}:{SRC2+1}], v{ASRC} offset:128")
        e(f"s_cmp_eq_u32 s{S_REM}, 1")
        e(f"s_cbranch_scc1 {p}_W0_{P}")
        e("s_waitcnt vmcnt(4)")
        e(f"s_branch {p}_W1_{P}")
        e(f"{p}_W0_{P}:")
        e("s_waitcnt vmcnt(0)")
        e(f"{p}_W1_{P}:")
        for t in range(4):
            for h in range(2):
                r = A + t * 4 + h * 2
                e(f"ds_read_b64_tr_b16 v[{r}:{r+1}], v{TRA+t} offset:{P*4096 + h*256}")
        e("s_waitcnt lgkmcnt(9)")
        for i in range(4):
            e(f"v_pk_lshlrev_b16 v{BF+i}, v{SHAMT}, v{OH4+i}")
        for i in range(4):
            e(f"v_pk_ashrrev_i16 v{BF+i}, s{S_F}, v{BF+i}")
        for i in range(4):
            e(f"v_and_b32 v{BF+i}, v{BF+i}, v{EW4+i}")
        e(f"v_add_u32 v{AEW}, 64, v{AEW}")
        e(f"v_add_u32 v{ASRC}, 64, v{ASRC}")
        e("s_waitcnt lgkmcnt(0)")
        e(f"s_cmp_lt_u32 s{S_REM}, 3")
        e(f"s_cbranch_scc1 {p}_NI_{P}")
        issue_gather(P)
        e(f"{p}_NI_{P}:")
        for t in range(4):
            a = A + t * 4
            c = ACC + t * 4
            e(f"v_mfma_f32_16x16x32_bf16 v[{c}:{c+3}], v[{a}:{a+3}], v[{BF}:{BF+3}], v[{c}:{c+3}]")
        e(f"s_sub_u32 s{S_REM}, s{S_REM}, 1")
        e(f"s_cmp_eq_u32 s{S_REM}, 0")
        e(f"s_cbranch_scc1 {p}_DONE")
        if P == 1:
            e(f"s_branch {p}_LOOP0")
    e(f"{p}_DONE:")


def set_list_ptrs():
    e(f"v_and_b32 v{T0}, 8, v1")
    e(f"v_lshlrev_b32 v{T0}, 1, v{T0}")
    e(f"v_and_b32 v{T0+1}, 16, v1")
    e(f"v_lshrrev_b32 v{T0+1}, 1, v{T0+1}")
    e(f"v_or_b32 v{T0}, v{T0}, v{T0+1}")
    e(f"v_and_b32 v{T0+1}, 32, v1")
    e(f"v_or_b32 v{T0}, v{T0}, v{T0+1}")
    e(f"v_add_u32 v{ASRC}, s{S_LB}, v{T0}")
    e(f"v_and_b32 v{T0}, 48, v1")
    e(f"v_add_u32 v{AEW}, s{S_LB}, v{T0}")


def generic_sort_and_loop(p):
    e(f"s_lshl_b32 s{S_TMP}, s{S_B}, 10")
    e(f"s_add_u32 s{S_TMP}, s{S_TMP}, {WS_TABLE}")
    e(f"v_lshrrev_b32 v{T0}, 4, v0")
    e(f"v_lshlrev_b32 v{T0+1}, 4, v{T0}")
    e(f"v_add_u32 v{T0+1}, s{S_TMP}, v{T0+1}")
    e(f"buffer_load_dwordx4 v[{DESC}:{DESC+3}], v{T0+1}, s[16:19], 0 offen")
    e(f"v_and_b32 v{J16}, 15, v0")
    e(f"v_mul_u32_u24 v{GBASE}, {4*CHB}, v{T0}")
    e(f"v_lshl_add_u32 v{GBASE}, v{J16}, 3, v{GBASE}")
    e(f"v_lshlrev_b32 v{T0}, 2, v{T0}")
    e(f"s_mov_b32 s{S_W32}, 0")
    e(f"s_mov_b32 s{S_NWIN}, 0")
    e("s_waitcnt vmcnt(0)")
    stamp(1)
    for r in range(4):
        e(f"v_cmp_gt_u32 vcc, {NCH - r}, v{T0}")
        e("s_nop 1")
        e(f"v_cndmask_b32 v{DESC+r}, 0, v{DESC+r}, vcc")
    e(f"{p}_WIN:")
    e(f"v_lshlrev_b32 v{T0}, 2, v0")
    e("v_cmp_gt_u32 vcc, 130, v0")
    e(f"s_and_saveexec_b64 s[{S_X}:{S_X+1}], vcc")
    e(f"ds_write_b32 v{T0}, v{ZERO}")
    e(f"s_mov_b64 exec, s[{S_X}:{S_X+1}]")
    e(f"s_lshl_b32 s{S_TMP+1}, s{S_W32}, 3")
    e(f"v_add_u32 v{T0+3}, 16, v{J16}")
    e(f"v_mov_b32 v{T0+4}, 0x7f000000")
    e(f"v_mov_b32 v{T0+6}, 0")
    for r in range(4):
        m0 = S_MASK + 4 * r
        m1 = m0 + 2
        e(f"v_lshrrev_b32 v{T0}, 16, v{DESC+r}")
        e(f"v_subrev_u32 v{T0}, s{S_W32}, v{T0}")
        e(f"v_max_i32 v{T0+6}, v{T0+6}, v{T0}")
        e(f"v_cmp_gt_i32 s[{m0}:{m0+1}], v{T0}, v{J16}")
        e(f"v_cmp_gt_i32 s[{m1}:{m1+1}], v{T0}, v{T0+3}")
        e(f"v_and_b32 v{T0+1}, 0xffff, v{DESC+r}")
        e(f"v_lshl_add_u32 v{T0+1}, v{T0+1}, 3, v{GBASE}")
        e(f"s_add_u32 s{S_TMP}, s{S_TMP+1}, {r*CHB}")
        e(f"v_cndmask_b32 v{T0+2}, v{T0+4}, v{T0+1}, s[{m0}:{m0+1}]")
        e(f"v_cndmask_b32 v{T0+5}, v{T0+4}, v{T0+1}, s[{m1}:{m1+1}]")
        en0 = EN + 4 * r
        e(f"buffer_load_dwordx2 v[{en0}:{en0+1}], v{T0+2}, s[16:19], s{S_TMP} offen")
        e(f"buffer_load_dwordx2 v[{en0+2}:{en0+3}], v{T0+5}, s[16:19], s{S_TMP} offen offset:128")
    e("s_waitcnt lgkmcnt(0)")
    e("s_barrier")
    e(f"v_cmp_lt_i32 vcc, 32, v{T0+6}")
    e(f"s_and_saveexec_b64 s[{S_X}:{S_X+1}], vcc")
    e(f"v_mov_b32 v{T0}, {L_MORE}")
    e(f"ds_write_b32 v{T0}, v{ONE}")
    e(f"s_mov_b64 exec, s[{S_X}:{S_X+1}]")
    e(f"s_lshl_b32 s{S_TMP}, s{S_T0}, 5")
    e(f"s_sub_u32 s{S_TMP}, {L_BINS}, s{S_TMP}")
    for k in range(8):
        en = EN + 2 * k
        ba = A + k
        m = S_MASK + 2 * k
        e(f"s_waitcnt vmcnt({7-k})")
        e(f"v_and_b32 v{ba}, 0xfff0, v{en+1}")
        e(f"v_lshl_add_u32 v{ba}, v{ba}, 1, s{S_TMP}")
        e(f"v_bfe_u32 v{T0}, v{en}, 13, 3")
        e(f"v_lshl_add_u32 v{ba}, v{T0}, 2, v{ba}")
        e(f"s_mov_b64 exec, s[{m}:{m+1}]")
        e(f"ds_add_rtn_u32 v{POS+k}, v{ba}, v{ONE}")
        e("s_mov_b64 exec, -1")
    e("s_waitcnt lgkmcnt(0)")
    e("s_barrier")
    stamp(2)
    e(f"s_mov_b32 s{S_CNT}, 0")
    e(f"s_cmp_ge_u32 s{S_TAU}, s{S_NT}")
    e(f"s_cbranch_scc1 {p}_NOSCAN")
    e(f"s_lshl_b32 s{S_TMP}, s{S_TAU}, 5")
    e(f"v_lshlrev_b32 v{T0}, 2, v1")
    e(f"v_add_u32 v{T0}, s{S_TMP}, v{T0}")
    e(f"v_mov_b32 v{T0+1}, 0")
    e("s_mov_b64 exec, 0xff")
    e(f"ds_read_b32 v{T0+1}, v{T0} offset:{L_BINS}")
    e("s_mov_b64 exec, -1")
    e("s_waitcnt lgkmcnt(0)")
    e(f"v_mov_b32 v{T0+2}, v{T0+1}")
    wave_scan(T0 + 2, full=False)
    e(f"v_sub_u32 v{T0+3}, v{T0+2}, v{T0+1}")
    e(f"v_readlane_b32 s{S_CNT}, v{T0+2}, 7")
    e("s_mov_b64 exec, 0xff")
    e(f"ds_write_b32 v{T0}, v{T0+3} offset:{L_BINS}")
    e("s_mov_b64 exec, 1")
    e(f"v_mov_b32 v{T0}, {L_MAXC}")
    e(f"v_mov_b32 v{T0+1}, s{S_CNT}")
    e(f"ds_max_u32 v{T0}, v{T0+1}")
    e("s_mov_b64 exec, -1")
    e(f"{p}_NOSCAN:")
    e("s_waitcnt lgkmcnt(0)")
    e("s_barrier")
    stamp(3)
    e(f"v_mov_b32 v{T0}, {L_MAXC}")
    e(f"ds_read_b64 v[{T0+1}:{T0+2}], v{T0}")
    for k in range(8):
        m = S_MASK + 2 * k
        e(f"s_mov_b64 exec, s[{m}:{m+1}]")
        e(f"ds_read_b32 v{A+k}, v{A+k}")
    e("s_mov_b64 exec, -1")
    e("s_waitcnt lgkmcnt(0)")
    e(f"v_readfirstlane_b32 s{S_MAXC}, v{T0+1}")
    e(f"v_readfirstlane_b32 s{S_MORE}, v{T0+2}")
    for k in range(8):
        e(f"v_add_u32 v{POS+k}, v{POS+k}, v{A+k}")
    e(f"s_mov_b32 s{S_U}, 0")
    e(f"{p}_SUB:")
    e(f"s_mul_i32 s{S_TMP}, s{S_T0}, {TLB}")
    e(f"s_sub_u32 s{S_TMP}, 0, s{S_TMP}")
    e(f"s_mov_b32 s{S_TMP+2}, {TLB}")
    for k in range(8):
        en = EN + 2 * k
        m = S_MASK + 2 * k
        e(f"v_subrev_u32 v{T0}, s{S_U}, v{POS+k}")
        e(f"v_cmp_gt_u32 vcc, {TCAP}, v{T0}")
        e(f"v_lshrrev_b32 v{T0+1}, 4, v{en+1}")
        e(f"v_mul_u32_u24 v{T0+1}, s{S_TMP+2}, v{T0+1}")
        e(f"v_lshl_add_u32 v{T0}, v{T0}, 1, s{S_TMP}")
        e(f"v_add_u32 v{T0}, v{T0}, v{T0+1}")
        e(f"v_and_b32 v{T0+1}, 15, v{en+1}")
        e(f"v_lshlrev_b32 v{T0+1}, v{T0+1}, v{ONE}")
        e(f"s_and_b64 exec, vcc, s[{m}:{m+1}]")
        e(f"ds_write_b16 v{T0}, v{en} offset:{L_LISTS}")
        e(f"ds_write_b16_d16_hi v{T0}, v{en} offset:{L_LISTS + TCAP*2}")
        e(f"ds_write_b16 v{T0}, v{T0+1} offset:{L_LISTS + TCAP*4}")
        e("s_mov_b64 exec, -1")
    e(f"s_sub_i32 s{S_TMP}, s{S_CNT}, s{S_U}")
    e(f"s_max_i32 s{S_TMP}, s{S_TMP}, 0")
    e(f"s_min_i32 s{S_TMP}, s{S_TMP}, {TCAP}")
    e(f"s_add_u32 s{S_REM}, s{S_TMP}, 31")
    e(f"s_lshr_b32 s{S_REM}, s{S_REM}, 5")
    e(f"s_lshl_b32 s{S_TMP+1}, s{S_REM}, 5")
    e(f"v_add_u32 v{T0}, s{S_TMP}, v1")
    e(f"v_cmp_gt_u32 vcc, s{S_TMP+1}, v{T0}")
    e(f"v_lshl_add_u32 v{T0}, v{T0}, 1, s{S_LB}")
    e("s_mov_b64 exec, vcc")
    e(f"ds_write_b16 v{T0}, v{ZERO}")
    e(f"ds_write_b16 v{T0}, v{ZERO} offset:{TCAP*2}")
    e(f"ds_write_b16 v{T0}, v{ZERO} offset:{TCAP*4}")
    e("s_mov_b64 exec, -1")
    e(f"s_mov_b32 s{S_HDR}, s{S_REM}")
    set_list_ptrs()
    e("s_waitcnt lgkmcnt(0)")
    e("s_barrier")
    stamp(4)
    main_loop(p + "G")
    stamp(5)
    e(f"s_add_u32 s{S_NWIN}, s{S_NWIN}, 1")
    e(f"s_add_u32 s{S_U}, s{S_U}, {TCAP}")
    e(f"s_cmp_lt_u32 s{S_U}, s{S_MAXC}")
    e(f"s_cbranch_scc0 {p}_SUBDONE")
    e("s_barrier")
    e(f"s_branch {p}_SUB")
    e(f"{p}_SUBDONE:")
    e(f"s_cmp_eq_u32 s{S_MORE}, 0")
    e(f"s_cbranch_scc1 {p}_WINDONE")
    e(f"s_add_u32 s{S_W32}, s{S_W32}, 32")
    e("s_barrier")
    e(f"s_branch {p}_WIN")
    e(f"{p}_WINDONE:")


def spmm_common_setup(p, second):
    e(f"s_cmp_ge_u32 s2, {NB}")
    e(f"s_cbranch_scc1 {p}_END")
    e("s_load_dwordx2 s[4:5], s[0:1], 0")
    e("s_load_dwordx2 s[6:7], s[0:1], 56")
    if second:
        e("s_load_dwordx2 s[8:9], s[0:1], 40")
    e(f"s_and_b32 s{S_B}, s2, 7")
    e(f"s_lshl_b32 s{S_B}, s{S_B}, 5")
    e(f"s_lshr_b32 s{S_TMP}, s2, 3")
    e(f"s_add_u32 s{S_B}, s{S_B}, s{S_TMP}")
    e(f"s_mul_i32 s{S_T0}, s{S_B}, 99995")
    e(f"s_add_u32 s{S_T0}, s{S_T0}, 8160")
    e(f"s_add_u32 s{S_NT}, s{S_T0}, 99995")
    e(f"s_lshr_b32 s{S_T0}, s{S_T0}, 13")
    e(f"s_lshr_b32 s{S_NT}, s{S_NT}, 13")
    e(f"s_sub_u32 s{S_NT}, s{S_NT}, s{S_T0}")
    e("v_and_b32 v1, 63, v0")
    e(f"v_lshrrev_b32 v{T0}, 6, v0")
    e("s_nop 0")
    e(f"v_readfirstlane_b32 s{S_TAU}, v{T0}")
    e(f"s_movk_i32 s{S_128}, 128")
    e(f"s_mov_b32 s{S_F}, 0x000f000f")
    e(f"v_mov_b32 v{ONE}, 1")
    e(f"v_mov_b32 v{ZERO}, 0")
    e(f"s_min_u32 s{S_TMP}, s{S_TAU}, 12")
    e(f"s_lshl_b32 s{S_SB}, s{S_TMP}, 13")
    e(f"s_add_u32 s{S_SB}, s{S_SB}, {L_STAGE}")
    e(f"s_mul_i32 s{S_LB}, s{S_TMP}, {TLB}")
    e(f"s_add_u32 s{S_LB}, s{S_LB}, {L_LISTS}")
    e(f"v_and_b32 v{T0}, 7, v1")
    for i in range(4):
        e(f"v_xor_b32 v{LOFF+i}, {2*i}, v{T0}")
        e(f"v_lshlrev_b32 v{LOFF+i}, 4, v{LOFF+i}")
    e(f"v_bfe_u32 v{T0}, v1, 2, 2")
    e(f"v_lshlrev_b32 v{T0+1}, 10, v{T0}")
    e(f"v_and_b32 v{T0+2}, 16, v1")
    e(f"v_lshl_add_u32 v{T0+1}, v{T0+2}, 3, v{T0+1}")
    e(f"v_and_b32 v{T0+2}, 32, v1")
    e(f"v_lshl_add_u32 v{T0+1}, v{T0+2}, 4, v{T0+1}")
    e(f"v_and_b32 v{T0+2}, 3, v1")
    e(f"v_lshl_add_u32 v{T0+1}, v{T0+2}, 3, v{T0+1}")
    e(f"v_add_u32 v{T0+1}, s{S_SB}, v{T0+1}")
    for t in range(4):
        e(f"v_xor_b32 v{T0+2}, {t}, v{T0}")
        e(f"v_lshl_add_u32 v{TRA+t}, v{T0+2}, 5, v{T0+1}")
    e(f"v_and_b32 v{T0}, 15, v1")
    e(f"v_sub_u32 v{T0}, 15, v{T0}")
    e(f"v_lshl_or_b32 v{SHAMT}, v{T0}, 16, v{T0}")
    for i in range(16):
        e(f"v_mov_b32 v{ACC+i}, 0")
    e("s_waitcnt lgkmcnt(0)")
    stamp(0)
    srd(16, 6, 7, WS_USED)
    if not second:
        srd(12, 4, 5, N * 128)
    else:
        srd_off(12, 6, 7, WS_T1P, N * 128)
        srd(20, 4, 5, N * 128)
        srd(24, 8, 9, N * 128)


def tile_row_off(vdst):
    e(f"s_add_u32 s{S_TMP}, s{S_T0}, s{S_TAU}")
    e(f"s_lshl_b32 s{S_TMP}, s{S_TMP}, 11")
    e(f"v_and_b32 v{vdst}, 15, v1")
    e(f"v_lshlrev_b32 v{vdst}, 7, v{vdst}")
    e(f"v_and_b32 v{T0+6}, 48, v1")
    e(f"v_lshl_add_u32 v{vdst}, v{T0+6}, 1, v{vdst}")
    e(f"v_add_u32 v{vdst}, s{S_TMP}, v{vdst}")


def gen_spmm1():
    p = "A"
    kernel_header("cheb_spmm1_kernel")
    spmm_common_setup(p, False)
    generic_sort_and_loop(p)
    e(f"s_cmp_ge_u32 s{S_TAU}, s{S_NT}")
    e(f"s_cbranch_scc1 {p}_END")
    tile_row_off(T0)
    e(f"v_add_u32 v{T0}, {WS_T1P}, v{T0}")
    e("s_nop 7")
    for t in range(4):
        e(f"v_cvt_pk_bf16_f32 v{A+2*t}, v{ACC+4*t}, v{ACC+4*t+1}")
        e(f"v_cvt_pk_bf16_f32 v{A+2*t+1}, v{ACC+4*t+2}, v{ACC+4*t+3}")
    e(f"buffer_store_dwordx4 v[{A}:{A+3}], v{T0}, s[16:19], 0 offen")
    e(f"buffer_store_dwordx4 v[{A+4}:{A+7}], v{T0}, s[16:19], 0 offen offset:16")
    e(f"v_lshlrev_b32 v{T0+1}, 4, v1")
    e(f"v_add_u32 v{T0+2}, s{S_LB}, v{T0+1}")
    e(f"ds_read_b128 v[{EN}:{EN+3}], v{T0+2}")
    e(f"ds_read_b128 v[{EN+4}:{EN+7}], v{T0+2} offset:1024")
    e(f"ds_read_b128 v[{EN+8}:{EN+11}], v{T0+2} offset:2048")
    e(f"s_add_u32 s{S_TMP}, s{S_T0}, s{S_TAU}")
    e(f"s_mul_i32 s{S_TMP+1}, s{S_TMP}, {TLB}")
    e(f"s_add_u32 s{S_TMP+1}, s{S_TMP+1}, {WS_LISTS}")
    e(f"v_add_u32 v{T0+1}, s{S_TMP+1}, v{T0+1}")
    e(f"s_cmp_eq_u32 s{S_NWIN}, 1")
    e(f"s_cselect_b32 s{S_HDR}, s{S_HDR}, -1")
    e(f"s_lshl_b32 s{S_TMP}, s{S_TMP}, 2")
    e(f"s_add_u32 s{S_TMP}, s{S_TMP}, {WS_HDR}")
    e(f"v_mov_b32 v{T0+3}, s{S_TMP}")
    e(f"v_mov_b32 v{T0+4}, s{S_HDR}")
    e("s_waitcnt lgkmcnt(0)")
    e(f"buffer_store_dwordx4 v[{EN}:{EN+3}], v{T0+1}, s[16:19], 0 offen")
    e(f"buffer_store_dwordx4 v[{EN+4}:{EN+7}], v{T0+1}, s[16:19], 0 offen offset:1024")
    e("s_mov_b64 exec, 0xffff")
    e(f"buffer_store_dwordx4 v[{EN+8}:{EN+11}], v{T0+1}, s[16:19], 0 offen offset:2048")
    e("s_mov_b64 exec, 1")
    e(f"buffer_store_dword v{T0+4}, v{T0+3}, s[16:19], 0 offen")
    if DIAG:
        e("s_waitcnt vmcnt(0)")
    stamp(6)
    stamp_store(1, 16, 7, T0)
    e(f"{p}_END:")
    e("s_endpgm")


def gen_spmm2():
    p = "B"
    kernel_header("cheb_spmm2_kernel")
    spmm_common_setup(p, True)
    e(f"s_sub_u32 s{S_TMP}, s{S_NT}, 1")
    e(f"s_min_u32 s{S_TMP}, s{S_TMP}, s{S_TAU}")
    e(f"s_add_u32 s{S_TMP}, s{S_TMP}, s{S_T0}")
    e(f"s_lshl_b32 s{S_TMP+1}, s{S_TMP}, 2")
    e(f"s_add_u32 s{S_TMP+1}, s{S_TMP+1}, {WS_HDR}")
    e(f"s_load_dword s{S_HDR}, s[6:7], s{S_TMP+1}")
    e(f"v_lshlrev_b32 v{T0+1}, 4, v1")
    e(f"s_cmp_ge_u32 s{S_TAU}, 13")
    e(f"s_cbranch_scc1 {p}_HELP")
    e(f"s_cmp_ge_u32 s{S_TAU}, s{S_NT}")
    e(f"s_cbranch_scc1 {p}_PRE")
    e(f"s_mul_i32 s{S_TMP+1}, s{S_TMP}, {TLB}")
    e(f"s_add_u32 s{S_TMP+1}, s{S_TMP+1}, {WS_LISTS}")
    e(f"s_mov_b32 m0, s{S_LB}")
    e(f"v_add_u32 v{T0+2}, s{S_TMP+1}, v{T0+1}")
    e(f"buffer_load_dwordx4 v{T0+2}, s[16:19], 0 offen lds")
    e(f"buffer_load_dwordx4 v{T0+2}, s[16:19], 0 offen offset:1024 lds")
    e("s_mov_b64 exec, 0xffff")
    e(f"buffer_load_dwordx4 v{T0+2}, s[16:19], 0 offen offset:2048 lds")
    e("s_mov_b64 exec, -1")
    tile_row_off(T0)
    e(f"buffer_load_dwordx4 v[{XT}:{XT+3}], v{T0}, s[20:23], 0 offen")
    e(f"buffer_load_dwordx4 v[{XT+4}:{XT+7}], v{T0}, s[20:23], 0 offen offset:16")
    e(f"buffer_load_dwordx4 v[{T1T}:{T1T+3}], v{T0}, s[12:15], 0 offen")
    e(f"buffer_load_dwordx4 v[{T1T+4}:{T1T+7}], v{T0}, s[12:15], 0 offen offset:16")
    e(f"s_branch {p}_PRE")
    e(f"{p}_HELP:")
    e(f"s_sub_u32 s{S_TMP}, s{S_TAU}, 13")
    e(f"s_lshl_b32 s{S_TMP}, s{S_TMP}, 13")
    e(f"s_add_u32 s{S_TMP+1}, s{S_TMP}, {WS_WF}")
    e(f"v_add_u32 v{T0+2}, s{S_TMP+1}, v{T0+1}")
    e(f"v_add_u32 v{T0+3}, 0x1000, v{T0+2}")
    e(f"s_add_u32 m0, s{S_TMP}, {L_WF}")
    e("s_nop 0")
    for i in range(4):
        e(f"buffer_load_dwordx4 v{T0+2}, s[16:19], 0 offen offset:{i*1024} lds")
    e(f"s_add_u32 m0, s{S_TMP}, {L_WF + 4096}")
    e("s_nop 0")
    for i in range(4):
        e(f"buffer_load_dwordx4 v{T0+3}, s[16:19], 0 offen offset:{i*1024} lds")
    e("s_waitcnt vmcnt(0)")
    e(f"{p}_PRE:")
    e("s_waitcnt lgkmcnt(0)")
    e(f"s_cmp_eq_u32 s{S_HDR}, -1")
    e(f"s_cbranch_scc1 {p}_SLOW")
    e(f"s_cmp_lt_u32 s{S_TAU}, s{S_NT}")
    e(f"s_cbranch_scc1 {p}_FAST")
    e("s_barrier")
    e(f"s_branch {p}_END")
    e(f"{p}_FAST:")
    e(f"s_mov_b32 s{S_REM}, s{S_HDR}")
    set_list_ptrs()
    stamp(1)
    e("s_waitcnt vmcnt(4)")
    stamp(2)
    main_loop(p + "F", barrier_after_issue=True)
    stamp(3)
    e(f"s_branch {p}_EPI")
    e(f"{p}_SLOW:")
    e("s_waitcnt vmcnt(0)")
    generic_sort_and_loop(p)
    e(f"s_cmp_ge_u32 s{S_TAU}, s{S_NT}")
    e(f"s_cbranch_scc1 {p}_END")
    e(f"{p}_EPI:")
    e("s_waitcnt vmcnt(0)")
    e(f"v_lshlrev_b32 v{T0+1}, 4, v1")
    e(f"v_add_u32 v{T0+1}, {L_WF}, v{T0+1}")
    e(f"s_mov_b32 s{S_TMP+2}, 0xffff0000")
    e("s_nop 7")
    T2 = EN
    TMPA = EN + 8
    for i in range(8):
        a = ACC + 2 * i
        e(f"v_cvt_pk_bf16_f32 v{TMPA}, v{a}, v{a+1}")
        e(f"v_lshlrev_b32 v{TMPA+1}, 16, v{XT+i}")
        e(f"v_and_b32 v{TMPA+2}, s{S_TMP+2}, v{XT+i}")
        e(f"v_lshlrev_b32 v{TMPA+3}, 16, v{TMPA}")
        e(f"v_and_b32 v{TMPA+4}, s{S_TMP+2}, v{TMPA}")
        e(f"v_fma_f32 v{TMPA+3}, 2.0, v{TMPA+3}, -v{TMPA+1}")
        e(f"v_fma_f32 v{TMPA+4}, 2.0, v{TMPA+4}, -v{TMPA+2}")
        e(f"v_cvt_pk_bf16_f32 v{T2+i}, v{TMPA+3}, v{TMPA+4}")
    Bsrc = {0: XT, 1: T1T, 2: T2}
    WB = [A, BF]
    steps = [(k, s) for k in range(3) for s in range(2)]

    def ldw(idx):
        k, s = steps[idx]
        wb = WB[idx & 1]
        for t in range(4):
            f = k * 8 + s * 4 + t
            e(f"ds_read_b128 v[{wb+4*t}:{wb+4*t+3}], v{T0+1} offset:{f*1024}")
    ldw(0)
    for idx in range(6):
        if idx + 1 < 6:
            ldw(idx + 1)
            e("s_waitcnt lgkmcnt(4)")
        else:
            e("s_waitcnt lgkmcnt(0)")
        k, s = steps[idx]
        wb = WB[idx & 1]
        b = Bsrc[k] + 4 * s
        for t in range(4):
            c = ACC + 4 * t
            src_c = "0" if idx == 0 else f"v[{c}:{c+3}]"
            e(f"v_mfma_f32_16x16x32_bf16 v[{c}:{c+3}], v[{wb+4*t}:{wb+4*t+3}], v[{b}:{b+3}], {src_c}")
    tile_row_off(T0)
    e("s_nop 7")
    e("s_nop 3")
    for t in range(4):
        e(f"v_cvt_pk_bf16_f32 v{A+2*t}, v{ACC+4*t}, v{ACC+4*t+1}")
        e(f"v_cvt_pk_bf16_f32 v{A+2*t+1}, v{ACC+4*t+2}, v{ACC+4*t+3}")
    e(f"buffer_store_dwordx4 v[{A}:{A+3}], v{T0}, s[24:27], 0 offen")
    e(f"buffer_store_dwordx4 v[{A+4}:{A+7}], v{T0}, s[24:27], 0 offen offset:16")
    stamp(4)
    if DIAG:
        e("s_waitcnt vmcnt(0)")
    stamp(5)
    stamp_store(2, 16, 6, T0)
    e(f"{p}_END:")
    e("s_endpgm")


HEADER = """; Kernarg layout for this problem (64 bytes, ptrs only, base s[0:1]):
"""


def main():
    out.append(HEADER.rstrip())
    out.append(f"; @launch kernel=cheb_part_kernel grid=({NCH},1,1) block=(1024,1,1) lds={1024+CHB}")
    out.append(f"; @launch kernel=cheb_spmm1_kernel grid=({NB},1,1) block=(1024,1,1) lds={L_TOTAL}")
    out.append(f"; @launch kernel=cheb_spmm2_kernel grid=({NB},1,1) block=(1024,1,1) lds={L_TOTAL}")
    out.append('.amdgcn_target "amdgcn-amd-amdhsa--gfx950"')
    gen_part()
    gen_spmm1()
    gen_spmm2()
    kernel_desc("cheb_part_kernel", 56, 100 if DIAG else 64)
    kernel_desc("cheb_spmm1_kernel", NV, 100 if DIAG else 80)
    kernel_desc("cheb_spmm2_kernel", NV, 100 if DIAG else 80)
    path = sys.argv[1] if len(sys.argv) > 1 else "standalone__spectral_conv_chebnet__graph.s"
    open(path, "w").write("\n".join(out) + "\n")


if __name__ == "__main__":
    main()
```

```python
import sys

N = 50000
E = 800000
NCH = 250
CH = 3200
CHB = CH * 8
NB = 256
TCAP = 384
TLB = TCAP * 6

WS_ENT = 0
WS_TABLE = 0x680000
WS_T1P = 0x700000
WS_LISTS = 0xE00000
WS_HDR = 0x1500000
WS_WF = 0x1510000
WS_USED = 0x1520000

L_BINS = 0
L_MAXC = 512
L_MORE = 516
L_LISTS = 1024
L_WF = L_LISTS + 13 * TLB
L_STAGE = L_WF + 24576
L_TOTAL = L_STAGE + 13 * 8192
assert L_STAGE % 256 == 0 and L_TOTAL <= 163840

out = []
import os
DIAG = bool(os.environ.get("DIAG"))
PF0 = int(os.environ.get("PF0", "0"))
PF1 = int(os.environ.get("PF1", "0"))
PRIO = int(os.environ.get("PRIO", "0"))
ROT = int(os.environ.get("ROT", "1"))
WS_DIAG = 0x1600000
if DIAG:
    WS_USED = 0x1800000
S_ST = 80


def stamp(i):
    if DIAG:
        e("s_waitcnt lgkmcnt(0)")
        e(f"s_memrealtime s[{S_ST+2*i}:{S_ST+2*i+1}]")
        e("s_waitcnt lgkmcnt(0)")


def stamp_store(kidx, srd, n, vt):
    if not DIAG:
        return
    e("s_mov_b64 exec, 1")
    e(f"v_lshrrev_b32 v{vt}, 6, v0")
    e(f"v_lshlrev_b32 v{vt}, 5, v{vt}")
    e(f"s_lshl_b32 s{S_ST+16}, s2, 9")
    e(f"s_add_u32 s{S_ST+16}, s{S_ST+16}, {WS_DIAG + kidx*0x40000}")
    e(f"v_add_u32 v{vt}, s{S_ST+16}, v{vt}")
    for i in range(n):
        e(f"v_mov_b32 v{vt+1}, s{S_ST+2*i}")
        e(f"buffer_store_dword v{vt+1}, v{vt}, s[{srd}:{srd+3}], 0 offen offset:{4*i}")


def e(s=""):
    out.append("    " + s if s and not s.endswith(":") else s)


def srd(d, plo, phi, size):
    e(f"s_mov_b32 s{d}, s{plo}")
    e(f"s_and_b32 s{d+1}, s{phi}, 0xffff")
    e(f"s_mov_b32 s{d+2}, {size}")
    e(f"s_mov_b32 s{d+3}, 0x00020000")


def srd_off(d, plo, phi, off, size):
    e(f"s_add_u32 s{d}, s{plo}, {off}")
    e(f"s_addc_u32 s{d+1}, s{phi}, 0")
    e(f"s_and_b32 s{d+1}, s{d+1}, 0xffff")
    e(f"s_mov_b32 s{d+2}, {size}")
    e(f"s_mov_b32 s{d+3}, 0x00020000")


def wave_scan(v, full=True):
    shifts = [1, 2, 4, 8] if full else [1, 2, 4]
    for sh in shifts:
        e("s_nop 1")
        e(f"v_add_u32_dpp v{v}, v{v}, v{v} row_shr:{sh} row_mask:0xf bank_mask:0xf bound_ctrl:0")
    if full:
        e("s_nop 1")
        e(f"v_add_u32_dpp v{v}, v{v}, v{v} row_bcast:15 row_mask:0xa bank_mask:0xf")
        e("s_nop 1")
        e(f"v_add_u32_dpp v{v}, v{v}, v{v} row_bcast:31 row_mask:0xc bank_mask:0xf")
    e("s_nop 1")


def prefetch(firstkb, count, srdx, s_tau, vlane16, vdummy, st, nw=16, w0=0):
    if count == 0:
        return
    e(f"s_and_b32 s{st}, s2, 7")
    e(f"s_mul_i32 s{st}, s{st}, {780 if ROT else 0}")
    e(f"s_lshr_b32 s{st+1}, s2, 3")
    e(f"s_mul_i32 s{st+1}, s{st+1}, {nw}")
    e(f"s_add_u32 s{st}, s{st}, s{st+1}")
    e(f"s_add_u32 s{st}, s{st}, s{s_tau}")
    e(f"s_add_u32 s{st}, s{st}, {firstkb - w0}")
    for k in range(count):
        e(f"s_cmp_ge_u32 s{st}, 6250")
        e(f"s_cselect_b32 s{st+1}, 6250, 0")
        e(f"s_sub_u32 s{st}, s{st}, s{st+1}")
        e(f"s_lshl_b32 s{st+1}, s{st}, 10")
        e(f"buffer_load_dwordx4 v[{vdummy}:{vdummy+3}], v{vlane16}, s[{srdx}:{srdx+3}], s{st+1} offen")
        e(f"s_add_u32 s{st}, s{st}, {32*nw}")


def kernel_header(name):
    e(".text")
    e(f".globl {name}")
    e(".p2align 8")
    e(f".type {name},@function")
    e(f"{name}:")


def kernel_desc(name, vgpr, sgpr):
    acc = (vgpr + 3) // 4 * 4
    e('.section .rodata,"a"')
    e(".p2align 6")
    e(f".amdhsa_kernel {name}")
    e(f"  .amdhsa_next_free_vgpr {vgpr}")
    e(f"  .amdhsa_next_free_sgpr {sgpr}")
    e(f"  .amdhsa_accum_offset {acc}")
    e("  .amdhsa_group_segment_fixed_size 0")
    e("  .amdhsa_kernarg_size 64")
    e("  .amdhsa_user_sgpr_count 2")
    e("  .amdhsa_user_sgpr_kernarg_segment_ptr 1")
    e("  .amdhsa_system_sgpr_workgroup_id_x 1")
    e("  .amdhsa_float_denorm_mode_32 3")
    e("  .amdhsa_float_denorm_mode_16_64 3")
    e(".end_amdhsa_kernel")


def gen_part():
    kernel_header("cheb_part_kernel")
    e(f"s_cmp_ge_u32 s2, {NCH}")
    e("s_cbranch_scc1 P_END")
    e("s_load_dwordx2 s[14:15], s[0:1], 0")
    e("s_and_b32 s48, s2, 7")
    e("s_lshl_b32 s48, s48, 5")
    e("s_lshr_b32 s49, s2, 3")
    e("s_add_u32 s48, s48, s49")
    e("v_lshrrev_b32 v24, 6, v0")
    e("v_and_b32 v25, 63, v0")
    e("v_readfirstlane_b32 s50, v24")
    e("v_lshlrev_b32 v25, 4, v25")
    e("s_load_dwordx4 s[4:7], s[0:1], 8")
    e("s_load_dwordx4 s[8:11], s[0:1], 24")
    e("s_load_dwordx2 s[12:13], s[0:1], 56")
    e(f"s_mul_i32 s3, s2, {CH*4}")
    e("v_lshlrev_b32 v1, 4, v0")
    e("v_add_u32 v1, s3, v1")
    e("v_lshrrev_b32 v2, 1, v1")
    e("v_and_b32 v3, 0xff, v0")
    e("v_lshlrev_b32 v3, 2, v3")
    e("v_mov_b32 v22, 0")
    e("v_mov_b32 v23, 1")
    e("ds_write_b32 v3, v22")
    e("s_waitcnt lgkmcnt(0)")
    stamp(0)
    srd(16, 4, 5, E * 4)
    srd(20, 6, 7, E * 4)
    srd(24, 8, 9, E * 2)
    srd(28, 12, 13, WS_USED)
    srd(32, 10, 11, 3 * 64 * 64 * 2)
    srd(52, 14, 15, N * 128)
    e("s_mov_b32 s40, 0xffff0000")
    e(f"v_cmp_gt_u32 vcc, {CH//4}, v0")
    e("s_and_saveexec_b64 s[36:37], vcc")
    e("s_mov_b64 s[38:39], exec")
    e("s_cbranch_execz P_SKIP1")
    e("buffer_load_dwordx4 v[4:7], v1, s[20:23], 0 offen")
    e("buffer_load_dwordx4 v[8:11], v1, s[16:19], 0 offen")
    e("buffer_load_dwordx2 v[12:13], v2, s[24:27], 0 offen")
    e("P_SKIP1:")
    e("s_mov_b64 exec, s[36:37]")
    e("s_cmp_ge_u32 s2, 48")
    e("s_cbranch_scc1 P_NOW")
    e("v_cmp_le_u32 vcc, 896, v0")
    e("s_and_saveexec_b64 s[36:37], vcc")
    e("s_cbranch_execz P_NOW2")
    e("s_lshr_b32 s41, s2, 1")
    e("s_and_b32 s42, s2, 1")
    e("s_lshl_b32 s42, s42, 7")
    e("v_subrev_u32 v30, 896, v0")
    e("v_add_u32 v30, s42, v30")
    e("s_lshr_b32 s43, s41, 3")
    e("s_bfe_u32 s44, s41, 0x10002")
    e("s_and_b32 s45, s41, 3")
    e("v_and_b32 v31, 3, v30")
    e("v_bfe_u32 v32, v30, 2, 4")
    e("v_lshrrev_b32 v33, 6, v30")
    e("v_lshrrev_b32 v34, 2, v32")
    e("v_lshlrev_b32 v34, 4, v34")
    e("v_and_b32 v35, 3, v32")
    e("v_add_u32 v34, v34, v35")
    e("s_lshl_b32 s46, s45, 2")
    e("v_add_u32 v34, s46, v34")
    e("v_lshlrev_b32 v36, 4, v33")
    e("v_lshl_add_u32 v36, v31, 1, v36")
    e("s_lshl_b32 s47, s44, 3")
    e("v_add_u32 v36, s47, v36")
    e("v_lshrrev_b32 v37, 1, v31")
    e("v_lshlrev_b32 v37, 4, v37")
    e("v_lshl_add_u32 v37, v33, 2, v37")
    e("v_and_b32 v35, 1, v31")
    e("v_lshl_add_u32 v37, v35, 1, v37")
    e("s_lshl_b32 s47, s44, 5")
    e("v_add_u32 v37, s47, v37")
    e("s_cmp_eq_u32 s43, 1")
    e("s_cselect_b64 vcc, -1, 0")
    e("s_nop 1")
    e("v_cndmask_b32 v36, v36, v37, vcc")
    e("v_lshlrev_b32 v36, 7, v36")
    e("v_lshl_add_u32 v36, v34, 1, v36")
    e("s_lshl_b32 s47, s43, 13")
    e("v_add_u32 v36, s47, v36")
    e("buffer_load_ushort v37, v36, s[32:35], 0 offen")
    e("buffer_load_ushort v38, v36, s[32:35], 0 offen offset:128")
    e("s_lshl_b32 s47, s41, 10")
    e(f"s_add_u32 s47, s47, {WS_WF}")
    e("v_lshlrev_b32 v39, 2, v30")
    e("v_add_u32 v39, s47, v39")
    e("s_waitcnt vmcnt(0)")
    e("v_lshl_or_b32 v37, v38, 16, v37")
    e("buffer_store_dword v37, v39, s[28:31], 0 offen")
    e("P_NOW2:")
    e("s_mov_b64 exec, s[36:37]")
    e("P_NOW:")
    e("s_barrier")
    e("s_mov_b64 exec, s[38:39]")
    e("s_cbranch_execz P_SKIP2")
    e("s_waitcnt vmcnt(2)")
    stamp(1)
    for i in range(4):
        e(f"v_lshrrev_b32 v{14+i}, 4, v{4+i}")
        e(f"v_mul_u32_u24 v{14+i}, 5369, v{14+i}")
        e(f"v_lshrrev_b32 v{14+i}, 16, v{14+i}")
        e(f"v_lshlrev_b32 v{14+i}, 2, v{14+i}")
        e(f"ds_add_rtn_u32 v{18+i}, v{14+i}, v23")
    e("P_SKIP2:")
    e("s_mov_b64 exec, -1")
    e("s_waitcnt lgkmcnt(0)")
    e("s_barrier")
    stamp(2)
    e("s_cmp_lt_u32 s50, 13")
    e("s_cbranch_scc1 P_CONT")
    prefetch(0, PF0, 52, 50, 25, 52, 56, nw=3, w0=13)
    e("s_barrier")
    e("s_barrier")
    e("s_endpgm")
    e("P_CONT:")
    e("v_cmp_gt_u32 vcc, 64, v0")
    e("s_and_saveexec_b64 s[36:37], vcc")
    e("s_cbranch_execz P_SKIP3")
    e("v_lshlrev_b32 v30, 4, v0")
    e("ds_read_b128 v[32:35], v30")
    e("s_waitcnt lgkmcnt(0)")
    e("v_add_u32 v36, v32, v33")
    e("v_add_u32 v37, v36, v34")
    e("v_add_u32 v38, v37, v35")
    e("v_mov_b32 v39, v38")
    wave_scan(39)
    e("v_sub_u32 v40, v39, v38")
    e("v_add_u32 v41, v40, v32")
    e("v_add_u32 v42, v40, v36")
    e("v_add_u32 v43, v40, v37")
    for i in range(4):
        e(f"v_lshl_or_b32 v{44+i}, v{32+i}, 16, v{40+i}")
        e(f"v_add_u32 v{48+i}, 128, v{40+i}")
    e("ds_write_b128 v30, v[48:51]")
    e("s_lshl_b32 s41, s48, 2")
    e(f"s_add_u32 s41, s41, {WS_TABLE}")
    e("v_lshlrev_b32 v31, 12, v0")
    e("v_add_u32 v31, s41, v31")
    for i in range(4):
        e(f"buffer_store_dword v{44+i}, v31, s[28:31], 0 offen offset:{i*1024}")
    e("P_SKIP3:")
    e("s_mov_b64 exec, -1")
    e("s_waitcnt lgkmcnt(0)")
    e("s_barrier")
    stamp(3)
    e("s_mov_b64 exec, s[38:39]")
    e("s_cbranch_execz P_SKIP4")
    for i in range(4):
        e(f"ds_read_b32 v{14+i}, v{14+i}")
    e("s_waitcnt vmcnt(4)")
    e("s_cmp_eq_u32 s50, 0")
    e("s_cbranch_scc1 P_W0")
    e("s_waitcnt vmcnt(0)")
    e("P_W0:")
    e("v_lshl_or_b32 v8, v12, 16, v8")
    e("v_and_or_b32 v9, v12, s40, v9")
    e("v_lshl_or_b32 v10, v13, 16, v10")
    e("v_and_or_b32 v11, v13, s40, v11")
    for i in range(4):
        e(f"s_waitcnt lgkmcnt({3-i})")
        e(f"v_add_lshl_u32 v{14+i}, v{14+i}, v{18+i}, 3")
    for i in range(4):
        e(f"ds_write2_b32 v{14+i}, v{8+i}, v{4+i} offset0:0 offset1:1")
    e("P_SKIP4:")
    e("s_mov_b64 exec, -1")
    e("s_waitcnt lgkmcnt(0)")
    e("s_barrier")
    stamp(4)
    e("v_lshlrev_b32 v30, 4, v0")
    e("ds_read_b128 v[32:35], v30 offset:1024")
    e(f"s_mul_i32 s41, s48, {CHB}")
    e("v_add_u32 v31, s41, v30")
    e(f"v_cmp_gt_u32 vcc, {CHB//16 - 832}, v0")
    e("s_and_saveexec_b64 s[36:37], vcc")
    e("s_cbranch_execz P_SKIP5")
    e(f"ds_read_b128 v[36:39], v30 offset:{1024+832*16}")
    e(f"v_add_u32 v40, {832*16}, v31")
    e("s_waitcnt lgkmcnt(0)")
    e("buffer_store_dwordx4 v[36:39], v40, s[28:31], 0 offen")
    e("P_SKIP5:")
    e("s_mov_b64 exec, -1")
    e("s_waitcnt lgkmcnt(0)")
    e("buffer_store_dwordx4 v[32:35], v31, s[28:31], 0 offen")
    if DIAG:
        e("s_waitcnt vmcnt(0)")
    stamp(5)
    stamp_store(0, 28, 6, 50)
    e("P_END:")
    e("s_endpgm")


ACC = 4
A = 20
BF = 36
E8 = 40
OH4 = 48
SRC4 = 52
GOFF = 56
LOFF = 60
TRA = 64
ASRC = 68
AEW = 69
AOH = 70
SHAMT = 71
T0 = 73
DESC = 80
EN = 84
POS = 100
XT = 108
T1T = 116
J16 = 124
GBASE = 125
ONE = 126
ZERO = 127
NV = 128
STB = 192

S_B, S_T0, S_NT, S_TAU = 28, 29, 30, 31
S_128, S_F, S_SB, S_LB = 32, 33, 34, 35
S_W32, S_U, S_CNT, S_REM, S_MAXC, S_MORE = 36, 37, 38, 39, 40, 41
S_TMP = 42
S_MASK = 48
S_X = 64
S_NWIN = 66
S_HDR = 67
S_PERM = 68
S_ROT = 69


def issue_gather(slot, src=None):
    src = SRC4 if src is None else src
    for i in range(4):
        e(f"s_add_u32 m0, s{S_SB}, {slot*4096 + i*1024}")
        e(f"v_mad_u32_u16 v{GOFF+i}, v{src+i}, s{S_128}, v{LOFF+i}")
        e(f"buffer_load_dwordx4 v{GOFF+i}, s[12:15], 0 offen lds")


def main_loop(p, barrier_after_issue=False):
    e(f"s_cmp_eq_u32 s{S_REM}, 0")
    e(f"s_cbranch_scc1 {p}_NOSTEP")
    if PRIO:
        e("s_setprio 3")
    e(f"ds_read_b128 v[{SRC4}:{SRC4+3}], v{ASRC}")
    e(f"ds_read_b128 v[{E8}:{E8+3}], v{ASRC} offset:{STB}")
    e("s_waitcnt lgkmcnt(1)")
    issue_gather(0)
    e(f"s_cmp_lt_u32 s{S_REM}, 2")
    e(f"s_cbranch_scc1 {p}_NOSTEP")
    e("s_waitcnt lgkmcnt(0)")
    issue_gather(1, E8)
    e(f"{p}_NOSTEP:")
    if barrier_after_issue:
        e("s_barrier")
    e(f"s_cmp_eq_u32 s{S_REM}, 0")
    e(f"s_cbranch_scc1 {p}_DONE")
    for P in range(2):
        e(f"{p}_LOOP{P}:")
        e(f"ds_read_b128 v[{E8}:{E8+3}], v{AEW}")
        e(f"ds_read_b128 v[{E8+4}:{E8+7}], v{AEW} offset:16")
        e(f"ds_read_b128 v[{OH4}:{OH4+3}], v{AOH}")
        e(f"ds_read_b128 v[{SRC4}:{SRC4+3}], v{ASRC} offset:{2*STB}")
        if PRIO:
            for th, pr in ((7, 2), (5, 1), (3, 0)):
                e(f"s_cmp_eq_u32 s{S_REM}, {th}")
                e(f"s_cbranch_scc0 {p}_PR{P}_{th}")
                e(f"s_setprio {pr}")
                e(f"{p}_PR{P}_{th}:")
        e(f"s_cmp_eq_u32 s{S_REM}, 1")
        e(f"s_cbranch_scc1 {p}_W0_{P}")
        e("s_waitcnt vmcnt(4)")
        e(f"s_branch {p}_W1_{P}")
        e(f"{p}_W0_{P}:")
        e("s_waitcnt vmcnt(0)")
        e(f"{p}_W1_{P}:")
        for t in range(4):
            for h in range(2):
                r = A + t * 4 + h * 2
                e(f"ds_read_b64_tr_b16 v[{r}:{r+1}], v{TRA+t} offset:{P*4096 + h*256}")
        e("s_waitcnt lgkmcnt(9)")
        for i in range(4):
            e(f"v_pk_lshlrev_b16 v{BF+i}, v{SHAMT}, v{OH4+i}")
            e(f"v_perm_b32 v{E8+2*i}, v{E8+2*i+1}, v{E8+2*i}, s{S_PERM}")
        for i in range(4):
            e(f"v_pk_ashrrev_i16 v{BF+i}, s{S_F}, v{BF+i}")
        for i in range(4):
            e(f"v_and_b32 v{BF+i}, v{BF+i}, v{E8+2*i}")
        e(f"v_add_u32 v{AEW}, {STB}, v{AEW}")
        e(f"v_add_u32 v{AOH}, {STB}, v{AOH}")
        e(f"v_add_u32 v{ASRC}, {STB}, v{ASRC}")
        e("s_waitcnt lgkmcnt(0)")
        e(f"s_cmp_lt_u32 s{S_REM}, 3")
        e(f"s_cbranch_scc1 {p}_NI_{P}")
        issue_gather(P)
        e(f"{p}_NI_{P}:")
        for t in range(4):
            a = A + t * 4
            c = ACC + t * 4
            e(f"v_mfma_f32_16x16x32_bf16 v[{c}:{c+3}], v[{a}:{a+3}], v[{BF}:{BF+3}], v[{c}:{c+3}]")
        e(f"s_sub_u32 s{S_REM}, s{S_REM}, 1")
        e(f"s_cmp_eq_u32 s{S_REM}, 0")
        e(f"s_cbranch_scc1 {p}_DONE")
        if P == 1:
            e(f"s_branch {p}_LOOP0")
    e(f"{p}_DONE:")
    if PRIO:
        e("s_setprio 0")


def set_list_ptrs():
    e(f"v_and_b32 v{T0}, 8, v1")
    e(f"v_lshlrev_b32 v{T0}, 2, v{T0}")
    e(f"v_and_b32 v{T0+1}, 16, v1")
    e(f"v_or_b32 v{T0}, v{T0}, v{T0+1}")
    e(f"v_and_b32 v{T0+1}, 32, v1")
    e(f"v_lshl_or_b32 v{T0}, v{T0+1}, 1, v{T0}")
    e(f"v_add_u32 v{ASRC}, s{S_LB}, v{T0}")
    e(f"v_and_b32 v{T0}, 48, v1")
    e(f"v_lshl_add_u32 v{AEW}, v{T0}, 1, s{S_LB}")
    e(f"v_add_u32 v{T0}, 128, v{T0}")
    e(f"v_add_u32 v{AOH}, s{S_LB}, v{T0}")


def generic_sort_and_loop(p, pf=0):
    e(f"s_lshl_b32 s{S_TMP}, s{S_B}, 10")
    e(f"s_add_u32 s{S_TMP}, s{S_TMP}, {WS_TABLE}")
    e(f"v_lshrrev_b32 v{T0}, 4, v0")
    e(f"v_lshlrev_b32 v{T0+1}, 4, v{T0}")
    e(f"v_add_u32 v{T0+1}, s{S_TMP}, v{T0+1}")
    e(f"buffer_load_dwordx4 v[{DESC}:{DESC+3}], v{T0+1}, s[16:19], 0 offen")
    e(f"v_and_b32 v{J16}, 15, v0")
    e(f"v_mul_u32_u24 v{GBASE}, {4*CHB}, v{T0}")
    e(f"v_lshl_add_u32 v{GBASE}, v{J16}, 3, v{GBASE}")
    e(f"v_and_b32 v{T0+1}, 7, v{T0}")
    e(f"v_cmp_ne_u32 vcc, 7, v{T0+1}")
    e(f"v_cmp_gt_u32 s[{S_X}:{S_X+1}], 16, v{T0}")
    e(f"s_or_b64 s[{S_X}:{S_X+1}], s[{S_X}:{S_X+1}], vcc")
    e(f"s_mov_b32 s{S_W32}, 0")
    e(f"s_mov_b32 s{S_NWIN}, 0")
    e("s_waitcnt vmcnt(0)")
    stamp(1)
    e(f"v_cndmask_b32 v{DESC+3}, 0, v{DESC+3}, s[{S_X}:{S_X+1}]")
    e(f"{p}_WIN:")
    e(f"v_lshlrev_b32 v{T0}, 2, v0")
    e("v_cmp_gt_u32 vcc, 130, v0")
    e(f"s_and_saveexec_b64 s[{S_X}:{S_X+1}], vcc")
    e(f"ds_write_b32 v{T0}, v{ZERO}")
    e(f"s_mov_b64 exec, s[{S_X}:{S_X+1}]")
    e(f"s_lshl_b32 s{S_TMP+1}, s{S_W32}, 3")
    e(f"v_add_u32 v{T0+3}, 16, v{J16}")
    e(f"v_mov_b32 v{T0+4}, 0x7f000000")
    e(f"v_mov_b32 v{T0+6}, 0")
    for r in range(4):
        m0 = S_MASK + 4 * r
        m1 = m0 + 2
        e(f"v_lshrrev_b32 v{T0}, 16, v{DESC+r}")
        e(f"v_subrev_u32 v{T0}, s{S_W32}, v{T0}")
        e(f"v_max_i32 v{T0+6}, v{T0+6}, v{T0}")
        e(f"v_cmp_gt_i32 s[{m0}:{m0+1}], v{T0}, v{J16}")
        e(f"v_cmp_gt_i32 s[{m1}:{m1+1}], v{T0}, v{T0+3}")
        e(f"v_and_b32 v{T0+1}, 0xffff, v{DESC+r}")
        e(f"v_lshl_add_u32 v{T0+1}, v{T0+1}, 3, v{GBASE}")
        e(f"s_add_u32 s{S_TMP}, s{S_TMP+1}, {r*CHB}")
        e(f"v_cndmask_b32 v{T0+2}, v{T0+4}, v{T0+1}, s[{m0}:{m0+1}]")
        e(f"v_cndmask_b32 v{T0+5}, v{T0+4}, v{T0+1}, s[{m1}:{m1+1}]")
        en0 = EN + 4 * r
        e(f"buffer_load_dwordx2 v[{en0}:{en0+1}], v{T0+2}, s[16:19], s{S_TMP} offen")
        e(f"buffer_load_dwordx2 v[{en0+2}:{en0+3}], v{T0+5}, s[16:19], s{S_TMP} offen offset:128")
    e("s_waitcnt lgkmcnt(0)")
    e("s_barrier")
    e(f"v_cmp_lt_i32 vcc, 32, v{T0+6}")
    e(f"s_and_saveexec_b64 s[{S_X}:{S_X+1}], vcc")
    e(f"v_mov_b32 v{T0}, {L_MORE}")
    e(f"ds_write_b32 v{T0}, v{ONE}")
    e(f"s_mov_b64 exec, s[{S_X}:{S_X+1}]")
    e(f"s_lshl_b32 s{S_TMP}, s{S_T0}, 5")
    e(f"s_sub_u32 s{S_TMP}, {L_BINS}, s{S_TMP}")
    for k in range(8):
        en = EN + 2 * k
        ba = A + k
        m = S_MASK + 2 * k
        e(f"s_waitcnt vmcnt({7-k})")
        e(f"v_and_b32 v{ba}, 0xfff0, v{en+1}")
        e(f"v_lshl_add_u32 v{ba}, v{ba}, 1, s{S_TMP}")
        e(f"v_mad_u32_u16 v{T0}, v{en}, 21, s{S_ROT}")
        e(f"v_bfe_u32 v{T0}, v{T0}, 17, 3")
        e(f"v_lshl_add_u32 v{ba}, v{T0}, 2, v{ba}")
        e(f"s_mov_b64 exec, s[{m}:{m+1}]")
        e(f"ds_add_rtn_u32 v{POS+k}, v{ba}, v{ONE}")
        e("s_mov_b64 exec, -1")
    e("s_waitcnt lgkmcnt(0)")
    e("s_barrier")
    if pf:
        e(f"v_lshlrev_b32 v{T0}, 4, v1")
        prefetch(PF0*96, pf, 12, S_TAU, T0, XT, S_TMP)
    stamp(2)
    e(f"s_mov_b32 s{S_CNT}, 0")
    e(f"s_cmp_ge_u32 s{S_TAU}, s{S_NT}")
    e(f"s_cbranch_scc1 {p}_NOSCAN")
    e(f"s_lshl_b32 s{S_TMP}, s{S_TAU}, 5")
    e(f"v_lshlrev_b32 v{T0}, 2, v1")
    e(f"v_add_u32 v{T0}, s{S_TMP}, v{T0}")
    e(f"v_mov_b32 v{T0+1}, 0")
    e("s_mov_b64 exec, 0xff")
    e(f"ds_read_b32 v{T0+1}, v{T0} offset:{L_BINS}")
    e("s_mov_b64 exec, -1")
    e("s_waitcnt lgkmcnt(0)")
    e(f"v_mov_b32 v{T0+2}, v{T0+1}")
    wave_scan(T0 + 2, full=False)
    e(f"v_sub_u32 v{T0+3}, v{T0+2}, v{T0+1}")
    e(f"v_readlane_b32 s{S_CNT}, v{T0+2}, 7")
    e("s_mov_b64 exec, 0xff")
    e(f"ds_write_b32 v{T0}, v{T0+3} offset:{L_BINS}")
    e("s_mov_b64 exec, 1")
    e(f"v_mov_b32 v{T0}, {L_MAXC}")
    e(f"v_mov_b32 v{T0+1}, s{S_CNT}")
    e(f"ds_max_u32 v{T0}, v{T0+1}")
    e("s_mov_b64 exec, -1")
    e(f"{p}_NOSCAN:")
    e("s_waitcnt lgkmcnt(0)")
    e("s_barrier")
    stamp(3)
    e(f"v_mov_b32 v{T0}, {L_MAXC}")
    e(f"ds_read_b64 v[{T0+1}:{T0+2}], v{T0}")
    for k in range(8):
        m = S_MASK + 2 * k
        e(f"s_mov_b64 exec, s[{m}:{m+1}]")
        e(f"ds_read_b32 v{A+k}, v{A+k}")
    e("s_mov_b64 exec, -1")
    e("s_waitcnt lgkmcnt(0)")
    e(f"v_readfirstlane_b32 s{S_MAXC}, v{T0+1}")
    e(f"v_readfirstlane_b32 s{S_MORE}, v{T0+2}")
    for k in range(8):
        e(f"v_add_u32 v{POS+k}, v{POS+k}, v{A+k}")
    e(f"s_mov_b32 s{S_U}, 0")
    e(f"{p}_SUB:")
    e(f"s_mul_i32 s{S_TMP}, s{S_T0}, {TLB}")
    e(f"s_sub_u32 s{S_TMP}, 0, s{S_TMP}")
    e(f"s_mov_b32 s{S_TMP+2}, {TLB}")
    e(f"s_movk_i32 s{S_TMP+3}, {STB}")
    e(f"v_mov_b32 v{T0+5}, s{S_TMP}")
    for k in range(8):
        en = EN + 2 * k
        m = S_MASK + 2 * k
        e(f"v_subrev_u32 v{T0}, s{S_U}, v{POS+k}")
        e(f"v_cmp_gt_u32 vcc, {TCAP}, v{T0}")
        e(f"v_lshrrev_b32 v{T0+1}, 4, v{en+1}")
        e(f"v_mad_u32_u24 v{T0+1}, v{T0+1}, s{S_TMP+2}, v{T0+5}")
        e(f"v_lshrrev_b32 v{T0+2}, 5, v{T0}")
        e(f"v_mad_u32_u24 v{T0+1}, v{T0+2}, s{S_TMP+3}, v{T0+1}")
        e(f"v_and_b32 v{T0}, 31, v{T0}")
        e(f"v_lshl_add_u32 v{T0+2}, v{T0}, 2, v{T0+1}")
        e(f"v_lshl_add_u32 v{T0+3}, v{T0}, 1, v{T0+1}")
        e(f"v_and_b32 v{T0+1}, 15, v{en+1}")
        e(f"v_lshlrev_b32 v{T0+1}, v{T0+1}, v{ONE}")
        e(f"s_and_b64 exec, vcc, s[{m}:{m+1}]")
        e(f"ds_write_b32 v{T0+2}, v{en} offset:{L_LISTS}")
        e(f"ds_write_b16 v{T0+3}, v{T0+1} offset:{L_LISTS + 128}")
        e("s_mov_b64 exec, -1")
    e(f"s_sub_i32 s{S_TMP}, s{S_CNT}, s{S_U}")
    e(f"s_max_i32 s{S_TMP}, s{S_TMP}, 0")
    e(f"s_min_i32 s{S_TMP}, s{S_TMP}, {TCAP}")
    e(f"s_add_u32 s{S_REM}, s{S_TMP}, 31")
    e(f"s_lshr_b32 s{S_REM}, s{S_REM}, 5")
    e(f"s_lshl_b32 s{S_TMP+1}, s{S_REM}, 5")
    e(f"v_add_u32 v{T0}, s{S_TMP}, v1")
    e(f"v_cmp_gt_u32 vcc, s{S_TMP+1}, v{T0}")
    e(f"s_mul_i32 s{S_TMP+1}, s{S_REM}, {STB}")
    e(f"s_add_u32 s{S_TMP+1}, s{S_TMP+1}, s{S_LB}")
    e(f"s_sub_u32 s{S_TMP+1}, s{S_TMP+1}, {STB}")
    e(f"v_and_b32 v{T0}, 31, v{T0}")
    e(f"v_lshl_add_u32 v{T0+1}, v{T0}, 2, s{S_TMP+1}")
    e(f"v_lshl_add_u32 v{T0+2}, v{T0}, 1, s{S_TMP+1}")
    e(f"v_mov_b32 v{T0+3}, 0xffff")
    e("s_mov_b64 exec, vcc")
    e(f"ds_write_b32 v{T0+1}, v{T0+3}")
    e(f"ds_write_b16 v{T0+2}, v{ZERO} offset:128")
    e("s_mov_b64 exec, -1")
    e(f"s_mov_b32 s{S_HDR}, s{S_REM}")
    set_list_ptrs()
    e("s_waitcnt lgkmcnt(0)")
    e("s_barrier")
    stamp(4)
    main_loop(p + "G")
    stamp(5)
    e(f"s_add_u32 s{S_NWIN}, s{S_NWIN}, 1")
    e(f"s_add_u32 s{S_U}, s{S_U}, {TCAP}")
    e(f"s_cmp_lt_u32 s{S_U}, s{S_MAXC}")
    e(f"s_cbranch_scc0 {p}_SUBDONE")
    e("s_barrier")
    e(f"s_branch {p}_SUB")
    e(f"{p}_SUBDONE:")
    e(f"s_cmp_eq_u32 s{S_MORE}, 0")
    e(f"s_cbranch_scc1 {p}_WINDONE")
    e(f"s_add_u32 s{S_W32}, s{S_W32}, 32")
    e("s_barrier")
    e(f"s_branch {p}_WIN")
    e(f"{p}_WINDONE:")


def spmm_common_setup(p, second):
    e(f"s_cmp_ge_u32 s2, {NB}")
    e(f"s_cbranch_scc1 {p}_END")
    e("s_load_dwordx2 s[4:5], s[0:1], 0")
    e("s_load_dwordx2 s[6:7], s[0:1], 56")
    if second:
        e("s_load_dwordx2 s[8:9], s[0:1], 40")
    e(f"s_and_b32 s{S_B}, s2, 7")
    e(f"s_lshl_b32 s{S_B}, s{S_B}, 5")
    e(f"s_lshr_b32 s{S_TMP}, s2, 3")
    e(f"s_add_u32 s{S_B}, s{S_B}, s{S_TMP}")
    e(f"s_mul_i32 s{S_T0}, s{S_B}, 99995")
    e(f"s_add_u32 s{S_T0}, s{S_T0}, 8160")
    e(f"s_add_u32 s{S_NT}, s{S_T0}, 99995")
    e(f"s_lshr_b32 s{S_T0}, s{S_T0}, 13")
    e(f"s_lshr_b32 s{S_NT}, s{S_NT}, 13")
    e(f"s_sub_u32 s{S_NT}, s{S_NT}, s{S_T0}")
    e("v_and_b32 v1, 63, v0")
    e(f"v_lshrrev_b32 v{T0}, 6, v0")
    e("s_nop 0")
    e(f"v_readfirstlane_b32 s{S_TAU}, v{T0}")
    e(f"s_movk_i32 s{S_128}, 128")
    e(f"s_mov_b32 s{S_F}, 0x000f000f")
    e(f"s_mov_b32 s{S_PERM}, 0x07060302")
    if ROT == 2:
        e(f"s_getreg_b32 s{S_ROT}, hwreg(HW_REG_XCC_ID)")
        e(f"s_and_b32 s{S_ROT}, s{S_ROT}, 7")
        e(f"s_lshl_b32 s{S_ROT}, s{S_ROT}, 17")
        e(f"s_sub_u32 s{S_ROT}, 0, s{S_ROT}")
    elif ROT == 3:
        e(f"s_lshr_b32 s{S_ROT}, s2, 3")
        e(f"s_and_b32 s{S_ROT}, s{S_ROT}, 7")
        e(f"s_lshl_b32 s{S_ROT}, s{S_ROT}, 17")
        e(f"s_sub_u32 s{S_ROT}, 0, s{S_ROT}")
    elif ROT:
        e(f"s_and_b32 s{S_ROT}, s2, 7")
        e(f"s_lshl_b32 s{S_ROT}, s{S_ROT}, 17")
        e(f"s_sub_u32 s{S_ROT}, 0, s{S_ROT}")
    else:
        e(f"s_mov_b32 s{S_ROT}, 0")
    e(f"v_mov_b32 v{ONE}, 1")
    e(f"v_mov_b32 v{ZERO}, 0")
    e(f"s_min_u32 s{S_TMP}, s{S_TAU}, 12")
    e(f"s_lshl_b32 s{S_SB}, s{S_TMP}, 13")
    e(f"s_add_u32 s{S_SB}, s{S_SB}, {L_STAGE}")
    e(f"s_mul_i32 s{S_LB}, s{S_TMP}, {TLB}")
    e(f"s_add_u32 s{S_LB}, s{S_LB}, {L_LISTS}")
    e(f"v_and_b32 v{T0}, 7, v1")
    for i in range(4):
        e(f"v_xor_b32 v{LOFF+i}, {2*i}, v{T0}")
        e(f"v_lshlrev_b32 v{LOFF+i}, 4, v{LOFF+i}")
    e(f"v_bfe_u32 v{T0}, v1, 2, 2")
    e(f"v_lshlrev_b32 v{T0+1}, 10, v{T0}")
    e(f"v_and_b32 v{T0+2}, 16, v1")
    e(f"v_lshl_add_u32 v{T0+1}, v{T0+2}, 3, v{T0+1}")
    e(f"v_and_b32 v{T0+2}, 32, v1")
    e(f"v_lshl_add_u32 v{T0+1}, v{T0+2}, 4, v{T0+1}")
    e(f"v_and_b32 v{T0+2}, 3, v1")
    e(f"v_lshl_add_u32 v{T0+1}, v{T0+2}, 3, v{T0+1}")
    e(f"v_add_u32 v{T0+1}, s{S_SB}, v{T0+1}")
    for t in range(4):
        e(f"v_xor_b32 v{T0+2}, {t}, v{T0}")
        e(f"v_lshl_add_u32 v{TRA+t}, v{T0+2}, 5, v{T0+1}")
    e(f"v_and_b32 v{T0}, 15, v1")
    e(f"v_sub_u32 v{T0}, 15, v{T0}")
    e(f"v_lshl_or_b32 v{SHAMT}, v{T0}, 16, v{T0}")
    for i in range(16):
        e(f"v_mov_b32 v{ACC+i}, 0")
    e("s_waitcnt lgkmcnt(0)")
    stamp(0)
    srd(16, 6, 7, WS_USED)
    if not second:
        srd(12, 4, 5, N * 128)
    else:
        srd_off(12, 6, 7, WS_T1P, N * 128)
        srd(20, 4, 5, N * 128)
        srd(24, 8, 9, N * 128)


def tile_row_off(vdst):
    e(f"s_add_u32 s{S_TMP}, s{S_T0}, s{S_TAU}")
    e(f"s_lshl_b32 s{S_TMP}, s{S_TMP}, 11")
    e(f"v_and_b32 v{vdst}, 15, v1")
    e(f"v_lshlrev_b32 v{vdst}, 7, v{vdst}")
    e(f"v_and_b32 v{T0+6}, 48, v1")
    e(f"v_lshl_add_u32 v{vdst}, v{T0+6}, 1, v{vdst}")
    e(f"v_add_u32 v{vdst}, s{S_TMP}, v{vdst}")


def gen_spmm1():
    p = "A"
    kernel_header("cheb_spmm1_kernel")
    spmm_common_setup(p, False)
    generic_sort_and_loop(p, PF1)
    e(f"s_cmp_ge_u32 s{S_TAU}, s{S_NT}")
    e(f"s_cbranch_scc1 {p}_END")
    tile_row_off(T0)
    e(f"v_add_u32 v{T0}, {WS_T1P}, v{T0}")
    e("s_nop 7")
    for t in range(4):
        e(f"v_cvt_pk_bf16_f32 v{A+2*t}, v{ACC+4*t}, v{ACC+4*t+1}")
        e(f"v_cvt_pk_bf16_f32 v{A+2*t+1}, v{ACC+4*t+2}, v{ACC+4*t+3}")
    e(f"buffer_store_dwordx4 v[{A}:{A+3}], v{T0}, s[16:19], 0 offen")
    e(f"buffer_store_dwordx4 v[{A+4}:{A+7}], v{T0}, s[16:19], 0 offen offset:16")
    e(f"v_lshlrev_b32 v{T0+1}, 4, v1")
    e(f"v_add_u32 v{T0+2}, s{S_LB}, v{T0+1}")
    e(f"ds_read_b128 v[{EN}:{EN+3}], v{T0+2}")
    e(f"ds_read_b128 v[{EN+4}:{EN+7}], v{T0+2} offset:1024")
    e(f"ds_read_b128 v[{EN+8}:{EN+11}], v{T0+2} offset:2048")
    e(f"s_add_u32 s{S_TMP}, s{S_T0}, s{S_TAU}")
    e(f"s_mul_i32 s{S_TMP+1}, s{S_TMP}, {TLB}")
    e(f"s_add_u32 s{S_TMP+1}, s{S_TMP+1}, {WS_LISTS}")
    e(f"v_add_u32 v{T0+1}, s{S_TMP+1}, v{T0+1}")
    e(f"s_mul_i32 s{S_TMP+2}, s{S_HDR}, {STB}")
    e(f"s_cmp_eq_u32 s{S_NWIN}, 1")
    e(f"s_cselect_b32 s{S_HDR}, s{S_HDR}, -1")
    e(f"s_lshl_b32 s{S_TMP}, s{S_TMP}, 2")
    e(f"s_add_u32 s{S_TMP}, s{S_TMP}, {WS_HDR}")
    e(f"v_mov_b32 v{T0+3}, s{S_TMP}")
    e(f"v_mov_b32 v{T0+4}, s{S_HDR}")
    e(f"v_lshlrev_b32 v{T0+5}, 4, v1")
    e("s_waitcnt lgkmcnt(0)")
    for i in range(3):
        e(f"s_sub_i32 s{S_TMP+1}, s{S_TMP+2}, {i*1024}")
        e(f"v_cmp_gt_i32 vcc, s{S_TMP+1}, v{T0+5}")
        e("s_mov_b64 exec, vcc")
        e(f"s_cbranch_execz {p}_LC_DONE")
        e(f"buffer_store_dwordx4 v[{EN+4*i}:{EN+4*i+3}], v{T0+1}, s[16:19], 0 offen offset:{i*1024}")
    e(f"{p}_LC_DONE:")
    e("s_mov_b64 exec, 1")
    e(f"buffer_store_dword v{T0+4}, v{T0+3}, s[16:19], 0 offen")
    if DIAG:
        e("s_waitcnt vmcnt(0)")
    stamp(6)
    stamp_store(1, 16, 7, T0)
    e(f"{p}_END:")
    e("s_endpgm")


def gen_spmm2():
    p = "B"
    kernel_header("cheb_spmm2_kernel")
    spmm_common_setup(p, True)
    e(f"s_sub_u32 s{S_TMP}, s{S_NT}, 1")
    e(f"s_min_u32 s{S_TMP}, s{S_TMP}, s{S_TAU}")
    e(f"s_add_u32 s{S_TMP}, s{S_TMP}, s{S_T0}")
    e(f"s_lshl_b32 s{S_TMP+1}, s{S_TMP}, 2")
    e(f"s_add_u32 s{S_TMP+1}, s{S_TMP+1}, {WS_HDR}")
    e(f"s_load_dword s{S_HDR}, s[6:7], s{S_TMP+1}")
    e(f"v_lshlrev_b32 v{T0+1}, 4, v1")
    e(f"v_mov_b32 v{POS}, v{T0+1}")
    e(f"s_cmp_ge_u32 s{S_TAU}, 13")
    e(f"s_cbranch_scc1 {p}_HELP")
    e(f"s_cmp_ge_u32 s{S_TAU}, s{S_NT}")
    e(f"s_cbranch_scc1 {p}_PRE")
    e(f"s_mul_i32 s{S_TMP+1}, s{S_TMP}, {TLB}")
    e(f"s_add_u32 s{S_TMP+1}, s{S_TMP+1}, {WS_LISTS}")
    e(f"s_mov_b32 m0, s{S_LB}")
    e(f"v_add_u32 v{T0+2}, s{S_TMP+1}, v{T0+1}")
    e(f"buffer_load_dwordx4 v{T0+2}, s[16:19], 0 offen lds")
    e(f"v_mov_b32 v{POS}, v{T0+2}")
    tile_row_off(T0)
    e(f"buffer_load_dwordx4 v[{XT}:{XT+3}], v{T0}, s[20:23], 0 offen")
    e(f"buffer_load_dwordx4 v[{XT+4}:{XT+7}], v{T0}, s[20:23], 0 offen offset:16")
    e(f"buffer_load_dwordx4 v[{T1T}:{T1T+3}], v{T0}, s[12:15], 0 offen")
    e(f"buffer_load_dwordx4 v[{T1T+4}:{T1T+7}], v{T0}, s[12:15], 0 offen offset:16")
    e(f"s_branch {p}_PRE")
    e(f"{p}_HELP:")
    e(f"s_sub_u32 s{S_TMP}, s{S_TAU}, 13")
    e(f"s_lshl_b32 s{S_TMP}, s{S_TMP}, 13")
    e(f"s_add_u32 s{S_TMP+1}, s{S_TMP}, {WS_WF}")
    e(f"v_add_u32 v{T0+2}, s{S_TMP+1}, v{T0+1}")
    e(f"v_add_u32 v{T0+3}, 0x1000, v{T0+2}")
    e(f"s_add_u32 m0, s{S_TMP}, {L_WF}")
    e("s_nop 0")
    for i in range(4):
        e(f"buffer_load_dwordx4 v{T0+2}, s[16:19], 0 offen offset:{i*1024} lds")
    e(f"s_add_u32 m0, s{S_TMP}, {L_WF + 4096}")
    e("s_nop 0")
    for i in range(4):
        e(f"buffer_load_dwordx4 v{T0+3}, s[16:19], 0 offen offset:{i*1024} lds")
    e("s_waitcnt vmcnt(0)")
    e(f"{p}_PRE:")
    e("s_waitcnt lgkmcnt(0)")
    e(f"s_cmp_eq_u32 s{S_HDR}, -1")
    e(f"s_cbranch_scc1 {p}_SLOW")
    e(f"s_cmp_lt_u32 s{S_TAU}, s{S_NT}")
    e(f"s_cbranch_scc1 {p}_FAST")
    e("s_barrier")
    e(f"s_branch {p}_END")
    e(f"{p}_FAST:")
    e(f"s_mov_b32 s{S_REM}, s{S_HDR}")
    e(f"s_mul_i32 s{S_TMP+2}, s{S_HDR}, {STB}")
    e(f"v_lshlrev_b32 v{T0+5}, 4, v1")
    e(f"s_mov_b32 m0, s{S_LB}")
    set_list_ptrs()
    stamp(1)
    e("s_waitcnt vmcnt(4)")
    stamp(2)
    for i in (1, 2):
        e(f"s_sub_i32 s{S_TMP+1}, s{S_TMP+2}, {i*1024}")
        e(f"v_cmp_gt_i32 vcc, s{S_TMP+1}, v{T0+5}")
        e("s_mov_b64 exec, vcc")
        e(f"s_cbranch_execz {p}_LL_DONE")
        e(f"buffer_load_dwordx4 v{POS}, s[16:19], 0 offen offset:{i*1024} lds")
    e(f"{p}_LL_DONE:")
    e("s_mov_b64 exec, -1")
    main_loop(p + "F", barrier_after_issue=True)
    stamp(3)
    e(f"s_branch {p}_EPI")
    e(f"{p}_SLOW:")
    e("s_waitcnt vmcnt(0)")
    generic_sort_and_loop(p)
    e(f"s_cmp_ge_u32 s{S_TAU}, s{S_NT}")
    e(f"s_cbranch_scc1 {p}_END")
    e(f"{p}_EPI:")
    e("s_waitcnt vmcnt(0)")
    e(f"v_lshlrev_b32 v{T0+1}, 4, v1")
    e(f"v_add_u32 v{T0+1}, {L_WF}, v{T0+1}")
    e(f"s_mov_b32 s{S_TMP+2}, 0xffff0000")
    e("s_nop 7")
    T2 = EN
    TMPA = EN + 8
    for i in range(8):
        a = ACC + 2 * i
        e(f"v_cvt_pk_bf16_f32 v{TMPA}, v{a}, v{a+1}")
        e(f"v_lshlrev_b32 v{TMPA+1}, 16, v{XT+i}")
        e(f"v_and_b32 v{TMPA+2}, s{S_TMP+2}, v{XT+i}")
        e(f"v_lshlrev_b32 v{TMPA+3}, 16, v{TMPA}")
        e(f"v_and_b32 v{TMPA+4}, s{S_TMP+2}, v{TMPA}")
        e(f"v_fma_f32 v{TMPA+3}, 2.0, v{TMPA+3}, -v{TMPA+1}")
        e(f"v_fma_f32 v{TMPA+4}, 2.0, v{TMPA+4}, -v{TMPA+2}")
        e(f"v_cvt_pk_bf16_f32 v{T2+i}, v{TMPA+3}, v{TMPA+4}")
    Bsrc = {0: XT, 1: T1T, 2: T2}
    WB = [A, BF]
    steps = [(k, s) for k in range(3) for s in range(2)]

    def ldw(idx):
        k, s = steps[idx]
        wb = WB[idx & 1]
        for t in range(4):
            f = k * 8 + s * 4 + t
            e(f"ds_read_b128 v[{wb+4*t}:{wb+4*t+3}], v{T0+1} offset:{f*1024}")
    ldw(0)
    for idx in range(6):
        if idx + 1 < 6:
            ldw(idx + 1)
            e("s_waitcnt lgkmcnt(4)")
        else:
            e("s_waitcnt lgkmcnt(0)")
        k, s = steps[idx]
        wb = WB[idx & 1]
        b = Bsrc[k] + 4 * s
        for t in range(4):
            c = ACC + 4 * t
            src_c = "0" if idx == 0 else f"v[{c}:{c+3}]"
            e(f"v_mfma_f32_16x16x32_bf16 v[{c}:{c+3}], v[{wb+4*t}:{wb+4*t+3}], v[{b}:{b+3}], {src_c}")
    tile_row_off(T0)
    e("s_nop 7")
    e("s_nop 3")
    for t in range(4):
        e(f"v_cvt_pk_bf16_f32 v{A+2*t}, v{ACC+4*t}, v{ACC+4*t+1}")
        e(f"v_cvt_pk_bf16_f32 v{A+2*t+1}, v{ACC+4*t+2}, v{ACC+4*t+3}")
    e(f"buffer_store_dwordx4 v[{A}:{A+3}], v{T0}, s[24:27], 0 offen")
    e(f"buffer_store_dwordx4 v[{A+4}:{A+7}], v{T0}, s[24:27], 0 offen offset:16")
    stamp(4)
    if DIAG:
        e("s_waitcnt vmcnt(0)")
    stamp(5)
    stamp_store(2, 16, 6, T0)
    e(f"{p}_END:")
    e("s_endpgm")


HEADER = """; Kernarg layout for this problem (64 bytes, ptrs only, base s[0:1]):
"""


def main():
    out.append(HEADER.rstrip())
    out.append(f"; @launch kernel=cheb_part_kernel grid=({NCH},1,1) block=(1024,1,1) lds={1024+CHB}")
    out.append(f"; @launch kernel=cheb_spmm1_kernel grid=({NB},1,1) block=(1024,1,1) lds={L_TOTAL}")
    out.append(f"; @launch kernel=cheb_spmm2_kernel grid=({NB},1,1) block=(1024,1,1) lds={L_TOTAL}")
    out.append('.amdgcn_target "amdgcn-amd-amdhsa--gfx950"')
    gen_part()
    gen_spmm1()
    gen_spmm2()
    kernel_desc("cheb_part_kernel", 56, 100 if DIAG else 64)
    kernel_desc("cheb_spmm1_kernel", NV, 100 if DIAG else 80)
    kernel_desc("cheb_spmm2_kernel", NV, 100 if DIAG else 80)
    path = sys.argv[1] if len(sys.argv) > 1 else "standalone__spectral_conv_chebnet__graph.s"
    open(path, "w").write("\n".join(out) + "\n")


if __name__ == "__main__":
    main()
```

```python
import os
import sys

N = 50000
E = 800000
NCH = 250
CH = 3200
CHB = CH * 8
NB = 256
TCAP = 384
STB = 192
TLB = TCAP // 32 * STB

WS_ENT = 0
WS_TABLE = 0x680000
WS_T1P = 0x700000
WS_WF = 0xE00000
WS_USED = 0xE10000

L_BINS = 0
L_MAXC = 512
L_MORE = 516
L_LISTS = 1024
L_WF = L_LISTS + 13 * TLB
L_STAGE = L_WF + 24576
L_TOTAL = L_STAGE + 13 * 8192
assert L_STAGE % 256 == 0 and L_TOTAL <= 163840

DIAG = bool(os.environ.get("DIAG"))
PFA = int(os.environ.get("PFA", "0"))
PFB = int(os.environ.get("PFB", "0"))
PRIO = int(os.environ.get("PRIO", "1"))
WS_DIAG = 0x1600000
if DIAG:
    WS_USED = 0x1800000

out = []


def e(s=""):
    out.append("    " + s if s and not s.endswith(":") else s)


S_ST = 76


def stamp(i):
    if DIAG:
        e("s_waitcnt lgkmcnt(0)")
        e(f"s_memrealtime s[{S_ST+2*i}:{S_ST+2*i+1}]")
        e("s_waitcnt lgkmcnt(0)")


def srd(d, plo, phi, size):
    e(f"s_mov_b32 s{d}, s{plo}")
    e(f"s_and_b32 s{d+1}, s{phi}, 0xffff")
    e(f"s_mov_b32 s{d+2}, {size}")
    e(f"s_mov_b32 s{d+3}, 0x00020000")


def srd_off(d, plo, phi, off, size):
    e(f"s_add_u32 s{d}, s{plo}, {off}")
    e(f"s_addc_u32 s{d+1}, s{phi}, 0")
    e(f"s_and_b32 s{d+1}, s{d+1}, 0xffff")
    e(f"s_mov_b32 s{d+2}, {size}")
    e(f"s_mov_b32 s{d+3}, 0x00020000")


def wave_scan(v, full=True):
    shifts = [1, 2, 4, 8] if full else [1, 2, 4]
    for sh in shifts:
        e("s_nop 1")
        e(f"v_add_u32_dpp v{v}, v{v}, v{v} row_shr:{sh} row_mask:0xf bank_mask:0xf bound_ctrl:0")
    if full:
        e("s_nop 1")
        e(f"v_add_u32_dpp v{v}, v{v}, v{v} row_bcast:15 row_mask:0xa bank_mask:0xf")
        e("s_nop 1")
        e(f"v_add_u32_dpp v{v}, v{v}, v{v} row_bcast:31 row_mask:0xc bank_mask:0xf")
    e("s_nop 1")


ACC = 4
A = 20
BF = 36
E8 = 40
OH4 = 48
SRC4 = 52
GOFF = 56
LOFF = 60
TRA = 64
ASRC = 68
AEW = 69
AOH = 70
SHAMT = 71
L16 = 72
T0 = 73
DESC = 80
EN = 84
POS = 100
XT = 108
T1T = 116
J16 = 124
GBASE = 125
ONE = 126
ZERO = 127
NV = 128

S_B, S_T0, S_NT, S_TAU = 28, 29, 30, 31
S_128, S_F, S_SB, S_LB = 32, 33, 34, 35
S_W32, S_U, S_CNT, S_REM, S_MAXC, S_MORE = 36, 37, 38, 39, 40, 41
S_TMP = 42
S_MASK = 48
S_X = 64
S_NWIN = 66
S_HDR = 67
S_PERM = 68
S_ROT = 69
S_PASS = 70
S_SPIN = 71
NS = 100 if DIAG else 76


def prefetch(firstkb, count, srdx, vdummy, st):
    if count == 0:
        return
    e(f"s_lshr_b32 s{st}, s2, 3")
    e(f"s_lshl_b32 s{st}, s{st}, 4")
    e(f"s_add_u32 s{st}, s{st}, s{S_TAU}")
    e(f"s_lshl_b32 s{st}, s{st}, 10")
    for k in range(count):
        e(f"s_add_u32 s{st+1}, s{st}, {(firstkb + 512*k) * 1024}")
        e(f"buffer_load_dwordx4 v[{vdummy}:{vdummy+3}], v{L16}, s[{srdx}:{srdx+3}], s{st+1} offen")


def grid_barrier(k, between=None):
    e("s_waitcnt vmcnt(0) lgkmcnt(0)")
    e("s_barrier")
    e(f"s_cmp_eq_u32 s{S_TAU}, 15")
    e(f"s_cbranch_scc1 GB{k}_POLL")
    if between:
        between()
    e(f"s_branch GB{k}_JOIN")
    e(f"GB{k}_POLL:")
    e("s_mov_b64 exec, 1")
    e(f"s_and_b32 s{S_TMP}, s2, 1")
    e(f"s_lshl_b32 s{S_TMP}, s{S_TMP}, 6")
    e(f"s_add_u32 s{S_TMP}, s{S_TMP}, {k*16}")
    e(f"v_mov_b32 v{T0}, s{S_TMP}")
    e(f"v_mov_b32 v{T0+1}, {128 + k*16}")
    e(f"global_atomic_add v{T0+2}, v{T0}, v{ONE}, s[10:11] sc0 sc1")
    e("s_waitcnt vmcnt(0)")
    e(f"v_readfirstlane_b32 s{S_TMP}, v{T0+2}")
    e(f"s_cmp_eq_u32 s{S_TMP}, {NB//2 - 1}")
    e(f"s_cbranch_scc0 GB{k}_SPIN0")
    e(f"global_atomic_add v{T0+1}, v{ONE}, s[10:11] sc1")
    e(f"GB{k}_SPIN0:")
    e(f"s_mov_b32 s{S_SPIN}, 0")
    e(f"GB{k}_SPIN:")
    e(f"global_load_dword v{T0+2}, v{T0+1}, s[10:11] sc1")
    e("s_waitcnt vmcnt(0)")
    e(f"v_readfirstlane_b32 s{S_TMP}, v{T0+2}")
    e(f"s_cmp_ge_u32 s{S_TMP}, 2")
    e(f"s_cbranch_scc1 GB{k}_DONE")
    e(f"s_add_u32 s{S_SPIN}, s{S_SPIN}, 1")
    e(f"s_cmp_ge_u32 s{S_SPIN}, 0x400000")
    e(f"s_cbranch_scc1 GB{k}_DONE")
    e("s_sleep 2")
    e(f"s_branch GB{k}_SPIN")
    e(f"GB{k}_DONE:")
    e("s_mov_b64 exec, -1")
    e(f"GB{k}_JOIN:")
    e("s_barrier")


def phase0():
    e("s_load_dwordx4 s[52:55], s[0:1], 8")
    e("s_load_dwordx4 s[56:59], s[0:1], 24")
    e(f"s_mul_i32 s3, s2, {CH*4}")
    e("v_lshlrev_b32 v2, 4, v0")
    e("v_add_u32 v2, s3, v2")
    e("v_lshrrev_b32 v3, 1, v2")
    e("v_and_b32 v24, 0xff, v0")
    e("v_lshlrev_b32 v24, 2, v24")
    e(f"ds_write_b32 v24, v{ZERO}")
    e("s_waitcnt lgkmcnt(0)")
    stamp(0)
    srd(16, 6, 7, WS_USED)
    srd(20, 4, 5, N * 128)
    srd(36, 52, 53, E * 4)
    srd(40, 54, 55, E * 4)
    srd(44, 56, 57, E * 2)
    srd(48, 58, 59, 3 * 64 * 64 * 2)
    e(f"s_cmp_ge_u32 s2, {NCH}")
    e("s_cbranch_scc1 P_END")
    e("s_mov_b32 s60, 0xffff0000")
    e(f"v_cmp_gt_u32 vcc, {CH//4}, v0")
    e("s_and_saveexec_b64 s[64:65], vcc")
    e("s_mov_b64 s[62:63], exec")
    e("s_cbranch_execz P_SKIP1")
    e("buffer_load_dwordx4 v[4:7], v2, s[40:43], 0 offen")
    e("buffer_load_dwordx4 v[8:11], v2, s[36:39], 0 offen")
    e("buffer_load_dwordx2 v[12:13], v3, s[44:47], 0 offen")
    e("P_SKIP1:")
    e("s_mov_b64 exec, -1")
    e("s_cmp_ge_u32 s2, 48")
    e("s_cbranch_scc1 P_NOW")
    e(f"s_cmp_lt_u32 s{S_TAU}, 14")
    e("s_cbranch_scc1 P_NOW")
    e("s_lshr_b32 s52, s2, 1")
    e("s_and_b32 s53, s2, 1")
    e("s_lshl_b32 s53, s53, 7")
    e("v_subrev_u32 v30, 896, v0")
    e("v_add_u32 v30, s53, v30")
    e("s_lshr_b32 s54, s52, 3")
    e("s_bfe_u32 s55, s52, 0x10002")
    e("s_and_b32 s56, s52, 3")
    e("v_and_b32 v31, 3, v30")
    e("v_bfe_u32 v32, v30, 2, 4")
    e("v_lshrrev_b32 v33, 6, v30")
    e("v_lshrrev_b32 v34, 2, v32")
    e("v_lshlrev_b32 v34, 4, v34")
    e("v_and_b32 v35, 3, v32")
    e("v_add_u32 v34, v34, v35")
    e("s_lshl_b32 s57, s56, 2")
    e("v_add_u32 v34, s57, v34")
    e("v_lshlrev_b32 v36, 4, v33")
    e("v_lshl_add_u32 v36, v31, 1, v36")
    e("s_lshl_b32 s57, s55, 3")
    e("v_add_u32 v36, s57, v36")
    e("v_lshrrev_b32 v37, 1, v31")
    e("v_lshlrev_b32 v37, 4, v37")
    e("v_lshl_add_u32 v37, v33, 2, v37")
    e("v_and_b32 v35, 1, v31")
    e("v_lshl_add_u32 v37, v35, 1, v37")
    e("s_lshl_b32 s57, s55, 5")
    e("v_add_u32 v37, s57, v37")
    e("s_cmp_eq_u32 s54, 1")
    e("s_cselect_b64 vcc, -1, 0")
    e("s_nop 1")
    e("v_cndmask_b32 v36, v36, v37, vcc")
    e("v_lshlrev_b32 v36, 7, v36")
    e("v_lshl_add_u32 v36, v34, 1, v36")
    e("s_lshl_b32 s57, s54, 13")
    e("v_add_u32 v36, s57, v36")
    e("buffer_load_ushort v37, v36, s[48:51], 0 offen")
    e("buffer_load_ushort v38, v36, s[48:51], 0 offen offset:128")
    e("s_lshl_b32 s57, s52, 10")
    e(f"s_add_u32 s57, s57, {WS_WF}")
    e("v_lshlrev_b32 v39, 2, v30")
    e("v_add_u32 v39, s57, v39")
    e("s_waitcnt vmcnt(0)")
    e("v_lshl_or_b32 v37, v38, 16, v37")
    e("buffer_store_dword v37, v39, s[16:19], 0 offen sc1")
    e("P_NOW:")
    e("s_barrier")
    e("s_mov_b64 exec, s[62:63]")
    e("s_cbranch_execz P_SKIP2")
    e("s_waitcnt vmcnt(2)")
    for i in range(4):
        e(f"v_lshrrev_b32 v{14+i}, 4, v{4+i}")
        e(f"v_mul_u32_u24 v{14+i}, 5369, v{14+i}")
        e(f"v_lshrrev_b32 v{14+i}, 16, v{14+i}")
        e(f"v_lshlrev_b32 v{14+i}, 2, v{14+i}")
        e(f"ds_add_rtn_u32 v{18+i}, v{14+i}, v{ONE}")
    e("P_SKIP2:")
    e("s_mov_b64 exec, -1")
    e("s_waitcnt lgkmcnt(0)")
    e("s_barrier")
    stamp(1)
    e(f"s_cmp_eq_u32 s{S_TAU}, 15")
    e("s_cbranch_scc0 P_SKIP3")
    e(f"ds_read_b128 v[32:35], v{L16}")
    e("s_waitcnt lgkmcnt(0)")
    e("v_add_u32 v36, v32, v33")
    e("v_add_u32 v37, v36, v34")
    e("v_add_u32 v38, v37, v35")
    e("v_mov_b32 v39, v38")
    wave_scan(39)
    e("v_sub_u32 v40, v39, v38")
    e("v_add_u32 v41, v40, v32")
    e("v_add_u32 v42, v40, v36")
    e("v_add_u32 v43, v40, v37")
    for i in range(4):
        e(f"v_add_u32 v{48+i}, 128, v{40+i}")
    e(f"ds_write_b128 v{L16}, v[48:51]")
    for i in range(4):
        e(f"v_lshl_or_b32 v{44+i}, v{32+i}, 16, v{40+i}")
    e("s_lshl_b32 s52, s2, 10")
    e(f"s_add_u32 s52, s52, {WS_TABLE}")
    e(f"buffer_store_dwordx4 v[44:47], v{L16}, s[16:19], s52 offen sc1")
    e("P_SKIP3:")
    e("s_waitcnt lgkmcnt(0)")
    e("s_barrier")
    e("s_mov_b64 exec, s[62:63]")
    e("s_cbranch_execz P_SKIP4")
    for i in range(4):
        e(f"ds_read_b32 v{14+i}, v{14+i}")
    e("s_waitcnt vmcnt(0)")
    e("v_lshl_or_b32 v8, v12, 16, v8")
    e("v_and_or_b32 v9, v12, s60, v9")
    e("v_lshl_or_b32 v10, v13, 16, v10")
    e("v_and_or_b32 v11, v13, s60, v11")
    for i in range(4):
        e(f"s_waitcnt lgkmcnt({3-i})")
        e(f"v_add_lshl_u32 v{14+i}, v{14+i}, v{18+i}, 3")
    for i in range(4):
        e(f"ds_write2_b32 v{14+i}, v{8+i}, v{4+i} offset0:0 offset1:1")
    e("P_SKIP4:")
    e("s_mov_b64 exec, -1")
    e("s_waitcnt lgkmcnt(0)")
    e("s_barrier")
    e("v_lshlrev_b32 v30, 4, v0")
    e("ds_read_b128 v[32:35], v30 offset:1024")
    e(f"s_mul_i32 s52, s2, {CHB}")
    e(f"s_add_u32 s53, s52, 0x4000")
    e(f"s_cmp_ge_u32 s{S_TAU}, {(CHB//16 - 1024)//64}")
    e("s_cbranch_scc1 P_SKIP5")
    e(f"ds_read_b128 v[36:39], v30 offset:{1024+16384}")
    e("s_waitcnt lgkmcnt(0)")
    e("buffer_store_dwordx4 v[36:39], v30, s[16:19], s53 offen sc1")
    e("P_SKIP5:")
    e("s_waitcnt lgkmcnt(0)")
    e("buffer_store_dwordx4 v[32:35], v30, s[16:19], s52 offen sc1")
    e("P_END:")


def issue_gather(slot, src=None):
    src = SRC4 if src is None else src
    for i in range(4):
        e(f"s_add_u32 m0, s{S_SB}, {slot*4096 + i*1024}")
        e(f"v_mad_u32_u16 v{GOFF+i}, v{src+i}, s{S_128}, v{LOFF+i}")
        e(f"buffer_load_dwordx4 v{GOFF+i}, s[12:15], 0 offen lds")


def main_loop(p):
    e(f"s_cmp_eq_u32 s{S_REM}, 0")
    e(f"s_cbranch_scc1 {p}_DONE")
    if PRIO:
        e("s_setprio 3")
    e(f"ds_read_b128 v[{SRC4}:{SRC4+3}], v{ASRC}")
    e(f"ds_read_b128 v[{E8}:{E8+3}], v{ASRC} offset:{STB}")
    e("s_waitcnt lgkmcnt(1)")
    issue_gather(0)
    e(f"s_cmp_lt_u32 s{S_REM}, 2")
    e(f"s_cbranch_scc1 {p}_LOOP0")
    e("s_waitcnt lgkmcnt(0)")
    issue_gather(1, E8)
    for P in range(2):
        e(f"{p}_LOOP{P}:")
        e(f"ds_read_b128 v[{E8}:{E8+3}], v{AEW}")
        e(f"ds_read_b128 v[{E8+4}:{E8+7}], v{AEW} offset:16")
        e(f"ds_read_b128 v[{OH4}:{OH4+3}], v{AOH}")
        e(f"ds_read_b128 v[{SRC4}:{SRC4+3}], v{ASRC} offset:{2*STB}")
        if PRIO:
            for th, pr in ((7, 2), (5, 1), (3, 0)):
                e(f"s_cmp_eq_u32 s{S_REM}, {th}")
                e(f"s_cbranch_scc0 {p}_PR{P}_{th}")
                e(f"s_setprio {pr}")
                e(f"{p}_PR{P}_{th}:")
        e(f"s_cmp_eq_u32 s{S_REM}, 1")
        e(f"s_cbranch_scc1 {p}_W0_{P}")
        e("s_waitcnt vmcnt(4)")
        e(f"s_branch {p}_W1_{P}")
        e(f"{p}_W0_{P}:")
        e("s_waitcnt vmcnt(0)")
        e(f"{p}_W1_{P}:")
        for t in range(4):
            for h in range(2):
                r = A + t * 4 + h * 2
                e(f"ds_read_b64_tr_b16 v[{r}:{r+1}], v{TRA+t} offset:{P*4096 + h*256}")
        e("s_waitcnt lgkmcnt(9)")
        for i in range(4):
            e(f"v_pk_lshlrev_b16 v{BF+i}, v{SHAMT}, v{OH4+i}")
            e(f"v_perm_b32 v{E8+2*i}, v{E8+2*i+1}, v{E8+2*i}, s{S_PERM}")
        for i in range(4):
            e(f"v_pk_ashrrev_i16 v{BF+i}, s{S_F}, v{BF+i}")
        for i in range(4):
            e(f"v_and_b32 v{BF+i}, v{BF+i}, v{E8+2*i}")
        e(f"v_add_u32 v{AEW}, {STB}, v{AEW}")
        e(f"v_add_u32 v{AOH}, {STB}, v{AOH}")
        e(f"v_add_u32 v{ASRC}, {STB}, v{ASRC}")
        e("s_waitcnt lgkmcnt(0)")
        e(f"s_cmp_lt_u32 s{S_REM}, 3")
        e(f"s_cbranch_scc1 {p}_NI_{P}")
        issue_gather(P)
        e(f"{p}_NI_{P}:")
        for t in range(4):
            a = A + t * 4
            c = ACC + t * 4
            e(f"v_mfma_f32_16x16x32_bf16 v[{c}:{c+3}], v[{a}:{a+3}], v[{BF}:{BF+3}], v[{c}:{c+3}]")
        e(f"s_sub_u32 s{S_REM}, s{S_REM}, 1")
        e(f"s_cmp_eq_u32 s{S_REM}, 0")
        e(f"s_cbranch_scc1 {p}_DONE")
        if P == 1:
            e(f"s_branch {p}_LOOP0")
    e(f"{p}_DONE:")
    if PRIO:
        e("s_setprio 0")


def set_list_ptrs():
    e(f"v_and_b32 v{T0}, 8, v1")
    e(f"v_lshlrev_b32 v{T0}, 2, v{T0}")
    e(f"v_and_b32 v{T0+1}, 16, v1")
    e(f"v_or_b32 v{T0}, v{T0}, v{T0+1}")
    e(f"v_and_b32 v{T0+1}, 32, v1")
    e(f"v_lshl_or_b32 v{T0}, v{T0+1}, 1, v{T0}")
    e(f"v_add_u32 v{ASRC}, s{S_LB}, v{T0}")
    e(f"v_and_b32 v{T0}, 48, v1")
    e(f"v_lshl_add_u32 v{AEW}, v{T0}, 1, s{S_LB}")
    e(f"v_add_u32 v{T0}, 128, v{T0}")
    e(f"v_add_u32 v{AOH}, s{S_LB}, v{T0}")


def lane_constants():
    e(f"v_and_b32 v{T0}, 7, v1")
    for i in range(4):
        e(f"v_xor_b32 v{LOFF+i}, {2*i}, v{T0}")
        e(f"v_lshlrev_b32 v{LOFF+i}, 4, v{LOFF+i}")
    e(f"v_bfe_u32 v{T0}, v1, 2, 2")
    e(f"v_lshlrev_b32 v{T0+1}, 10, v{T0}")
    e(f"v_and_b32 v{T0+2}, 16, v1")
    e(f"v_lshl_add_u32 v{T0+1}, v{T0+2}, 3, v{T0+1}")
    e(f"v_and_b32 v{T0+2}, 32, v1")
    e(f"v_lshl_add_u32 v{T0+1}, v{T0+2}, 4, v{T0+1}")
    e(f"v_and_b32 v{T0+2}, 3, v1")
    e(f"v_lshl_add_u32 v{T0+1}, v{T0+2}, 3, v{T0+1}")
    e(f"v_add_u32 v{T0+1}, s{S_SB}, v{T0+1}")
    for t in range(4):
        e(f"v_xor_b32 v{T0+2}, {t}, v{T0}")
        e(f"v_lshl_add_u32 v{TRA+t}, v{T0+2}, 5, v{T0+1}")
    e(f"v_and_b32 v{T0}, 15, v1")
    e(f"v_sub_u32 v{T0}, 15, v{T0}")
    e(f"v_lshl_or_b32 v{SHAMT}, v{T0}, 16, v{T0}")
    for i in range(16):
        e(f"v_mov_b32 v{ACC+i}, 0")
    e(f"v_lshrrev_b32 v{T0}, 4, v0")
    e(f"v_and_b32 v{J16}, 15, v0")
    e(f"v_mul_u32_u24 v{GBASE}, {4*CHB}, v{T0}")
    e(f"v_lshl_add_u32 v{GBASE}, v{J16}, 3, v{GBASE}")
    e(f"s_lshl_b32 s{S_TMP}, s{S_B}, 2")
    e(f"s_add_u32 s{S_TMP}, s{S_TMP}, {WS_TABLE}")
    e(f"v_lshlrev_b32 v{POS}, 12, v{T0}")
    e(f"v_add_u32 v{POS}, s{S_TMP}, v{POS}")
    e(f"v_mov_b32 v{T0+1}, 0x7f000000")
    e(f"v_lshlrev_b32 v{T0}, 2, v{T0}")
    e(f"v_cmp_gt_u32 vcc, {NCH-2}, v{T0}")
    e("s_nop 1")
    e(f"v_cndmask_b32 v{DESC+2}, v{T0+1}, v{POS}, vcc")
    e(f"v_cmp_gt_u32 vcc, {NCH}, v{T0}")
    e("s_nop 1")
    e(f"v_cndmask_b32 v{DESC}, v{T0+1}, v{POS}, vcc")


def generic_sort_and_loop(p):
    e(f"{p}_START:")
    e(f"s_mov_b32 s{S_W32}, 0")
    e(f"s_mov_b32 s{S_NWIN}, 0")
    e(f"{p}_WIN:")
    e(f"v_lshlrev_b32 v{T0}, 2, v0")
    e("v_cmp_gt_u32 vcc, 130, v0")
    e(f"s_and_saveexec_b64 s[{S_X}:{S_X+1}], vcc")
    e(f"ds_write_b32 v{T0}, v{ZERO}")
    e(f"s_mov_b64 exec, s[{S_X}:{S_X+1}]")
    e(f"s_lshl_b32 s{S_TMP+1}, s{S_W32}, 3")
    e(f"v_add_u32 v{T0+3}, 16, v{J16}")
    e(f"v_mov_b32 v{T0+4}, 0x7f000000")
    e(f"v_mov_b32 v{T0+6}, 0")
    for r in range(4):
        m0 = S_MASK + 4 * r
        m1 = m0 + 2
        e(f"s_waitcnt vmcnt({3 - r + 2*r})")
        e(f"v_lshrrev_b32 v{T0}, 16, v{DESC+r}")
        e(f"v_subrev_u32 v{T0}, s{S_W32}, v{T0}")
        e(f"v_max_i32 v{T0+6}, v{T0+6}, v{T0}")
        e(f"v_cmp_gt_i32 s[{m0}:{m0+1}], v{T0}, v{J16}")
        e(f"v_cmp_gt_i32 s[{m1}:{m1+1}], v{T0}, v{T0+3}")
        e(f"v_and_b32 v{T0+1}, 0xffff, v{DESC+r}")
        e(f"v_lshl_add_u32 v{T0+1}, v{T0+1}, 3, v{GBASE}")
        e(f"s_add_u32 s{S_TMP}, s{S_TMP+1}, {r*CHB}")
        e(f"v_cndmask_b32 v{T0+2}, v{T0+4}, v{T0+1}, s[{m0}:{m0+1}]")
        e(f"v_cndmask_b32 v{T0+5}, v{T0+4}, v{T0+1}, s[{m1}:{m1+1}]")
        en0 = EN + 4 * r
        e(f"buffer_load_dwordx2 v[{en0}:{en0+1}], v{T0+2}, s[16:19], s{S_TMP} offen")
        e(f"buffer_load_dwordx2 v[{en0+2}:{en0+3}], v{T0+5}, s[16:19], s{S_TMP} offen offset:128")
    e("s_waitcnt lgkmcnt(0)")
    e("s_barrier")
    e(f"v_cmp_lt_i32 vcc, 32, v{T0+6}")
    e(f"s_and_saveexec_b64 s[{S_X}:{S_X+1}], vcc")
    e(f"v_mov_b32 v{T0}, {L_MORE}")
    e(f"ds_write_b32 v{T0}, v{ONE}")
    e(f"s_mov_b64 exec, s[{S_X}:{S_X+1}]")
    e(f"s_lshl_b32 s{S_TMP}, s{S_T0}, 5")
    e(f"s_sub_u32 s{S_TMP}, {L_BINS}, s{S_TMP}")
    for k in range(8):
        en = EN + 2 * k
        ba = A + k
        m = S_MASK + 2 * k
        e(f"s_waitcnt vmcnt({7-k})")
        e(f"v_and_b32 v{ba}, 0xfff0, v{en+1}")
        e(f"v_lshl_add_u32 v{ba}, v{ba}, 1, s{S_TMP}")
        e(f"v_mad_u32_u16 v{T0}, v{en}, 21, s{S_ROT}")
        e(f"v_bfe_u32 v{T0}, v{T0}, 17, 3")
        e(f"v_lshl_add_u32 v{ba}, v{T0}, 2, v{ba}")
        e(f"s_mov_b64 exec, s[{m}:{m+1}]")
        e(f"ds_add_rtn_u32 v{POS+k}, v{ba}, v{ONE}")
        e("s_mov_b64 exec, -1")
    e("s_waitcnt lgkmcnt(0)")
    e("s_barrier")
    stamp(4)
    if PFB:
        e(f"s_cmp_eq_u32 s{S_PASS}, 1")
        e(f"s_cbranch_scc0 {p}_NOPF")
        prefetch(PFA * 512, PFB, 20, XT, S_TMP)
        e(f"{p}_NOPF:")
    e(f"s_mov_b32 s{S_CNT}, 0")
    e(f"s_cmp_ge_u32 s{S_TAU}, s{S_NT}")
    e(f"s_cbranch_scc1 {p}_NOSCAN")
    e(f"s_lshl_b32 s{S_TMP}, s{S_TAU}, 5")
    e(f"v_lshlrev_b32 v{T0}, 2, v1")
    e(f"v_add_u32 v{T0}, s{S_TMP}, v{T0}")
    e(f"v_mov_b32 v{T0+1}, 0")
    e("s_mov_b64 exec, 0xff")
    e(f"ds_read_b32 v{T0+1}, v{T0} offset:{L_BINS}")
    e("s_mov_b64 exec, -1")
    e("s_waitcnt lgkmcnt(0)")
    e(f"v_mov_b32 v{T0+2}, v{T0+1}")
    wave_scan(T0 + 2, full=False)
    e(f"v_sub_u32 v{T0+3}, v{T0+2}, v{T0+1}")
    e(f"v_readlane_b32 s{S_CNT}, v{T0+2}, 7")
    e("s_mov_b64 exec, 0xff")
    e(f"ds_write_b32 v{T0}, v{T0+3} offset:{L_BINS}")
    e("s_mov_b64 exec, 1")
    e(f"v_mov_b32 v{T0}, {L_MAXC}")
    e(f"v_mov_b32 v{T0+1}, s{S_CNT}")
    e(f"ds_max_u32 v{T0}, v{T0+1}")
    e("s_mov_b64 exec, -1")
    e(f"{p}_NOSCAN:")
    e("s_waitcnt lgkmcnt(0)")
    e("s_barrier")
    e(f"v_mov_b32 v{T0}, {L_MAXC}")
    e(f"ds_read_b64 v[{T0+1}:{T0+2}], v{T0}")
    for k in range(8):
        m = S_MASK + 2 * k
        e(f"s_mov_b64 exec, s[{m}:{m+1}]")
        e(f"ds_read_b32 v{A+k}, v{A+k}")
    e("s_mov_b64 exec, -1")
    e("s_waitcnt lgkmcnt(0)")
    e(f"v_readfirstlane_b32 s{S_MAXC}, v{T0+1}")
    e(f"v_readfirstlane_b32 s{S_MORE}, v{T0+2}")
    for k in range(8):
        e(f"v_add_u32 v{POS+k}, v{POS+k}, v{A+k}")
    e(f"s_mov_b32 s{S_U}, 0")
    e(f"{p}_SUB:")
    e(f"s_mul_i32 s{S_TMP}, s{S_T0}, {TLB}")
    e(f"s_sub_u32 s{S_TMP}, 0, s{S_TMP}")
    e(f"s_mov_b32 s{S_TMP+2}, {TLB}")
    e(f"s_movk_i32 s{S_TMP+3}, {STB}")
    e(f"v_mov_b32 v{T0+5}, s{S_TMP}")
    for k in range(8):
        en = EN + 2 * k
        m = S_MASK + 2 * k
        e(f"v_subrev_u32 v{T0}, s{S_U}, v{POS+k}")
        e(f"v_cmp_gt_u32 vcc, {TCAP}, v{T0}")
        e(f"v_lshrrev_b32 v{T0+1}, 4, v{en+1}")
        e(f"v_mad_u32_u24 v{T0+1}, v{T0+1}, s{S_TMP+2}, v{T0+5}")
        e(f"v_lshrrev_b32 v{T0+2}, 5, v{T0}")
        e(f"v_mad_u32_u24 v{T0+1}, v{T0+2}, s{S_TMP+3}, v{T0+1}")
        e(f"v_and_b32 v{T0}, 31, v{T0}")
        e(f"v_lshl_add_u32 v{T0+2}, v{T0}, 2, v{T0+1}")
        e(f"v_lshl_add_u32 v{T0+3}, v{T0}, 1, v{T0+1}")
        e(f"v_and_b32 v{T0+1}, 15, v{en+1}")
        e(f"v_lshlrev_b32 v{T0+1}, v{T0+1}, v{ONE}")
        e(f"s_and_b64 exec, vcc, s[{m}:{m+1}]")
        e(f"ds_write_b32 v{T0+2}, v{en} offset:{L_LISTS}")
        e(f"ds_write_b16 v{T0+3}, v{T0+1} offset:{L_LISTS + 128}")
        e("s_mov_b64 exec, -1")
    e(f"s_sub_i32 s{S_TMP}, s{S_CNT}, s{S_U}")
    e(f"s_max_i32 s{S_TMP}, s{S_TMP}, 0")
    e(f"s_min_i32 s{S_TMP}, s{S_TMP}, {TCAP}")
    e(f"s_add_u32 s{S_REM}, s{S_TMP}, 31")
    e(f"s_lshr_b32 s{S_REM}, s{S_REM}, 5")
    e(f"s_lshl_b32 s{S_TMP+1}, s{S_REM}, 5")
    e(f"v_add_u32 v{T0}, s{S_TMP}, v1")
    e(f"v_cmp_gt_u32 vcc, s{S_TMP+1}, v{T0}")
    e(f"s_mul_i32 s{S_TMP+1}, s{S_REM}, {STB}")
    e(f"s_add_u32 s{S_TMP+1}, s{S_TMP+1}, s{S_LB}")
    e(f"s_sub_u32 s{S_TMP+1}, s{S_TMP+1}, {STB}")
    e(f"v_and_b32 v{T0}, 31, v{T0}")
    e(f"v_lshl_add_u32 v{T0+1}, v{T0}, 2, s{S_TMP+1}")
    e(f"v_lshl_add_u32 v{T0+2}, v{T0}, 1, s{S_TMP+1}")
    e(f"v_mov_b32 v{T0+3}, 0xffff")
    e("s_mov_b64 exec, vcc")
    e(f"ds_write_b32 v{T0+1}, v{T0+3}")
    e(f"ds_write_b16 v{T0+2}, v{ZERO} offset:128")
    e("s_mov_b64 exec, -1")
    e(f"s_mov_b32 s{S_HDR}, s{S_REM}")
    e("s_waitcnt lgkmcnt(0)")
    e("s_barrier")
    stamp(5)
    e(f"{p}_ML:")
    set_list_ptrs()
    main_loop(p + "G")
    e(f"s_add_u32 s{S_NWIN}, s{S_NWIN}, 1")
    e(f"s_add_u32 s{S_U}, s{S_U}, {TCAP}")
    e(f"s_cmp_lt_u32 s{S_U}, s{S_MAXC}")
    e(f"s_cbranch_scc0 {p}_SUBDONE")
    e("s_barrier")
    e(f"s_branch {p}_SUB")
    e(f"{p}_SUBDONE:")
    e(f"s_cmp_eq_u32 s{S_MORE}, 0")
    e(f"s_cbranch_scc1 {p}_WINDONE")
    e(f"s_add_u32 s{S_W32}, s{S_W32}, 32")
    e("s_barrier")
    e(f"s_branch {p}_WIN")
    e(f"{p}_WINDONE:")


def tile_store(regs, srdn, base_off, mods):
    e(f"v_and_b32 v{T0}, 15, v1")
    e(f"v_lshlrev_b32 v{T0}, 7, v{T0}")
    e(f"v_and_b32 v{T0+1}, 48, v1")
    e(f"v_lshl_add_u32 v{T0}, v{T0+1}, 1, v{T0}")
    e(f"v_add_u32 v{T0}, s{S_SB}, v{T0}")
    e(f"ds_write_b128 v{T0}, v[{regs}:{regs+3}]")
    e(f"ds_write_b128 v{T0}, v[{regs+4}:{regs+7}] offset:16")
    e(f"v_add_u32 v{T0+1}, s{S_SB}, v{L16}")
    e(f"s_add_u32 s{S_TMP}, s{S_T0}, s{S_TAU}")
    e(f"s_lshl_b32 s{S_TMP}, s{S_TMP}, 11")
    if base_off:
        e(f"s_add_u32 s{S_TMP}, s{S_TMP}, {base_off}")
    e("s_waitcnt lgkmcnt(0)")
    e(f"ds_read_b128 v[{A}:{A+3}], v{T0+1}")
    e(f"ds_read_b128 v[{A+4}:{A+7}], v{T0+1} offset:1024")
    e("s_waitcnt lgkmcnt(1)")
    e(f"buffer_store_dwordx4 v[{A}:{A+3}], v{L16}, s[{srdn}:{srdn+3}], s{S_TMP} offen{mods}")
    e("s_waitcnt lgkmcnt(0)")
    e(f"buffer_store_dwordx4 v[{A+4}:{A+7}], v{L16}, s[{srdn}:{srdn+3}], s{S_TMP} offen offset:1024{mods}")


def gen():
    name = "standalone__spectral_conv_chebnet__graph_kernel"
    e(".text")
    e(f".globl {name}")
    e(".p2align 8")
    e(f".type {name},@function")
    e(f"{name}:")
    e(f"s_cmp_ge_u32 s2, {NB}")
    e("s_cbranch_scc1 K_END")
    e("s_load_dwordx2 s[4:5], s[0:1], 0")
    e("s_load_dwordx2 s[6:7], s[0:1], 56")
    e("s_load_dwordx4 s[8:11], s[0:1], 40")
    e("v_and_b32 v1, 63, v0")
    e(f"v_lshrrev_b32 v{T0}, 6, v0")
    e(f"v_lshlrev_b32 v{L16}, 4, v1")
    e(f"v_readfirstlane_b32 s{S_TAU}, v{T0}")
    e(f"v_mov_b32 v{ONE}, 1")
    e(f"v_mov_b32 v{ZERO}, 0")
    phase0()
    stamp(2)
    e(f"s_and_b32 s{S_B}, s2, 7")
    e(f"s_lshl_b32 s{S_ROT}, s{S_B}, 17")
    e(f"s_mov_b32 s{S_ROT}, 0")
    e(f"s_lshl_b32 s{S_B}, s{S_B}, 5")
    e(f"s_lshr_b32 s{S_TMP}, s2, 3")
    e(f"s_add_u32 s{S_B}, s{S_B}, s{S_TMP}")
    e(f"s_mul_i32 s{S_T0}, s{S_B}, 99995")
    e(f"s_add_u32 s{S_T0}, s{S_T0}, 8160")
    e(f"s_add_u32 s{S_NT}, s{S_T0}, 99995")
    e(f"s_lshr_b32 s{S_T0}, s{S_T0}, 13")
    e(f"s_lshr_b32 s{S_NT}, s{S_NT}, 13")
    e(f"s_sub_u32 s{S_NT}, s{S_NT}, s{S_T0}")
    e(f"s_movk_i32 s{S_128}, 128")
    e(f"s_mov_b32 s{S_F}, 0x000f000f")
    e(f"s_mov_b32 s{S_PERM}, 0x07060302")
    e(f"s_min_u32 s{S_TMP}, s{S_TAU}, 12")
    e(f"s_lshl_b32 s{S_SB}, s{S_TMP}, 13")
    e(f"s_add_u32 s{S_SB}, s{S_SB}, {L_STAGE}")
    e(f"s_mul_i32 s{S_LB}, s{S_TMP}, {TLB}")
    e(f"s_add_u32 s{S_LB}, s{S_LB}, {L_LISTS}")
    e(f"s_mov_b32 s{S_PASS}, 1")
    srd(12, 4, 5, N * 128)
    srd(24, 8, 9, N * 128)
    lane_constants()

    def between1():
        prefetch(0, PFA, 20, XT, S_TMP)
    grid_barrier(0, between1)
    stamp(3)
    e(f"v_mov_b32 v{T0}, v{DESC}")
    e(f"v_mov_b32 v{T0+1}, v{DESC+2}")
    e(f"buffer_load_dword v{DESC}, v{T0}, s[16:19], 0 offen")
    e(f"buffer_load_dword v{DESC+1}, v{T0}, s[16:19], 0 offen offset:1024")
    e(f"buffer_load_dword v{DESC+2}, v{T0+1}, s[16:19], 0 offen offset:2048")
    e(f"buffer_load_dword v{DESC+3}, v{T0+1}, s[16:19], 0 offen offset:3072")
    generic_sort_and_loop("A")
    e(f"s_cmp_eq_u32 s{S_PASS}, 2")
    e("s_cbranch_scc1 EPI")
    stamp(6)
    e(f"s_cmp_ge_u32 s{S_TAU}, s{S_NT}")
    e("s_cbranch_scc1 T1_DONE")
    e("s_nop 7")
    for t in range(4):
        e(f"v_cvt_pk_bf16_f32 v{T1T+2*t}, v{ACC+4*t}, v{ACC+4*t+1}")
        e(f"v_cvt_pk_bf16_f32 v{T1T+2*t+1}, v{ACC+4*t+2}, v{ACC+4*t+3}")
    tile_store(T1T, 16, WS_T1P, " sc1")
    e("T1_DONE:")
    for i in range(16):
        e(f"v_mov_b32 v{ACC+i}, 0")
    srd_off(12, 6, 7, WS_T1P, N * 128)
    e(f"s_mov_b32 s{S_PASS}, 2")

    def between2():
        e(f"s_cmp_ge_u32 s{S_TAU}, 13")
        e("s_cbranch_scc1 B2_W")
        e(f"s_cmp_ge_u32 s{S_TAU}, s{S_NT}")
        e("s_cbranch_scc1 B2_END")
        e(f"s_add_u32 s{S_TMP}, s{S_T0}, s{S_TAU}")
        e(f"s_lshl_b32 s{S_TMP}, s{S_TMP}, 11")
        e(f"v_and_b32 v{T0}, 15, v1")
        e(f"v_lshlrev_b32 v{T0}, 7, v{T0}")
        e(f"v_and_b32 v{T0+1}, 48, v1")
        e(f"v_lshl_add_u32 v{T0}, v{T0+1}, 1, v{T0}")
        e(f"buffer_load_dwordx4 v[{XT}:{XT+3}], v{T0}, s[20:23], s{S_TMP} offen")
        e(f"buffer_load_dwordx4 v[{XT+4}:{XT+7}], v{T0}, s[20:23], s{S_TMP} offen offset:16")
        e("s_branch B2_END")
        e("B2_W:")
        e(f"s_sub_u32 s{S_TMP}, s{S_TAU}, 13")
        e(f"s_mul_i32 s{S_TMP}, s{S_TMP}, 12288")
        for j in range(3):
            e(f"s_add_u32 m0, s{S_TMP}, {L_WF + j*4096}")
            e(f"s_add_u32 s{S_TMP+1}, s{S_TMP}, {WS_WF + j*4096}")
            for i in range(4):
                e(f"buffer_load_dwordx4 v{L16}, s[16:19], s{S_TMP+1} offen offset:{i*1024} lds")
        e("s_waitcnt vmcnt(0)")
        e("B2_END:")
    grid_barrier(1, between2)
    stamp(7)
    e(f"s_cmp_eq_u32 s{S_NWIN}, 1")
    e("s_cbranch_scc0 A_START")
    e(f"s_mov_b32 s{S_REM}, s{S_HDR}")
    e(f"s_mov_b32 s{S_MAXC}, 0")
    e(f"s_mov_b32 s{S_MORE}, 0")
    e("s_branch A_ML")
    e("EPI:")
    e(f"s_cmp_ge_u32 s{S_TAU}, s{S_NT}")
    e("s_cbranch_scc1 K_END")
    stamp(8)
    e("s_waitcnt vmcnt(0)")
    e(f"v_add_u32 v{T0+1}, {L_WF}, v{L16}")
    e(f"s_mov_b32 s{S_TMP+2}, 0xffff0000")
    e("s_nop 7")
    T2 = EN
    TMPA = EN + 8
    for i in range(8):
        a = ACC + 2 * i
        e(f"v_cvt_pk_bf16_f32 v{TMPA}, v{a}, v{a+1}")
        e(f"v_lshlrev_b32 v{TMPA+1}, 16, v{XT+i}")
        e(f"v_and_b32 v{TMPA+2}, s{S_TMP+2}, v{XT+i}")
        e(f"v_lshlrev_b32 v{TMPA+3}, 16, v{TMPA}")
        e(f"v_and_b32 v{TMPA+4}, s{S_TMP+2}, v{TMPA}")
        e(f"v_fma_f32 v{TMPA+3}, 2.0, v{TMPA+3}, -v{TMPA+1}")
        e(f"v_fma_f32 v{TMPA+4}, 2.0, v{TMPA+4}, -v{TMPA+2}")
        e(f"v_cvt_pk_bf16_f32 v{T2+i}, v{TMPA+3}, v{TMPA+4}")
    Bsrc = {0: XT, 1: T1T, 2: T2}
    WB = [A, BF]
    steps = [(k, s) for k in range(3) for s in range(2)]

    def ldw(idx):
        k, s = steps[idx]
        wb = WB[idx & 1]
        for t in range(4):
            f = k * 8 + s * 4 + t
            e(f"ds_read_b128 v[{wb+4*t}:{wb+4*t+3}], v{T0+1} offset:{f*1024}")
    ldw(0)
    for idx in range(6):
        if idx + 1 < 6:
            ldw(idx + 1)
            e("s_waitcnt lgkmcnt(4)")
        else:
            e("s_waitcnt lgkmcnt(0)")
        k, s = steps[idx]
        wb = WB[idx & 1]
        b = Bsrc[k] + 4 * s
        for t in range(4):
            c = ACC + 4 * t
            src_c = "0" if idx == 0 else f"v[{c}:{c+3}]"
            e(f"v_mfma_f32_16x16x32_bf16 v[{c}:{c+3}], v[{wb+4*t}:{wb+4*t+3}], v[{b}:{b+3}], {src_c}")
    e("s_nop 7")
    e("s_nop 3")
    for t in range(4):
        e(f"v_cvt_pk_bf16_f32 v{EN+2*t}, v{ACC+4*t}, v{ACC+4*t+1}")
        e(f"v_cvt_pk_bf16_f32 v{EN+2*t+1}, v{ACC+4*t+2}, v{ACC+4*t+3}")
    tile_store(EN, 24, 0, "")
    if DIAG:
        stamp(9)
        e("s_waitcnt vmcnt(0)")
        stamp(10)
        e("s_mov_b64 exec, 1")
        e(f"s_lshl_b32 s{S_TMP}, s2, 4")
        e(f"s_add_u32 s{S_TMP}, s{S_TMP}, s{S_TAU}")
        e(f"s_lshl_b32 s{S_TMP}, s{S_TMP}, 6")
        e(f"s_add_u32 s{S_TMP}, s{S_TMP}, {WS_DIAG}")
        for i in range(11):
            e(f"v_mov_b32 v{T0+1}, s{S_ST+2*i}")
            e(f"buffer_store_dword v{T0+1}, v{ZERO}, s[16:19], s{S_TMP} offen offset:{4*i}")
    if os.environ.get("DBGST"):
        e("s_cmp_eq_u32 s2, 0")
        e("s_cbranch_scc0 K_END")
        e(f"s_cmp_eq_u32 s{S_TAU}, 0")
        e("s_cbranch_scc0 K_END")
        words = [1, 2, 3, 5, 6, 7, 8, 9, 10, 11]
        for i in range(1, 11):
            e(f"s_sub_u32 s{S_TMP}, s{S_ST+2*i}, s{S_ST}")
            e(f"v_mov_b32 v{T0+1}, s{S_TMP}")
            e(f"v_mov_b32 v{T0}, {words[i-1]*4}")
            e(f"global_store_dword v{T0}, v{T0+1}, s[10:11]")
    e("K_END:")
    e("s_endpgm")
    e('.section .rodata,"a"')
    e(".p2align 6")
    e(f".amdhsa_kernel {name}")
    e(f"  .amdhsa_next_free_vgpr {NV}")
    e(f"  .amdhsa_next_free_sgpr {NS}")
    e(f"  .amdhsa_accum_offset {NV}")
    e("  .amdhsa_group_segment_fixed_size 0")
    e("  .amdhsa_kernarg_size 64")
    e("  .amdhsa_user_sgpr_count 2")
    e("  .amdhsa_user_sgpr_kernarg_segment_ptr 1")
    e("  .amdhsa_system_sgpr_workgroup_id_x 1")
    e("  .amdhsa_float_denorm_mode_32 3")
    e("  .amdhsa_float_denorm_mode_16_64 3")
    e(".end_amdhsa_kernel")


HEADER = """; Kernarg layout for this problem (64 bytes, ptrs only, base s[0:1]):
"""


def main():
    out.append(HEADER.rstrip())
    out.append(f"; @launch grid=({NB},1,1) block=(1024,1,1) lds={L_TOTAL}")
    out.append('.amdgcn_target "amdgcn-amd-amdhsa--gfx950"')
    gen()
    path = sys.argv[1] if len(sys.argv) > 1 else "standalone__spectral_conv_chebnet__graph.s"
    open(path, "w").write("\n".join(out) + "\n")


if __name__ == "__main__":
    main()
```

```python
import os
import sys

N = 50000
E = 800000
NCH = 250
CH = 3200
CHB = CH * 8
NB = 256
TCAP = 384
BN = 196
TLA = TCAP * 4
TLB = TCAP * 2

WS_ENT = 0
WS_TABLE = 0x680000
WS_T1P = 0x700000
WS_WF = 0xE00000
WS_USED = 0xE10000

L_BINS = 0
L_MAXC = 512
L_MORE = 516
L_LA = 1024
L_LB = L_LA + 13 * TLA
L_WF = L_LB + 13 * TLB
L_STAGE = L_WF + 24576
L_TOTAL = L_STAGE + 13 * 8192
assert L_STAGE % 256 == 0 and L_TOTAL <= 163840

DIAG = bool(os.environ.get("DIAG"))
PFA = int(os.environ.get("PFA", "0"))
PFB = int(os.environ.get("PFB", "0"))
PRIO = int(os.environ.get("PRIO", "1"))
PRTH = ((7, 2), (5, 1), (3, 0))
WS_DIAG = 0x1600000
if DIAG:
    WS_USED = 0x1800000

out = []


def e(s=""):
    out.append("    " + s if s and not s.endswith(":") else s)


S_ST = 80


def stamp(i):
    if DIAG:
        e("s_waitcnt lgkmcnt(0)")
        e(f"s_memrealtime s[{S_ST+2*i}:{S_ST+2*i+1}]")
        e("s_waitcnt lgkmcnt(0)")


def srd(d, plo, phi, size):
    e(f"s_mov_b32 s{d}, s{plo}")
    e(f"s_and_b32 s{d+1}, s{phi}, 0xffff")
    e(f"s_mov_b32 s{d+2}, {size}")
    e(f"s_mov_b32 s{d+3}, 0x00020000")


def srd_off(d, plo, phi, off, size):
    e(f"s_add_u32 s{d}, s{plo}, {off}")
    e(f"s_addc_u32 s{d+1}, s{phi}, 0")
    e(f"s_and_b32 s{d+1}, s{d+1}, 0xffff")
    e(f"s_mov_b32 s{d+2}, {size}")
    e(f"s_mov_b32 s{d+3}, 0x00020000")


def wave_scan(v, full=True):
    shifts = [1, 2, 4, 8] if full else [1, 2, 4]
    for sh in shifts:
        e("s_nop 1")
        e(f"v_add_u32_dpp v{v}, v{v}, v{v} row_shr:{sh} row_mask:0xf bank_mask:0xf bound_ctrl:0")
    if full:
        e("s_nop 1")
        e(f"v_add_u32_dpp v{v}, v{v}, v{v} row_bcast:15 row_mask:0xa bank_mask:0xf")
        e("s_nop 1")
        e(f"v_add_u32_dpp v{v}, v{v}, v{v} row_bcast:31 row_mask:0xc bank_mask:0xf")
    e("s_nop 1")


ACC = 4
A = 20
BF = 36
E8 = 40
OH4 = 48
SRC4 = 52
GOFF = 56
LOFF = 60
TRA = 64
ASRC = 68
AEW = 69
AOH = 70
SHAMT = 71
L16 = 72
T0 = 73
DESC = 80
EN = 84
POS = 100
XT = 108
T1T = 116
J16 = 124
GBASE = 125
ONE = 126
ZERO = 127
FOUR = 3
NV = 128

S_B, S_NB0, S_NT, S_TAU = 28, 29, 30, 31
S_128, S_F, S_SB, S_LB = 32, 33, 34, 35
S_W32, S_U, S_CNT, S_REM, S_MAXC, S_MORE = 36, 37, 38, 39, 40, 41
S_TMP = 42
S_MASK = 48
S_X = 64
S_NWIN = 66
S_HDR = 67
S_PERM = 68
S_ROT = 69
S_PASS = 70
S_SPIN = 71
S_MSK = 72
S_FAST = 73
S_ROWB = 74
S_TOFF = 75
S_Q0, S_Q1, S_Q2 = 76, 77, 78
S_K = 79
NS = 102 if DIAG else 80


def prefetch(firstkb, count, srdx, vdummy, st):
    if count == 0:
        return
    e(f"s_lshr_b32 s{st}, s2, 3")
    e(f"s_lshl_b32 s{st}, s{st}, 4")
    e(f"s_add_u32 s{st}, s{st}, s{S_TAU}")
    e(f"s_lshl_b32 s{st}, s{st}, 10")
    for k in range(count):
        e(f"s_add_u32 s{st+1}, s{st}, {(firstkb + 512*k) * 1024}")
        e(f"buffer_load_dwordx4 v[{vdummy}:{vdummy+3}], v{L16}, s[{srdx}:{srdx+3}], s{st+1} offen")


def grid_barrier(k, between=None):
    e("s_waitcnt vmcnt(0) lgkmcnt(0)")
    e("s_barrier")
    e(f"s_cmp_eq_u32 s{S_TAU}, 15")
    e(f"s_cbranch_scc1 GB{k}_POLL")
    if between:
        between()
    e(f"s_branch GB{k}_JOIN")
    e(f"GB{k}_POLL:")
    e("s_mov_b64 exec, 1")
    e(f"s_and_b32 s{S_TMP}, s2, 1")
    e(f"s_lshl_b32 s{S_TMP}, s{S_TMP}, 6")
    e(f"s_add_u32 s{S_TMP}, s{S_TMP}, {k*16}")
    e(f"v_mov_b32 v{T0}, s{S_TMP}")
    e(f"v_mov_b32 v{T0+1}, {128 + k*16}")
    e(f"global_atomic_add v{T0+2}, v{T0}, v{ONE}, s[10:11] sc0 sc1")
    e("s_waitcnt vmcnt(0)")
    e(f"v_readfirstlane_b32 s{S_TMP}, v{T0+2}")
    e(f"s_cmp_eq_u32 s{S_TMP}, {NB//2 - 1}")
    e(f"s_cbranch_scc0 GB{k}_SPIN0")
    e(f"global_atomic_add v{T0+1}, v{ONE}, s[10:11] sc1")
    e(f"GB{k}_SPIN0:")
    e(f"s_mov_b32 s{S_SPIN}, 0")
    e(f"GB{k}_SPIN:")
    e(f"global_load_dword v{T0+2}, v{T0+1}, s[10:11] sc1")
    e("s_waitcnt vmcnt(0)")
    e(f"v_readfirstlane_b32 s{S_TMP}, v{T0+2}")
    e(f"s_cmp_ge_u32 s{S_TMP}, 2")
    e(f"s_cbranch_scc1 GB{k}_DONE")
    e(f"s_add_u32 s{S_SPIN}, s{S_SPIN}, 1")
    e(f"s_cmp_ge_u32 s{S_SPIN}, 0x400000")
    e(f"s_cbranch_scc1 GB{k}_DONE")
    e("s_sleep 2")
    e(f"s_branch GB{k}_SPIN")
    e(f"GB{k}_DONE:")
    e("s_mov_b64 exec, -1")
    e(f"GB{k}_JOIN:")
    e("s_barrier")


def phase0():
    e("s_load_dwordx4 s[52:55], s[0:1], 8")
    e("s_load_dwordx4 s[56:59], s[0:1], 24")
    e(f"s_mul_i32 s3, s2, {CH*4}")
    e("v_lshlrev_b32 v2, 4, v0")
    e("v_add_u32 v2, s3, v2")
    e("v_lshrrev_b32 v3, 1, v2")
    e("v_and_b32 v24, 0xff, v0")
    e("v_lshlrev_b32 v24, 2, v24")
    e(f"ds_write_b32 v24, v{ZERO}")
    e("s_waitcnt lgkmcnt(0)")
    stamp(0)
    srd(16, 6, 7, WS_USED)
    srd(20, 4, 5, N * 128)
    srd(36, 52, 53, E * 4)
    srd(40, 54, 55, E * 4)
    srd(44, 56, 57, E * 2)
    srd(48, 58, 59, 3 * 64 * 64 * 2)
    e(f"s_cmp_ge_u32 s2, {NCH}")
    e("s_cbranch_scc1 P_END")
    e("s_mov_b32 s60, 0xffff0000")
    e(f"v_cmp_gt_u32 vcc, {CH//4}, v0")
    e("s_and_saveexec_b64 s[64:65], vcc")
    e("s_mov_b64 s[62:63], exec")
    e("s_cbranch_execz P_SKIP1")
    e("buffer_load_dwordx4 v[4:7], v2, s[40:43], 0 offen")
    e("buffer_load_dwordx4 v[8:11], v2, s[36:39], 0 offen")
    e("buffer_load_dwordx2 v[12:13], v3, s[44:47], 0 offen")
    e("P_SKIP1:")
    e("s_mov_b64 exec, -1")
    e("s_cmp_ge_u32 s2, 48")
    e("s_cbranch_scc1 P_NOW")
    e(f"s_cmp_lt_u32 s{S_TAU}, 14")
    e("s_cbranch_scc1 P_NOW")
    e("s_lshr_b32 s52, s2, 1")
    e("s_and_b32 s53, s2, 1")
    e("s_lshl_b32 s53, s53, 7")
    e("v_subrev_u32 v30, 896, v0")
    e("v_add_u32 v30, s53, v30")
    e("s_lshr_b32 s54, s52, 3")
    e("s_bfe_u32 s55, s52, 0x10002")
    e("s_and_b32 s56, s52, 3")
    e("v_and_b32 v31, 3, v30")
    e("v_bfe_u32 v32, v30, 2, 4")
    e("v_lshrrev_b32 v33, 6, v30")
    e("v_lshrrev_b32 v34, 2, v32")
    e("v_lshlrev_b32 v34, 4, v34")
    e("v_and_b32 v35, 3, v32")
    e("v_add_u32 v34, v34, v35")
    e("s_lshl_b32 s57, s56, 2")
    e("v_add_u32 v34, s57, v34")
    e("v_lshlrev_b32 v36, 4, v33")
    e("v_lshl_add_u32 v36, v31, 1, v36")
    e("s_lshl_b32 s57, s55, 3")
    e("v_add_u32 v36, s57, v36")
    e("v_lshrrev_b32 v37, 1, v31")
    e("v_lshlrev_b32 v37, 4, v37")
    e("v_lshl_add_u32 v37, v33, 2, v37")
    e("v_and_b32 v35, 1, v31")
    e("v_lshl_add_u32 v37, v35, 1, v37")
    e("s_lshl_b32 s57, s55, 5")
    e("v_add_u32 v37, s57, v37")
    e("s_cmp_eq_u32 s54, 1")
    e("s_cselect_b64 vcc, -1, 0")
    e("s_nop 1")
    e("v_cndmask_b32 v36, v36, v37, vcc")
    e("v_lshlrev_b32 v36, 7, v36")
    e("v_lshl_add_u32 v36, v34, 1, v36")
    e("s_lshl_b32 s57, s54, 13")
    e("v_add_u32 v36, s57, v36")
    e("buffer_load_ushort v37, v36, s[48:51], 0 offen")
    e("buffer_load_ushort v38, v36, s[48:51], 0 offen offset:128")
    e("s_lshl_b32 s57, s52, 10")
    e(f"s_add_u32 s57, s57, {WS_WF}")
    e("v_lshlrev_b32 v39, 2, v30")
    e("v_add_u32 v39, s57, v39")
    e("s_waitcnt vmcnt(0)")
    e("v_lshl_or_b32 v37, v38, 16, v37")
    e("buffer_store_dword v37, v39, s[16:19], 0 offen sc1")
    e("P_NOW:")
    e("s_barrier")
    e("s_mov_b64 exec, s[62:63]")
    e("s_cbranch_execz P_SKIP2")
    e("s_waitcnt vmcnt(2)")
    for i in range(4):
        e(f"v_lshrrev_b32 v{14+i}, 2, v{4+i}")
        e(f"v_mul_u32_u24 v{14+i}, 21400, v{14+i}")
        e(f"v_lshrrev_b32 v{14+i}, 20, v{14+i}")
        e(f"v_lshlrev_b32 v{14+i}, 2, v{14+i}")
        e(f"ds_add_rtn_u32 v{18+i}, v{14+i}, v{ONE}")
    e("P_SKIP2:")
    e("s_mov_b64 exec, -1")
    e("s_waitcnt lgkmcnt(0)")
    e("s_barrier")
    stamp(1)
    e(f"s_cmp_eq_u32 s{S_TAU}, 15")
    e("s_cbranch_scc0 P_SKIP3")
    e(f"ds_read_b128 v[32:35], v{L16}")
    e("s_waitcnt lgkmcnt(0)")
    e("v_add_u32 v36, v32, v33")
    e("v_add_u32 v37, v36, v34")
    e("v_add_u32 v38, v37, v35")
    e("v_mov_b32 v39, v38")
    wave_scan(39)
    e("v_sub_u32 v40, v39, v38")
    e("v_add_u32 v41, v40, v32")
    e("v_add_u32 v42, v40, v36")
    e("v_add_u32 v43, v40, v37")
    for i in range(4):
        e(f"v_add_u32 v{48+i}, 128, v{40+i}")
    e(f"ds_write_b128 v{L16}, v[48:51]")
    for i in range(4):
        e(f"v_lshl_or_b32 v{44+i}, v{32+i}, 16, v{40+i}")
    e("s_lshl_b32 s52, s2, 10")
    e(f"s_add_u32 s52, s52, {WS_TABLE}")
    e(f"buffer_store_dwordx4 v[44:47], v{L16}, s[16:19], s52 offen sc1")
    e("P_SKIP3:")
    e("s_waitcnt lgkmcnt(0)")
    e("s_barrier")
    e("s_mov_b64 exec, s[62:63]")
    e("s_cbranch_execz P_SKIP4")
    for i in range(4):
        e(f"ds_read_b32 v{14+i}, v{14+i}")
    e("s_waitcnt vmcnt(0)")
    e("v_lshl_or_b32 v8, v12, 16, v8")
    e("v_and_or_b32 v9, v12, s60, v9")
    e("v_lshl_or_b32 v10, v13, 16, v10")
    e("v_and_or_b32 v11, v13, s60, v11")
    for i in range(4):
        e(f"s_waitcnt lgkmcnt({3-i})")
        e(f"v_add_lshl_u32 v{14+i}, v{14+i}, v{18+i}, 3")
    for i in range(4):
        e(f"ds_write2_b32 v{14+i}, v{8+i}, v{4+i} offset0:0 offset1:1")
    e("P_SKIP4:")
    e("s_mov_b64 exec, -1")
    e("s_waitcnt lgkmcnt(0)")
    e("s_barrier")
    e("v_lshlrev_b32 v30, 4, v0")
    e("ds_read_b128 v[32:35], v30 offset:1024")
    e(f"s_mul_i32 s52, s2, {CHB}")
    e(f"s_add_u32 s53, s52, 0x4000")
    e(f"s_cmp_ge_u32 s{S_TAU}, {(CHB//16 - 1024)//64}")
    e("s_cbranch_scc1 P_SKIP5")
    e(f"ds_read_b128 v[36:39], v30 offset:{1024+16384}")
    e("s_waitcnt lgkmcnt(0)")
    e("buffer_store_dwordx4 v[36:39], v30, s[16:19], s53 offen sc1")
    e("P_SKIP5:")
    e("s_waitcnt lgkmcnt(0)")
    e("buffer_store_dwordx4 v[32:35], v30, s[16:19], s52 offen sc1")
    e("P_END:")


def issue_gather(slot, src=None):
    src = SRC4 if src is None else src
    for i in range(4):
        e(f"s_add_u32 m0, s{S_SB}, {slot*4096 + i*1024}")
        e(f"v_mad_u32_u16 v{GOFF+i}, v{src+i}, s{S_128}, v{LOFF+i}")
        e(f"buffer_load_dwordx4 v{GOFF+i}, s[12:15], 0 offen lds")


def next_slot(q):
    e(f"s_ff1_i32_b32 s{q}, s{S_MSK}")
    e(f"s_max_i32 s{q}, s{q}, 0")
    e(f"s_bitset0_b32 s{S_MSK}, s{q}")
    e(f"s_lshl_b32 s{q}, s{q}, 7")


def main_loop(p):
    e(f"s_bcnt1_i32_b32 s{S_REM}, s{S_MSK}")
    e(f"s_cmp_eq_u32 s{S_REM}, 0")
    e(f"s_cbranch_scc1 {p}_DONE")
    if PRIO:
        e("s_setprio 3")
    next_slot(S_Q0)
    e(f"v_add_u32 v{T0}, s{S_Q0}, v{ASRC}")
    e(f"ds_read_b128 v[{SRC4}:{SRC4+3}], v{T0}")
    next_slot(S_Q1)
    e(f"v_add_u32 v{T0+1}, s{S_Q1}, v{ASRC}")
    e(f"ds_read_b128 v[{E8}:{E8+3}], v{T0+1}")
    next_slot(S_Q2)
    e("s_waitcnt lgkmcnt(1)")
    issue_gather(0)
    e(f"s_cmp_lt_u32 s{S_REM}, 2")
    e(f"s_cbranch_scc1 {p}_LOOP0")
    e("s_waitcnt lgkmcnt(0)")
    issue_gather(1, E8)
    for P in range(2):
        e(f"{p}_LOOP{P}:")
        e(f"s_lshr_b32 s{S_TMP}, s{S_Q0}, 1")
        e(f"v_add_u32 v{T0}, s{S_Q0}, v{AEW}")
        e(f"v_add_u32 v{T0+1}, s{S_TMP}, v{AOH}")
        e(f"v_add_u32 v{T0+2}, s{S_Q2}, v{ASRC}")
        e(f"ds_read_b128 v[{E8}:{E8+3}], v{T0}")
        e(f"ds_read_b128 v[{E8+4}:{E8+7}], v{T0} offset:16")
        e(f"ds_read_b128 v[{OH4}:{OH4+3}], v{T0+1}")
        e(f"ds_read_b128 v[{SRC4}:{SRC4+3}], v{T0+2}")
        e(f"s_mov_b32 s{S_Q0}, s{S_Q1}")
        e(f"s_mov_b32 s{S_Q1}, s{S_Q2}")
        next_slot(S_Q2)
        if PRIO:
            for th, pr in PRTH:
                e(f"s_cmp_eq_u32 s{S_REM}, {th}")
                e(f"s_cbranch_scc0 {p}_PR{P}_{th}")
                e(f"s_setprio {pr}")
                e(f"{p}_PR{P}_{th}:")
        e(f"s_cmp_eq_u32 s{S_REM}, 1")
        e(f"s_cbranch_scc1 {p}_W0_{P}")
        e("s_waitcnt vmcnt(4)")
        e(f"s_branch {p}_W1_{P}")
        e(f"{p}_W0_{P}:")
        e("s_waitcnt vmcnt(0)")
        e(f"{p}_W1_{P}:")
        for t in range(4):
            for h in range(2):
                r = A + t * 4 + h * 2
                e(f"ds_read_b64_tr_b16 v[{r}:{r+1}], v{TRA+t} offset:{P*4096 + h*256}")
        e("s_waitcnt lgkmcnt(9)")
        for i in range(4):
            e(f"v_pk_lshlrev_b16 v{BF+i}, v{SHAMT}, v{OH4+i}")
            e(f"v_perm_b32 v{E8+2*i}, v{E8+2*i+1}, v{E8+2*i}, s{S_PERM}")
        for i in range(4):
            e(f"v_pk_ashrrev_i16 v{BF+i}, s{S_F}, v{BF+i}")
        for i in range(4):
            e(f"v_and_b32 v{BF+i}, v{BF+i}, v{E8+2*i}")
        e("s_waitcnt lgkmcnt(0)")
        e(f"s_cmp_lt_u32 s{S_REM}, 3")
        e(f"s_cbranch_scc1 {p}_NI_{P}")
        issue_gather(P)
        e(f"{p}_NI_{P}:")
        for t in range(4):
            a = A + t * 4
            c = ACC + t * 4
            e(f"v_mfma_f32_16x16x32_bf16 v[{c}:{c+3}], v[{a}:{a+3}], v[{BF}:{BF+3}], v[{c}:{c+3}]")
        e(f"s_sub_u32 s{S_REM}, s{S_REM}, 1")
        e(f"s_cmp_eq_u32 s{S_REM}, 0")
        e(f"s_cbranch_scc1 {p}_DONE")
        if P == 1:
            e(f"s_branch {p}_LOOP0")
    e(f"{p}_DONE:")
    if PRIO:
        e("s_setprio 0")


def set_list_ptrs():
    e(f"v_and_b32 v{T0}, 8, v1")
    e(f"v_lshlrev_b32 v{T0}, 2, v{T0}")
    e(f"v_and_b32 v{T0+1}, 16, v1")
    e(f"v_or_b32 v{T0}, v{T0}, v{T0+1}")
    e(f"v_and_b32 v{T0+1}, 32, v1")
    e(f"v_lshl_or_b32 v{T0}, v{T0+1}, 1, v{T0}")
    e(f"v_add_u32 v{ASRC}, s{S_LB}, v{T0}")
    e(f"v_and_b32 v{T0}, 48, v1")
    e(f"v_lshl_add_u32 v{AEW}, v{T0}, 1, s{S_LB}")
    e(f"s_sub_u32 s{S_TMP}, s{S_LB}, {L_LA}")
    e(f"s_lshr_b32 s{S_TMP}, s{S_TMP}, 1")
    e(f"s_add_u32 s{S_TMP}, s{S_TMP}, {L_LB}")
    e(f"v_add_u32 v{AOH}, s{S_TMP}, v{T0}")


def lane_constants():
    set_list_ptrs()
    e(f"v_and_b32 v{T0}, 7, v1")
    for i in range(4):
        e(f"v_xor_b32 v{LOFF+i}, {2*i}, v{T0}")
        e(f"v_lshlrev_b32 v{LOFF+i}, 4, v{LOFF+i}")
    e(f"v_bfe_u32 v{T0}, v1, 2, 2")
    e(f"v_lshlrev_b32 v{T0+1}, 10, v{T0}")
    e(f"v_and_b32 v{T0+2}, 16, v1")
    e(f"v_lshl_add_u32 v{T0+1}, v{T0+2}, 3, v{T0+1}")
    e(f"v_and_b32 v{T0+2}, 32, v1")
    e(f"v_lshl_add_u32 v{T0+1}, v{T0+2}, 4, v{T0+1}")
    e(f"v_and_b32 v{T0+2}, 3, v1")
    e(f"v_lshl_add_u32 v{T0+1}, v{T0+2}, 3, v{T0+1}")
    e(f"v_add_u32 v{T0+1}, s{S_SB}, v{T0+1}")
    for t in range(4):
        e(f"v_xor_b32 v{T0+2}, {t}, v{T0}")
        e(f"v_lshl_add_u32 v{TRA+t}, v{T0+2}, 5, v{T0+1}")
    e(f"v_and_b32 v{T0}, 15, v1")
    e(f"v_sub_u32 v{T0}, 15, v{T0}")
    e(f"v_lshl_or_b32 v{SHAMT}, v{T0}, 16, v{T0}")
    for i in range(16):
        e(f"v_mov_b32 v{ACC+i}, 0")
    e(f"v_lshrrev_b32 v{T0}, 4, v0")
    e(f"v_and_b32 v{J16}, 15, v0")
    e(f"v_mul_u32_u24 v{GBASE}, {4*CHB}, v{T0}")
    e(f"v_lshl_add_u32 v{GBASE}, v{J16}, 3, v{GBASE}")
    e(f"s_lshl_b32 s{S_TMP}, s{S_B}, 2")
    e(f"s_add_u32 s{S_TMP}, s{S_TMP}, {WS_TABLE}")
    e(f"v_lshlrev_b32 v{POS}, 12, v{T0}")
    e(f"v_add_u32 v{POS}, s{S_TMP}, v{POS}")
    e(f"v_mov_b32 v{T0+1}, 0x7f000000")
    e(f"v_lshlrev_b32 v{T0}, 2, v{T0}")
    e(f"v_cmp_gt_u32 vcc, {NCH-2}, v{T0}")
    e("s_nop 1")
    e(f"v_cndmask_b32 v{DESC+2}, v{T0+1}, v{POS}, vcc")
    e(f"v_cmp_gt_u32 vcc, {NCH}, v{T0}")
    e("s_nop 1")
    e(f"v_cndmask_b32 v{DESC}, v{T0+1}, v{POS}, vcc")


def entry_loads():
    e(f"s_lshl_b32 s{S_TMP+1}, s{S_W32}, 3")
    e(f"v_add_u32 v{T0+3}, 16, v{J16}")
    e(f"v_mov_b32 v{T0+4}, 0x7f000000")
    e(f"v_mov_b32 v{T0+6}, 0")
    for r in range(4):
        m0 = S_MASK + 4 * r
        m1 = m0 + 2
        e(f"s_waitcnt vmcnt({3 - r + 2*r})")
        e(f"v_lshrrev_b32 v{T0}, 16, v{DESC+r}")
        e(f"v_subrev_u32 v{T0}, s{S_W32}, v{T0}")
        e(f"v_max_i32 v{T0+6}, v{T0+6}, v{T0}")
        e(f"v_cmp_gt_i32 s[{m0}:{m0+1}], v{T0}, v{J16}")
        e(f"v_cmp_gt_i32 s[{m1}:{m1+1}], v{T0}, v{T0+3}")
        e(f"v_and_b32 v{T0+1}, 0xffff, v{DESC+r}")
        e(f"v_lshl_add_u32 v{T0+1}, v{T0+1}, 3, v{GBASE}")
        e(f"s_add_u32 s{S_TMP}, s{S_TMP+1}, {r*CHB}")
        e(f"v_cndmask_b32 v{T0+2}, v{T0+4}, v{T0+1}, s[{m0}:{m0+1}]")
        e(f"v_cndmask_b32 v{T0+5}, v{T0+4}, v{T0+1}, s[{m1}:{m1+1}]")
        en0 = EN + 4 * r
        e(f"buffer_load_dwordx2 v[{en0}:{en0+1}], v{T0+2}, s[16:19], s{S_TMP} offen")
        e(f"buffer_load_dwordx2 v[{en0+2}:{en0+3}], v{T0+5}, s[16:19], s{S_TMP} offen offset:128")


def pad_code():
    e(f"s_sub_i32 s{S_TMP}, s{S_CNT}, s{S_U}")
    e(f"s_max_i32 s{S_TMP}, s{S_TMP}, 0")
    e(f"s_min_i32 s{S_TMP}, s{S_TMP}, {TCAP}")
    e(f"s_add_u32 s{S_REM}, s{S_TMP}, 31")
    e(f"s_lshr_b32 s{S_REM}, s{S_REM}, 5")
    e(f"s_lshl_b32 s{S_TMP+1}, s{S_REM}, 5")
    e(f"v_add_u32 v{T0}, s{S_TMP}, v1")
    e(f"v_cmp_gt_u32 vcc, s{S_TMP+1}, v{T0}")
    e(f"s_sub_u32 s{S_TMP+1}, s{S_LB}, {L_LA}")
    e(f"v_lshl_add_u32 v{T0+1}, v{T0}, 2, s{S_TMP+1}")
    e(f"v_lshrrev_b32 v{T0+2}, 1, v{T0+1}")
    e(f"v_mov_b32 v{T0+3}, 0xffff")
    e("s_mov_b64 exec, vcc")
    e(f"ds_write_b32 v{T0+1}, v{T0+3} offset:{L_LA}")
    e(f"ds_write_b16 v{T0+2}, v{ZERO} offset:{L_LB}")
    e("s_mov_b64 exec, -1")


def xw_loads():
    e(f"s_cmp_ge_u32 s{S_TAU}, 13")
    e("s_cbranch_scc1 XW_W")
    e(f"v_and_b32 v{T0}, 15, v1")
    e(f"v_lshlrev_b32 v{T0}, 7, v{T0}")
    e(f"v_and_b32 v{T0+1}, 48, v1")
    e(f"v_lshl_add_u32 v{T0}, v{T0+1}, 1, v{T0}")
    e(f"buffer_load_dwordx4 v[{XT}:{XT+3}], v{T0}, s[20:23], s{S_TOFF} offen")
    e(f"buffer_load_dwordx4 v[{XT+4}:{XT+7}], v{T0}, s[20:23], s{S_TOFF} offen offset:16")
    e("s_branch XW_END")
    e("XW_W:")
    e(f"s_sub_u32 s{S_TMP}, s{S_TAU}, 13")
    e(f"s_lshl_b32 s{S_TMP}, s{S_TMP}, 13")
    for j in range(2):
        e(f"s_add_u32 m0, s{S_TMP}, {L_WF + j*4096}")
        e(f"s_add_u32 s{S_TMP+1}, s{S_TMP}, {WS_WF + j*4096}")
        for i in range(4):
            e(f"buffer_load_dwordx4 v{L16}, s[16:19], s{S_TMP+1} offen offset:{i*1024} lds")
    e("XW_END:")


def fast_sort():
    e(f"s_mov_b32 s{S_W32}, 0")
    e("FS_WIN:")
    entry_loads()
    e(f"s_movk_i32 s{S_TMP+2}, {TLA}")
    for k in range(8):
        en = EN + 2 * k
        m = S_MASK + 2 * k
        e(f"s_waitcnt vmcnt({7-k})")
        e(f"s_mov_b64 exec, s[{m}:{m+1}]")
        if k & 1:
            e(f"s_cbranch_execz FS_RK{k}")
        e(f"v_subrev_u32 v{en+1}, s{S_NB0}, v{en+1}")
        e(f"v_mad_u32_u16 v{T0}, v{en}, s{S_K}, 0")
        e(f"v_lshrrev_b32 v{T0+1}, 4, v{en+1}")
        e(f"v_lshrrev_b32 v{T0}, 26, v{T0}")
        e(f"v_lshl_add_u32 v{T0+2}, v{T0+1}, 2, v{T0}")
        e(f"v_lshlrev_b32 v{T0+2}, 2, v{T0+2}")
        e(f"ds_add_rtn_u32 v{POS+k}, v{T0+2}, v{FOUR}")
        e(f"v_mul_u32_u24 v{T0+1}, s{S_TMP+2}, v{T0+1}")
        e(f"v_lshl_add_u32 v{A+k}, v{T0}, 9, v{T0+1}")
        e(f"v_and_b32 v{en+1}, 15, v{en+1}")
        e(f"v_lshlrev_b32 v{en+1}, v{en+1}, v{ONE}")
        if k & 1:
            e(f"FS_RK{k}:")
    e("s_waitcnt lgkmcnt(0)")
    e(f"s_movk_i32 s{S_TMP+2}, 508")
    for k in range(8):
        en = EN + 2 * k
        m = S_MASK + 2 * k
        e(f"s_mov_b64 exec, s[{m}:{m+1}]")
        if k & 1:
            e(f"s_cbranch_execz FS_WR{k}")
        e(f"v_min_u32 v{POS+k}, s{S_TMP+2}, v{POS+k}")
        e(f"v_add_u32 v{POS+k}, v{POS+k}, v{A+k}")
        e(f"v_lshrrev_b32 v{A+k}, 1, v{POS+k}")
        e(f"ds_write_b32 v{POS+k}, v{en} offset:{L_LA}")
        e(f"ds_write_b16 v{A+k}, v{en+1} offset:{L_LB}")
        if k & 1:
            e(f"FS_WR{k}:")
    e("s_mov_b64 exec, -1")
    e(f"v_cmp_lt_i32 vcc, 32, v{T0+6}")
    e(f"s_add_u32 s{S_W32}, s{S_W32}, 32")
    e("s_cbranch_vccnz FS_WIN")
    xw_loads()
    e(f"v_lshlrev_b32 v{T0}, 2, v1")
    e("s_waitcnt lgkmcnt(0)")
    e("s_barrier")
    stamp(4)
    e(f"ds_read_b32 v{T0+4}, v{T0} offset:{L_BINS}")
    e(f"s_lshl_b32 s{S_TMP+3}, s{S_TAU}, 2")
    e(f"s_sub_u32 s{S_TMP+4}, s{S_LB}, {L_LA}")
    e(f"s_mov_b32 s{S_MSK}, 0")
    e(f"v_mov_b32 v{T0+3}, 0xffff")
    e("s_waitcnt lgkmcnt(0)")
    e(f"v_cmp_lt_u32 vcc, 0x200, v{T0+4}")
    e(f"s_mov_b32 s{S_FAST}, 0")
    e("s_cbranch_vccnz A_START0")
    e(f"s_mov_b32 s{S_FAST}, 1")
    e(f"s_cmp_ge_u32 s{S_TAU}, 13")
    e("s_cbranch_scc1 FS_END")
    for b_ in range(3):
        e(f"s_add_u32 s{S_TMP}, s{S_TMP+3}, {b_}")
        e("s_nop 0")
        e(f"v_readlane_b32 s{S_TMP}, v{T0+4}, s{S_TMP}")
        e("s_nop 0")
        e(f"s_add_u32 s{S_TMP+1}, s{S_TMP}, 127")
        e(f"s_lshr_b32 s{S_TMP+1}, s{S_TMP+1}, 7")
        e(f"s_bfm_b32 s{S_TMP+2}, s{S_TMP+1}, {4*b_}")
        e(f"s_or_b32 s{S_MSK}, s{S_MSK}, s{S_TMP+2}")
        e(f"s_lshl_b32 s{S_TMP+1}, s{S_TMP+1}, 7")
        e(f"v_add_u32 v{T0+1}, s{S_TMP}, v{T0}")
        e(f"v_cmp_gt_u32 vcc, s{S_TMP+1}, v{T0+1}")
        e(f"v_add_u32 v{T0+1}, s{S_TMP+4}, v{T0+1}")
        e(f"v_lshrrev_b32 v{T0+2}, 1, v{T0+1}")
        e("s_mov_b64 exec, vcc")
        e(f"ds_write_b32 v{T0+1}, v{T0+3} offset:{L_LA + 512*b_}")
        e(f"ds_write_b16 v{T0+2}, v{ZERO} offset:{L_LB + 256*b_}")
        e("s_mov_b64 exec, -1")
    e("FS_END:")
    e(f"s_mov_b32 s{S_HDR}, s{S_MSK}")
    e(f"s_mov_b32 s{S_U}, 0")
    e(f"s_mov_b32 s{S_MAXC}, 0")
    e(f"s_mov_b32 s{S_MORE}, 0")
    stamp(5)
    e("s_branch A_ML")
    e("A_START0:")
    e("s_barrier")


def generic_sort_and_loop(p):
    e(f"{p}_START:")
    e(f"s_mov_b32 s{S_W32}, 0")
    e(f"s_mov_b32 s{S_NWIN}, 0")
    e(f"{p}_WIN:")
    e(f"v_lshlrev_b32 v{T0}, 2, v0")
    e("v_cmp_gt_u32 vcc, 130, v0")
    e(f"s_and_saveexec_b64 s[{S_X}:{S_X+1}], vcc")
    e(f"ds_write_b32 v{T0}, v{ZERO}")
    e(f"s_mov_b64 exec, s[{S_X}:{S_X+1}]")
    entry_loads()
    e("s_waitcnt lgkmcnt(0)")
    e("s_barrier")
    e(f"v_cmp_lt_i32 vcc, 32, v{T0+6}")
    e(f"s_and_saveexec_b64 s[{S_X}:{S_X+1}], vcc")
    e(f"v_mov_b32 v{T0}, {L_MORE}")
    e(f"ds_write_b32 v{T0}, v{ONE}")
    e(f"s_mov_b64 exec, s[{S_X}:{S_X+1}]")
    e(f"s_movk_i32 s{S_TMP+2}, {TLA}")
    for k in range(8):
        en = EN + 2 * k
        ba = A + k
        m = S_MASK + 2 * k
        e(f"s_waitcnt vmcnt({7-k})")
        e(f"s_mov_b64 exec, s[{m}:{m+1}]")
        if k & 1:
            e(f"s_cbranch_execz {p}_RK{k}")
        e(f"v_subrev_u32 v{en+1}, s{S_NB0}, v{en+1}")
        e(f"v_mad_u32_u16 v{T0}, v{en}, 21, s{S_ROT}")
        e(f"v_lshrrev_b32 v{T0+1}, 4, v{en+1}")
        e(f"v_bfe_u32 v{T0}, v{T0}, 17, 3")
        e(f"v_lshl_add_u32 v{ba}, v{T0+1}, 3, v{T0}")
        e(f"v_lshlrev_b32 v{ba}, 2, v{ba}")
        e(f"ds_add_rtn_u32 v{POS+k}, v{ba}, v{FOUR}")
        e(f"v_and_b32 v{T0}, 15, v{en+1}")
        e(f"v_lshlrev_b32 v{T0}, v{T0}, v{ONE}")
        e(f"v_mul_u32_u24 v{T0+1}, s{S_TMP+2}, v{T0+1}")
        e(f"v_lshl_or_b32 v{en+1}, v{T0}, 16, v{T0+1}")
        if k & 1:
            e(f"{p}_RK{k}:")
    e("s_mov_b64 exec, -1")
    e("s_waitcnt lgkmcnt(0)")
    e("s_barrier")
    e(f"s_mov_b32 s{S_CNT}, 0")
    e(f"s_cmp_ge_u32 s{S_TAU}, s{S_NT}")
    e(f"s_cbranch_scc1 {p}_NOSCAN")
    e(f"s_lshl_b32 s{S_TMP}, s{S_TAU}, 5")
    e(f"v_lshlrev_b32 v{T0}, 2, v1")
    e(f"v_add_u32 v{T0}, s{S_TMP}, v{T0}")
    e(f"v_mov_b32 v{T0+1}, 0")
    e("s_mov_b64 exec, 0xff")
    e(f"ds_read_b32 v{T0+1}, v{T0} offset:{L_BINS}")
    e("s_mov_b64 exec, -1")
    e(f"s_sub_u32 s{S_TMP+1}, s{S_LB}, {L_LA}")
    e("s_waitcnt lgkmcnt(0)")
    e(f"v_mov_b32 v{T0+2}, v{T0+1}")
    wave_scan(T0 + 2, full=False)
    e(f"v_sub_u32 v{T0+3}, v{T0+2}, v{T0+1}")
    e(f"v_readlane_b32 s{S_CNT}, v{T0+2}, 7")
    e(f"v_add_u32 v{T0+3}, s{S_TMP+1}, v{T0+3}")
    e("s_mov_b64 exec, 0xff")
    e(f"ds_write_b32 v{T0}, v{T0+3} offset:{L_BINS}")
    e(f"s_lshr_b32 s{S_CNT}, s{S_CNT}, 2")
    e("s_mov_b64 exec, 1")
    e(f"v_mov_b32 v{T0}, {L_MAXC}")
    e(f"v_mov_b32 v{T0+1}, s{S_CNT}")
    e(f"ds_max_u32 v{T0}, v{T0+1}")
    e("s_mov_b64 exec, -1")
    e(f"{p}_NOSCAN:")
    e(f"s_mov_b32 s{S_U}, 0")
    pad_code()
    e("s_waitcnt lgkmcnt(0)")
    e("s_barrier")
    e(f"v_mov_b32 v{T0}, {L_MAXC}")
    e(f"ds_read_b64 v[{T0+1}:{T0+2}], v{T0}")
    for k in range(8):
        m = S_MASK + 2 * k
        e(f"s_mov_b64 exec, s[{m}:{m+1}]")
        e(f"ds_read_b32 v{A+k}, v{A+k}")
    e("s_mov_b64 exec, -1")
    e("s_waitcnt lgkmcnt(0)")
    e(f"v_readfirstlane_b32 s{S_MAXC}, v{T0+1}")
    e(f"v_readfirstlane_b32 s{S_MORE}, v{T0+2}")
    e(f"s_cmp_gt_u32 s{S_MAXC}, {TCAP}")
    e(f"s_cbranch_scc1 {p}_SLOWSC")
    for k in range(8):
        en = EN + 2 * k
        m = S_MASK + 2 * k
        e(f"s_mov_b64 exec, s[{m}:{m+1}]")
        if k & 1:
            e(f"s_cbranch_execz {p}_FS{k}")
        e(f"v_add_u32 v{POS+k}, v{POS+k}, v{A+k}")
        e(f"v_lshrrev_b32 v{A+k}, 1, v{POS+k}")
        e(f"ds_write_b32 v{POS+k}, v{en} offset:{L_LA}")
        e(f"ds_write_b16_d16_hi v{A+k}, v{en+1} offset:{L_LB}")
        if k & 1:
            e(f"{p}_FS{k}:")
    e("s_mov_b64 exec, -1")
    e(f"s_branch {p}_SCDONE")
    e(f"{p}_SLOWSC:")
    for k in range(8):
        e(f"v_add_u32 v{POS+k}, v{POS+k}, v{A+k}")
    e(f"{p}_SUB:")
    e(f"s_lshl_b32 s{S_TMP}, s{S_U}, 2")
    for k in range(8):
        en = EN + 2 * k
        m = S_MASK + 2 * k
        e(f"v_and_b32 v{T0+1}, 0xffff, v{en+1}")
        e(f"v_subrev_u32 v{T0}, s{S_TMP}, v{POS+k}")
        e(f"v_sub_u32 v{T0+1}, v{T0}, v{T0+1}")
        e(f"v_cmp_gt_u32 vcc, {TLA}, v{T0+1}")
        e(f"v_lshrrev_b32 v{T0+2}, 1, v{T0}")
        e(f"s_and_b64 exec, vcc, s[{m}:{m+1}]")
        e(f"ds_write_b32 v{T0}, v{en} offset:{L_LA}")
        e(f"ds_write_b16_d16_hi v{T0+2}, v{en+1} offset:{L_LB}")
        e("s_mov_b64 exec, -1")
    pad_code()
    e(f"{p}_SCDONE:")
    e(f"s_bfm_b32 s{S_MSK}, s{S_REM}, 0")
    e("s_waitcnt lgkmcnt(0)")
    e("s_barrier")
    e(f"{p}_ML:")
    main_loop(p + "G")
    e(f"s_add_u32 s{S_NWIN}, s{S_NWIN}, 1")
    e(f"s_add_u32 s{S_U}, s{S_U}, {TCAP}")
    e(f"s_cmp_lt_u32 s{S_U}, s{S_MAXC}")
    e(f"s_cbranch_scc0 {p}_SUBDONE")
    e("s_barrier")
    e(f"s_branch {p}_SUB")
    e(f"{p}_SUBDONE:")
    e(f"s_cmp_eq_u32 s{S_MORE}, 0")
    e(f"s_cbranch_scc1 {p}_WINDONE")
    e(f"s_add_u32 s{S_W32}, s{S_W32}, 32")
    e("s_barrier")
    e(f"s_branch {p}_WIN")
    e(f"{p}_WINDONE:")


def tile_store(regs, srdn, base_off, mods, lbl):
    e(f"v_and_b32 v{T0}, 15, v1")
    e(f"v_lshlrev_b32 v{T0}, 7, v{T0}")
    e(f"v_and_b32 v{T0+1}, 48, v1")
    e(f"v_lshl_add_u32 v{T0}, v{T0+1}, 1, v{T0}")
    e(f"v_add_u32 v{T0}, s{S_SB}, v{T0}")
    e(f"ds_write_b128 v{T0}, v[{regs}:{regs+3}]")
    e(f"ds_write_b128 v{T0}, v[{regs+4}:{regs+7}] offset:16")
    e(f"v_add_u32 v{T0+1}, s{S_SB}, v{L16}")
    e(f"s_add_u32 s{S_TMP}, s{S_TOFF}, {base_off}")
    e(f"s_sub_i32 s{S_TMP+1}, s{S_ROWB}, 1024")
    e(f"v_cmp_gt_i32 vcc, s{S_TMP+1}, v{L16}")
    e(f"v_cmp_gt_i32 s[{S_X}:{S_X+1}], s{S_ROWB}, v{L16}")
    e("s_waitcnt lgkmcnt(0)")
    e(f"ds_read_b128 v[{A}:{A+3}], v{T0+1}")
    e(f"ds_read_b128 v[{A+4}:{A+7}], v{T0+1} offset:1024")
    e(f"s_mov_b64 exec, s[{S_X}:{S_X+1}]")
    e("s_waitcnt lgkmcnt(1)")
    e(f"buffer_store_dwordx4 v[{A}:{A+3}], v{L16}, s[{srdn}:{srdn+3}], s{S_TMP} offen{mods}")
    e("s_mov_b64 exec, vcc")
    e(f"s_cbranch_execz {lbl}")
    e("s_waitcnt lgkmcnt(0)")
    e(f"buffer_store_dwordx4 v[{A+4}:{A+7}], v{L16}, s[{srdn}:{srdn+3}], s{S_TMP} offen offset:1024{mods}")
    e(f"{lbl}:")
    e("s_mov_b64 exec, -1")


def gemm_xt1(dst):
    e(f"v_add_u32 v{T0+1}, {L_WF}, v{L16}")
    WB = [A, BF]
    steps = [(0, 0), (0, 1), (1, 0), (1, 1)]
    Bsrc = {0: XT, 1: T1T}

    def ldw(idx):
        k, s_ = steps[idx]
        wb = WB[idx & 1]
        for t in range(4):
            f = k * 8 + s_ * 4 + t
            e(f"ds_read_b128 v[{wb+4*t}:{wb+4*t+3}], v{T0+1} offset:{f*1024}")
    ldw(0)
    for idx in range(4):
        if idx + 1 < 4:
            ldw(idx + 1)
            e("s_waitcnt lgkmcnt(4)")
        else:
            e("s_waitcnt lgkmcnt(0)")
        k, s_ = steps[idx]
        wb = WB[idx & 1]
        b = Bsrc[k] + 4 * s_
        for t in range(4):
            c = dst + 4 * t
            src_c = "0" if idx == 0 else f"v[{c}:{c+3}]"
            e(f"v_mfma_f32_16x16x32_bf16 v[{c}:{c+3}], v[{wb+4*t}:{wb+4*t+3}], v[{b}:{b+3}], {src_c}")


def gen():
    name = "standalone__spectral_conv_chebnet__graph_kernel"
    e(".text")
    e(f".globl {name}")
    e(".p2align 8")
    e(f".type {name},@function")
    e(f"{name}:")
    e(f"s_cmp_ge_u32 s2, {NB}")
    e("s_cbranch_scc1 K_END")
    e("s_load_dwordx2 s[4:5], s[0:1], 0")
    e("s_load_dwordx2 s[6:7], s[0:1], 56")
    e("s_load_dwordx4 s[8:11], s[0:1], 40")
    e("v_and_b32 v1, 63, v0")
    e(f"v_lshrrev_b32 v{T0}, 6, v0")
    e(f"v_lshlrev_b32 v{L16}, 4, v1")
    e(f"v_readfirstlane_b32 s{S_TAU}, v{T0}")
    e(f"v_mov_b32 v{ONE}, 1")
    e(f"v_mov_b32 v{ZERO}, 0")
    phase0()
    stamp(2)
    e(f"s_and_b32 s{S_B}, s2, 7")
    e(f"s_lshl_b32 s{S_ROT}, s{S_B}, 17")
    e(f"s_mov_b32 s{S_ROT}, 0")
    e(f"s_lshl_b32 s{S_B}, s{S_B}, 5")
    e(f"s_lshr_b32 s{S_TMP}, s2, 3")
    e(f"s_add_u32 s{S_B}, s{S_B}, s{S_TMP}")
    e(f"s_mul_i32 s{S_NB0}, s{S_B}, {BN}")
    e(f"s_sub_u32 s{S_TMP}, {N}, s{S_NB0}")
    e(f"s_min_u32 s{S_TMP}, s{S_TMP}, {BN}")
    e(f"s_add_u32 s{S_NT}, s{S_TMP}, 15")
    e(f"s_lshr_b32 s{S_NT}, s{S_NT}, 4")
    e(f"s_lshl_b32 s{S_TMP+1}, s{S_TAU}, 4")
    e(f"s_sub_i32 s{S_ROWB}, s{S_TMP}, s{S_TMP+1}")
    e(f"s_min_i32 s{S_ROWB}, s{S_ROWB}, 16")
    e(f"s_lshl_b32 s{S_ROWB}, s{S_ROWB}, 7")
    e(f"s_add_u32 s{S_TOFF}, s{S_NB0}, s{S_TMP+1}")
    e(f"s_lshl_b32 s{S_TOFF}, s{S_TOFF}, 7")
    e(f"v_mov_b32 v{FOUR}, 4")
    e(f"s_movk_i32 s{S_128}, 128")
    e(f"s_mov_b32 s{S_F}, 0x000f000f")
    e(f"s_mov_b32 s{S_PERM}, 0x07060302")
    e(f"s_min_u32 s{S_TMP}, s{S_TAU}, 12")
    e(f"s_lshl_b32 s{S_SB}, s{S_TMP}, 13")
    e(f"s_add_u32 s{S_SB}, s{S_SB}, {L_STAGE}")
    e(f"s_mul_i32 s{S_LB}, s{S_TMP}, {TLA}")
    e(f"s_add_u32 s{S_LB}, s{S_LB}, {L_LA}")
    e(f"s_mov_b32 s{S_PASS}, 1")
    e(f"s_movk_i32 s{S_K}, 4026")
    srd(12, 4, 5, N * 128)
    srd(24, 8, 9, N * 128)
    lane_constants()

    def between1():
        e(f"s_cmp_eq_u32 s{S_TAU}, 0")
        e("s_cbranch_scc0 B1_END")
        e(f"v_lshlrev_b32 v{T0}, 2, v1")
        e(f"ds_write_b32 v{T0}, v{ZERO} offset:{L_BINS}")
        e("s_waitcnt lgkmcnt(0)")
        e("B1_END:")
    grid_barrier(0, between1)
    stamp(3)
    e(f"v_mov_b32 v{T0}, v{DESC}")
    e(f"v_mov_b32 v{T0+1}, v{DESC+2}")
    e(f"buffer_load_dword v{DESC}, v{T0}, s[16:19], 0 offen")
    e(f"buffer_load_dword v{DESC+1}, v{T0}, s[16:19], 0 offen offset:1024")
    e(f"buffer_load_dword v{DESC+2}, v{T0+1}, s[16:19], 0 offen offset:2048")
    e(f"buffer_load_dword v{DESC+3}, v{T0+1}, s[16:19], 0 offen offset:3072")
    fast_sort()
    generic_sort_and_loop("A")
    e(f"s_cmp_eq_u32 s{S_PASS}, 2")
    e("s_cbranch_scc1 EPI")
    stamp(6)
    e(f"s_cmp_ge_u32 s{S_TAU}, s{S_NT}")
    e("s_cbranch_scc1 T1_DONE")
    e("s_nop 7")
    for t in range(4):
        e(f"v_cvt_pk_bf16_f32 v{T1T+2*t}, v{ACC+4*t}, v{ACC+4*t+1}")
        e(f"v_cvt_pk_bf16_f32 v{T1T+2*t+1}, v{ACC+4*t+2}, v{ACC+4*t+3}")
    tile_store(T1T, 16, WS_T1P, " sc1", "TS1")
    e("T1_DONE:")
    for i in range(16):
        e(f"v_mov_b32 v{ACC+i}, 0")
    srd_off(12, 6, 7, WS_T1P, N * 128)
    e(f"s_mov_b32 s{S_PASS}, 2")

    def between2():
        e(f"s_cmp_ge_u32 s{S_TAU}, s{S_NT}")
        e("s_cbranch_scc1 B2_END")
        e(f"s_cmp_eq_u32 s{S_FAST}, 1")
        e("s_cbranch_scc0 B2_END")
        gemm_xt1(EN)
        e("B2_END:")
    grid_barrier(1, between2)
    stamp(7)
    e(f"s_cmp_eq_u32 s{S_FAST}, 1")
    e("s_cbranch_scc0 A_START")
    e(f"s_mov_b32 s{S_MSK}, s{S_HDR}")
    e(f"s_mov_b32 s{S_MAXC}, 0")
    e(f"s_mov_b32 s{S_MORE}, 0")
    e("s_branch A_ML")
    e("EPI:")
    e(f"s_cmp_ge_u32 s{S_TAU}, s{S_NT}")
    e("s_cbranch_scc1 K_END")
    stamp(8)
    e(f"s_cmp_eq_u32 s{S_FAST}, 1")
    e("s_cbranch_scc1 EPI2")
    gemm_xt1(EN)
    e("EPI2:")
    e(f"v_add_u32 v{T0+1}, {L_WF}, v{L16}")
    for s_ in range(2):
        wb = [A, BF][s_]
        for t in range(4):
            f = 16 + s_ * 4 + t
            e(f"ds_read_b128 v[{wb+4*t}:{wb+4*t+3}], v{T0+1} offset:{f*1024}")
    e(f"s_mov_b32 s{S_TMP+2}, 0xffff0000")
    e("s_nop 3")
    T2 = POS
    TMPA = SRC4
    for i in range(8):
        a = ACC + 2 * i
        e(f"v_cvt_pk_bf16_f32 v{TMPA}, v{a}, v{a+1}")
        e(f"v_lshlrev_b32 v{TMPA+1}, 16, v{XT+i}")
        e(f"v_and_b32 v{TMPA+2}, s{S_TMP+2}, v{XT+i}")
        e(f"v_lshlrev_b32 v{TMPA+3}, 16, v{TMPA}")
        e(f"v_and_b32 v{TMPA+4}, s{S_TMP+2}, v{TMPA}")
        e(f"v_fma_f32 v{TMPA+3}, 2.0, v{TMPA+3}, -v{TMPA+1}")
        e(f"v_fma_f32 v{TMPA+4}, 2.0, v{TMPA+4}, -v{TMPA+2}")
        e(f"v_cvt_pk_bf16_f32 v{T2+i}, v{TMPA+3}, v{TMPA+4}")
    e("s_waitcnt lgkmcnt(0)")
    e("s_nop 1")
    for s_ in range(2):
        wb = [A, BF][s_]
        b = T2 + 4 * s_
        for t in range(4):
            c = EN + 4 * t
            e(f"v_mfma_f32_16x16x32_bf16 v[{c}:{c+3}], v[{wb+4*t}:{wb+4*t+3}], v[{b}:{b+3}], v[{c}:{c+3}]")
    e("s_nop 7")
    e("s_nop 3")
    for t in range(4):
        e(f"v_cvt_pk_bf16_f32 v{ACC+2*t}, v{EN+4*t}, v{EN+4*t+1}")
        e(f"v_cvt_pk_bf16_f32 v{ACC+2*t+1}, v{EN+4*t+2}, v{EN+4*t+3}")
    tile_store(ACC, 24, 0, "", "TS2")
    if DIAG:
        stamp(9)
        e("s_waitcnt vmcnt(0)")
        stamp(10)
        e("s_mov_b64 exec, 1")
        e(f"s_lshl_b32 s{S_TMP}, s2, 4")
        e(f"s_add_u32 s{S_TMP}, s{S_TMP}, s{S_TAU}")
        e(f"s_lshl_b32 s{S_TMP}, s{S_TMP}, 6")
        e(f"s_add_u32 s{S_TMP}, s{S_TMP}, {WS_DIAG}")
        for i in range(11):
            e(f"v_mov_b32 v{T0+1}, s{S_ST+2*i}")
            e(f"buffer_store_dword v{T0+1}, v{ZERO}, s[16:19], s{S_TMP} offen offset:{4*i}")
    if os.environ.get("DBGST"):
        e("s_cmp_eq_u32 s2, 0")
        e("s_cbranch_scc0 K_END")
        e(f"s_cmp_eq_u32 s{S_TAU}, 0")
        e("s_cbranch_scc0 K_END")
        words = [1, 2, 3, 5, 6, 7, 8, 9, 10, 11]
        for i in range(1, 11):
            e(f"s_sub_u32 s{S_TMP}, s{S_ST+2*i}, s{S_ST}")
            e(f"v_mov_b32 v{T0+1}, s{S_TMP}")
            e(f"v_mov_b32 v{T0}, {words[i-1]*4}")
            e(f"global_store_dword v{T0}, v{T0+1}, s[10:11]")
    e("K_END:")
    e("s_endpgm")
    e('.section .rodata,"a"')
    e(".p2align 6")
    e(f".amdhsa_kernel {name}")
    e(f"  .amdhsa_next_free_vgpr {NV}")
    e(f"  .amdhsa_next_free_sgpr {NS}")
    e(f"  .amdhsa_accum_offset {NV}")
    e("  .amdhsa_group_segment_fixed_size 0")
    e("  .amdhsa_kernarg_size 64")
    e("  .amdhsa_user_sgpr_count 2")
    e("  .amdhsa_user_sgpr_kernarg_segment_ptr 1")
    e("  .amdhsa_system_sgpr_workgroup_id_x 1")
    e("  .amdhsa_float_denorm_mode_32 3")
    e("  .amdhsa_float_denorm_mode_16_64 3")
    e(".end_amdhsa_kernel")


HEADER = """; Kernarg layout for this problem (64 bytes, ptrs only, base s[0:1]):
"""


def main():
    out.append(HEADER.rstrip())
    out.append(f"; @launch grid=({NB},1,1) block=(1024,1,1) lds={L_TOTAL}")
    out.append('.amdgcn_target "amdgcn-amd-amdhsa--gfx950"')
    gen()
    path = sys.argv[1] if len(sys.argv) > 1 else "standalone__spectral_conv_chebnet__graph.s"
    open(path, "w").write("\n".join(out) + "\n")


if __name__ == "__main__":
    main()
```

```python
import os
import sys

N = 50000
E = 800000
NCH = 250
CH = 3200
CHB = CH * 8
NB = 256
TCAP = 384
BN = 196
TLA = TCAP * 4
TLB = TCAP * 2

WS_ENT = 0
WS_TABLE = 0x680000
WS_T1P = 0x700000
WS_WF = 0xE00000
WS_USED = 0xE10000

L_BINS = 0
L_MAXC = 512
L_MORE = 516
L_LA = 1024
L_LB = L_LA + 13 * TLA
L_WF = L_LB + 13 * TLB
L_STAGE = L_WF + 24576
L_TOTAL = L_STAGE + 13 * 8192
assert L_STAGE % 256 == 0 and L_TOTAL <= 163840

DIAG = bool(os.environ.get("DIAG"))
PFA = int(os.environ.get("PFA", "0"))
PFB = int(os.environ.get("PFB", "0"))
PRIO = int(os.environ.get("PRIO", "1"))
PRTH = ((7, 2), (5, 1), (3, 0))
TLBW = int(os.environ.get("TLBW", "0"))
WS_DIAG = 0x1600000
if DIAG:
    WS_USED = 0x1800000

out = []


def e(s=""):
    out.append("    " + s if s and not s.endswith(":") else s)


S_ST = 80


def stamp(i):
    if DIAG:
        e("s_waitcnt lgkmcnt(0)")
        e(f"s_memrealtime s[{S_ST+2*i}:{S_ST+2*i+1}]")
        e("s_waitcnt lgkmcnt(0)")


def srd(d, plo, phi, size):
    e(f"s_mov_b32 s{d}, s{plo}")
    e(f"s_and_b32 s{d+1}, s{phi}, 0xffff")
    e(f"s_mov_b32 s{d+2}, {size}")
    e(f"s_mov_b32 s{d+3}, 0x00020000")


def srd_off(d, plo, phi, off, size):
    e(f"s_add_u32 s{d}, s{plo}, {off}")
    e(f"s_addc_u32 s{d+1}, s{phi}, 0")
    e(f"s_and_b32 s{d+1}, s{d+1}, 0xffff")
    e(f"s_mov_b32 s{d+2}, {size}")
    e(f"s_mov_b32 s{d+3}, 0x00020000")


def wave_scan(v, full=True):
    shifts = [1, 2, 4, 8] if full else [1, 2, 4]
    for sh in shifts:
        e("s_nop 1")
        e(f"v_add_u32_dpp v{v}, v{v}, v{v} row_shr:{sh} row_mask:0xf bank_mask:0xf bound_ctrl:0")
    if full:
        e("s_nop 1")
        e(f"v_add_u32_dpp v{v}, v{v}, v{v} row_bcast:15 row_mask:0xa bank_mask:0xf")
        e("s_nop 1")
        e(f"v_add_u32_dpp v{v}, v{v}, v{v} row_bcast:31 row_mask:0xc bank_mask:0xf")
    e("s_nop 1")


ACC = 4
A = 20
BF = 36
E8 = 40
OH4 = 48
SRC4 = 52
GOFF = 56
LOFF = 60
TRA = 64
ASRC = 68
AEW = 69
AOH = 70
SHAMT = 71
L16 = 72
T0 = 73
DESC = 80
EN = 84
POS = 100
XT = 108
T1T = 116
J16 = 124
GBASE = 125
ONE = 126
ZERO = 127
FOUR = 3
NV = 128

S_B, S_NB0, S_NT, S_TAU = 28, 29, 30, 31
S_128, S_F, S_SB, S_LB = 32, 33, 34, 35
S_W32, S_U, S_CNT, S_REM, S_MAXC, S_MORE = 36, 37, 38, 39, 40, 41
S_TMP = 42
S_MASK = 48
S_X = 64
S_NWIN = 66
S_HDR = 67
S_PERM = 68
S_ROT = 69
S_PASS = 70
S_SPIN = 71
S_MSK = 72
S_FAST = 73
S_ROWB = 74
S_TOFF = 75
S_Q0, S_Q1, S_Q2 = 76, 77, 78
S_K = 79
NS = 102 if DIAG else 80


def prefetch(firstkb, count, srdx, vdummy, st):
    if count == 0:
        return
    e(f"s_lshr_b32 s{st}, s2, 3")
    e(f"s_lshl_b32 s{st}, s{st}, 4")
    e(f"s_add_u32 s{st}, s{st}, s{S_TAU}")
    e(f"s_lshl_b32 s{st}, s{st}, 10")
    for k in range(count):
        e(f"s_add_u32 s{st+1}, s{st}, {(firstkb + 512*k) * 1024}")
        e(f"buffer_load_dwordx4 v[{vdummy}:{vdummy+3}], v{L16}, s[{srdx}:{srdx+3}], s{st+1} offen")


def grid_barrier(k, between=None):
    e("s_waitcnt vmcnt(0) lgkmcnt(0)")
    e("s_barrier")
    e(f"s_cmp_eq_u32 s{S_TAU}, 15")
    e(f"s_cbranch_scc1 GB{k}_POLL")
    if between:
        between()
    e(f"s_branch GB{k}_JOIN")
    e(f"GB{k}_POLL:")
    e("s_mov_b64 exec, 1")
    e(f"s_and_b32 s{S_TMP}, s2, 1")
    e(f"s_lshl_b32 s{S_TMP}, s{S_TMP}, 6")
    e(f"s_add_u32 s{S_TMP}, s{S_TMP}, {k*16}")
    e(f"v_mov_b32 v{T0}, s{S_TMP}")
    e(f"v_mov_b32 v{T0+1}, {128 + k*16}")
    e(f"global_atomic_add v{T0+2}, v{T0}, v{ONE}, s[10:11] sc0 sc1")
    e("s_waitcnt vmcnt(0)")
    e(f"v_readfirstlane_b32 s{S_TMP}, v{T0+2}")
    e(f"s_cmp_eq_u32 s{S_TMP}, {NB//2 - 1}")
    e(f"s_cbranch_scc0 GB{k}_SPIN0")
    e(f"global_atomic_add v{T0+1}, v{ONE}, s[10:11] sc1")
    e(f"GB{k}_SPIN0:")
    e(f"s_mov_b32 s{S_SPIN}, 0")
    e(f"GB{k}_SPIN:")
    e(f"global_load_dword v{T0+2}, v{T0+1}, s[10:11] sc1")
    e("s_waitcnt vmcnt(0)")
    e(f"v_readfirstlane_b32 s{S_TMP}, v{T0+2}")
    e(f"s_cmp_ge_u32 s{S_TMP}, 2")
    e(f"s_cbranch_scc1 GB{k}_DONE")
    e(f"s_add_u32 s{S_SPIN}, s{S_SPIN}, 1")
    e(f"s_cmp_ge_u32 s{S_SPIN}, 0x400000")
    e(f"s_cbranch_scc1 GB{k}_DONE")
    e("s_sleep 2")
    e(f"s_branch GB{k}_SPIN")
    e(f"GB{k}_DONE:")
    e("s_mov_b64 exec, -1")
    e(f"GB{k}_JOIN:")
    e("s_barrier")


def phase0():
    e("s_load_dwordx4 s[52:55], s[0:1], 8")
    e("s_load_dwordx4 s[56:59], s[0:1], 24")
    e(f"s_mul_i32 s3, s2, {CH*4}")
    e("v_lshlrev_b32 v2, 4, v0")
    e("v_add_u32 v2, s3, v2")
    e("v_lshrrev_b32 v3, 1, v2")
    e("v_and_b32 v24, 0xff, v0")
    e("v_lshlrev_b32 v24, 2, v24")
    e(f"ds_write_b32 v24, v{ZERO}")
    e("s_waitcnt lgkmcnt(0)")
    stamp(0)
    srd(16, 6, 7, WS_USED)
    srd(20, 4, 5, N * 128)
    srd(36, 52, 53, E * 4)
    srd(40, 54, 55, E * 4)
    srd(44, 56, 57, E * 2)
    srd(48, 58, 59, 3 * 64 * 64 * 2)
    if TLBW:
        srd(24, 8, 9, N * 128)
        e(f"s_cmp_eq_u32 s{S_TAU}, 13")
        e("s_cbranch_scc0 TLB_END")
        e("v_lshlrev_b32 v4, 20, v1")
        e("buffer_load_dword v5, v4, s[16:19], 0 offen")
        e("buffer_load_dword v6, v4, s[20:23], 0 offen")
        e("buffer_load_dword v7, v4, s[24:27], 0 offen")
        e(f"global_load_dword v8, v{ZERO}, s[10:11]")
        e("TLB_END:")
    e(f"s_cmp_ge_u32 s2, {NCH}")
    e("s_cbranch_scc1 P_END")
    e("s_mov_b32 s60, 0xffff0000")
    e(f"v_cmp_gt_u32 vcc, {CH//4}, v0")
    e("s_and_saveexec_b64 s[64:65], vcc")
    e("s_mov_b64 s[62:63], exec")
    e("s_cbranch_execz P_SKIP1")
    e("buffer_load_dwordx4 v[4:7], v2, s[40:43], 0 offen")
    e("buffer_load_dwordx4 v[8:11], v2, s[36:39], 0 offen")
    e("buffer_load_dwordx2 v[12:13], v3, s[44:47], 0 offen")
    e("P_SKIP1:")
    e("s_mov_b64 exec, -1")
    e("s_cmp_ge_u32 s2, 48")
    e("s_cbranch_scc1 P_NOW")
    e(f"s_cmp_lt_u32 s{S_TAU}, 14")
    e("s_cbranch_scc1 P_NOW")
    e("s_lshr_b32 s52, s2, 1")
    e("s_and_b32 s53, s2, 1")
    e("s_lshl_b32 s53, s53, 7")
    e("v_subrev_u32 v30, 896, v0")
    e("v_add_u32 v30, s53, v30")
    e("s_lshr_b32 s54, s52, 3")
    e("s_bfe_u32 s55, s52, 0x10002")
    e("s_and_b32 s56, s52, 3")
    e("v_and_b32 v31, 3, v30")
    e("v_bfe_u32 v32, v30, 2, 4")
    e("v_lshrrev_b32 v33, 6, v30")
    e("v_lshrrev_b32 v34, 2, v32")
    e("v_lshlrev_b32 v34, 4, v34")
    e("v_and_b32 v35, 3, v32")
    e("v_add_u32 v34, v34, v35")
    e("s_lshl_b32 s57, s56, 2")
    e("v_add_u32 v34, s57, v34")
    e("v_lshlrev_b32 v36, 4, v33")
    e("v_lshl_add_u32 v36, v31, 1, v36")
    e("s_lshl_b32 s57, s55, 3")
    e("v_add_u32 v36, s57, v36")
    e("v_lshrrev_b32 v37, 1, v31")
    e("v_lshlrev_b32 v37, 4, v37")
    e("v_lshl_add_u32 v37, v33, 2, v37")
    e("v_and_b32 v35, 1, v31")
    e("v_lshl_add_u32 v37, v35, 1, v37")
    e("s_lshl_b32 s57, s55, 5")
    e("v_add_u32 v37, s57, v37")
    e("s_cmp_eq_u32 s54, 1")
    e("s_cselect_b64 vcc, -1, 0")
    e("s_nop 1")
    e("v_cndmask_b32 v36, v36, v37, vcc")
    e("v_lshlrev_b32 v36, 7, v36")
    e("v_lshl_add_u32 v36, v34, 1, v36")
    e("s_lshl_b32 s57, s54, 13")
    e("v_add_u32 v36, s57, v36")
    e("buffer_load_ushort v37, v36, s[48:51], 0 offen")
    e("buffer_load_ushort v38, v36, s[48:51], 0 offen offset:128")
    e("s_lshl_b32 s57, s52, 10")
    e(f"s_add_u32 s57, s57, {WS_WF}")
    e("v_lshlrev_b32 v39, 2, v30")
    e("v_add_u32 v39, s57, v39")
    e("s_waitcnt vmcnt(0)")
    e("v_lshl_or_b32 v37, v38, 16, v37")
    e("buffer_store_dword v37, v39, s[16:19], 0 offen sc1")
    e("P_NOW:")
    e("s_barrier")
    e("s_mov_b64 exec, s[62:63]")
    e("s_cbranch_execz P_SKIP2")
    e("s_waitcnt vmcnt(2)")
    for i in range(4):
        e(f"v_lshrrev_b32 v{14+i}, 2, v{4+i}")
        e(f"v_mul_u32_u24 v{14+i}, 21400, v{14+i}")
        e(f"v_lshrrev_b32 v{14+i}, 20, v{14+i}")
        e(f"v_lshlrev_b32 v{14+i}, 2, v{14+i}")
        e(f"ds_add_rtn_u32 v{18+i}, v{14+i}, v{ONE}")
    e("P_SKIP2:")
    e("s_mov_b64 exec, -1")
    e("s_waitcnt lgkmcnt(0)")
    e("s_barrier")
    stamp(1)
    e(f"s_cmp_eq_u32 s{S_TAU}, 15")
    e("s_cbranch_scc0 P_SKIP3")
    e(f"ds_read_b128 v[32:35], v{L16}")
    e("s_waitcnt lgkmcnt(0)")
    e("v_add_u32 v36, v32, v33")
    e("v_add_u32 v37, v36, v34")
    e("v_add_u32 v38, v37, v35")
    e("v_mov_b32 v39, v38")
    wave_scan(39)
    e("v_sub_u32 v40, v39, v38")
    e("v_add_u32 v41, v40, v32")
    e("v_add_u32 v42, v40, v36")
    e("v_add_u32 v43, v40, v37")
    for i in range(4):
        e(f"v_add_u32 v{48+i}, 128, v{40+i}")
    e(f"ds_write_b128 v{L16}, v[48:51]")
    for i in range(4):
        e(f"v_lshl_or_b32 v{44+i}, v{32+i}, 16, v{40+i}")
    e("s_lshl_b32 s52, s2, 10")
    e(f"s_add_u32 s52, s52, {WS_TABLE}")
    e(f"buffer_store_dwordx4 v[44:47], v{L16}, s[16:19], s52 offen sc1")
    e("P_SKIP3:")
    e("s_waitcnt lgkmcnt(0)")
    e("s_barrier")
    e("s_mov_b64 exec, s[62:63]")
    e("s_cbranch_execz P_SKIP4")
    for i in range(4):
        e(f"ds_read_b32 v{14+i}, v{14+i}")
    e("s_waitcnt vmcnt(0)")
    e("v_lshl_or_b32 v8, v12, 16, v8")
    e("v_and_or_b32 v9, v12, s60, v9")
    e("v_lshl_or_b32 v10, v13, 16, v10")
    e("v_and_or_b32 v11, v13, s60, v11")
    for i in range(4):
        e(f"s_waitcnt lgkmcnt({3-i})")
        e(f"v_add_lshl_u32 v{14+i}, v{14+i}, v{18+i}, 3")
    for i in range(4):
        e(f"ds_write2_b32 v{14+i}, v{8+i}, v{4+i} offset0:0 offset1:1")
    e("P_SKIP4:")
    e("s_mov_b64 exec, -1")
    e("s_waitcnt lgkmcnt(0)")
    e("s_barrier")
    e("v_lshlrev_b32 v30, 4, v0")
    e("ds_read_b128 v[32:35], v30 offset:1024")
    e(f"s_mul_i32 s52, s2, {CHB}")
    e(f"s_add_u32 s53, s52, 0x4000")
    e(f"s_cmp_ge_u32 s{S_TAU}, {(CHB//16 - 1024)//64}")
    e("s_cbranch_scc1 P_SKIP5")
    e(f"ds_read_b128 v[36:39], v30 offset:{1024+16384}")
    e("s_waitcnt lgkmcnt(0)")
    e("buffer_store_dwordx4 v[36:39], v30, s[16:19], s53 offen sc1")
    e("P_SKIP5:")
    e("s_waitcnt lgkmcnt(0)")
    e("buffer_store_dwordx4 v[32:35], v30, s[16:19], s52 offen sc1")
    e("P_END:")


def issue_gather(slot, src=None):
    src = SRC4 if src is None else src
    for i in range(4):
        e(f"s_add_u32 m0, s{S_SB}, {slot*4096 + i*1024}")
        e(f"v_mad_u32_u16 v{GOFF+i}, v{src+i}, s{S_128}, v{LOFF+i}")
        e(f"buffer_load_dwordx4 v{GOFF+i}, s[12:15], 0 offen lds")


def next_slot(q):
    e(f"s_ff1_i32_b32 s{q}, s{S_MSK}")
    e(f"s_max_i32 s{q}, s{q}, 0")
    e(f"s_bitset0_b32 s{S_MSK}, s{q}")
    e(f"s_lshl_b32 s{q}, s{q}, 7")


def main_loop(p):
    e(f"s_bcnt1_i32_b32 s{S_REM}, s{S_MSK}")
    e(f"s_cmp_eq_u32 s{S_REM}, 0")
    e(f"s_cbranch_scc1 {p}_DONE")
    if PRIO:
        e("s_setprio 3")
    next_slot(S_Q0)
    e(f"v_add_u32 v{T0}, s{S_Q0}, v{ASRC}")
    e(f"ds_read_b128 v[{SRC4}:{SRC4+3}], v{T0}")
    next_slot(S_Q1)
    e(f"v_add_u32 v{T0+1}, s{S_Q1}, v{ASRC}")
    e(f"ds_read_b128 v[{E8}:{E8+3}], v{T0+1}")
    next_slot(S_Q2)
    e("s_waitcnt lgkmcnt(1)")
    issue_gather(0)
    e(f"s_cmp_lt_u32 s{S_REM}, 2")
    e(f"s_cbranch_scc1 {p}_LOOP0")
    e("s_waitcnt lgkmcnt(0)")
    issue_gather(1, E8)
    for P in range(2):
        e(f"{p}_LOOP{P}:")
        e(f"s_lshr_b32 s{S_TMP}, s{S_Q0}, 1")
        e(f"v_add_u32 v{T0}, s{S_Q0}, v{AEW}")
        e(f"v_add_u32 v{T0+1}, s{S_TMP}, v{AOH}")
        e(f"v_add_u32 v{T0+2}, s{S_Q2}, v{ASRC}")
        e(f"ds_read_b128 v[{E8}:{E8+3}], v{T0}")
        e(f"ds_read_b128 v[{E8+4}:{E8+7}], v{T0} offset:16")
        e(f"ds_read_b128 v[{OH4}:{OH4+3}], v{T0+1}")
        e(f"ds_read_b128 v[{SRC4}:{SRC4+3}], v{T0+2}")
        e(f"s_mov_b32 s{S_Q0}, s{S_Q1}")
        e(f"s_mov_b32 s{S_Q1}, s{S_Q2}")
        next_slot(S_Q2)
        if PRIO:
            for th, pr in PRTH:
                e(f"s_cmp_eq_u32 s{S_REM}, {th}")
                e(f"s_cbranch_scc0 {p}_PR{P}_{th}")
                e(f"s_setprio {pr}")
                e(f"{p}_PR{P}_{th}:")
        e(f"s_cmp_eq_u32 s{S_REM}, 1")
        e(f"s_cbranch_scc1 {p}_W0_{P}")
        e("s_waitcnt vmcnt(4)")
        e(f"s_branch {p}_W1_{P}")
        e(f"{p}_W0_{P}:")
        e("s_waitcnt vmcnt(0)")
        e(f"{p}_W1_{P}:")
        for t in range(4):
            for h in range(2):
                r = A + t * 4 + h * 2
                e(f"ds_read_b64_tr_b16 v[{r}:{r+1}], v{TRA+t} offset:{P*4096 + h*256}")
        e("s_waitcnt lgkmcnt(9)")
        for i in range(4):
            e(f"v_pk_lshlrev_b16 v{BF+i}, v{SHAMT}, v{OH4+i}")
            e(f"v_perm_b32 v{E8+2*i}, v{E8+2*i+1}, v{E8+2*i}, s{S_PERM}")
        for i in range(4):
            e(f"v_pk_ashrrev_i16 v{BF+i}, s{S_F}, v{BF+i}")
        for i in range(4):
            e(f"v_and_b32 v{BF+i}, v{BF+i}, v{E8+2*i}")
        e("s_waitcnt lgkmcnt(0)")
        e(f"s_cmp_lt_u32 s{S_REM}, 3")
        e(f"s_cbranch_scc1 {p}_NI_{P}")
        issue_gather(P)
        e(f"{p}_NI_{P}:")
        for t in range(4):
            a = A + t * 4
            c = ACC + t * 4
            e(f"v_mfma_f32_16x16x32_bf16 v[{c}:{c+3}], v[{a}:{a+3}], v[{BF}:{BF+3}], v[{c}:{c+3}]")
        e(f"s_sub_u32 s{S_REM}, s{S_REM}, 1")
        e(f"s_cmp_eq_u32 s{S_REM}, 0")
        e(f"s_cbranch_scc1 {p}_DONE")
        if P == 1:
            e(f"s_branch {p}_LOOP0")
    e(f"{p}_DONE:")
    if PRIO:
        e("s_setprio 0")


def set_list_ptrs():
    e(f"v_and_b32 v{T0}, 8, v1")
    e(f"v_lshlrev_b32 v{T0}, 2, v{T0}")
    e(f"v_and_b32 v{T0+1}, 16, v1")
    e(f"v_or_b32 v{T0}, v{T0}, v{T0+1}")
    e(f"v_and_b32 v{T0+1}, 32, v1")
    e(f"v_lshl_or_b32 v{T0}, v{T0+1}, 1, v{T0}")
    e(f"v_add_u32 v{ASRC}, s{S_LB}, v{T0}")
    e(f"v_and_b32 v{T0}, 48, v1")
    e(f"v_lshl_add_u32 v{AEW}, v{T0}, 1, s{S_LB}")
    e(f"s_sub_u32 s{S_TMP}, s{S_LB}, {L_LA}")
    e(f"s_lshr_b32 s{S_TMP}, s{S_TMP}, 1")
    e(f"s_add_u32 s{S_TMP}, s{S_TMP}, {L_LB}")
    e(f"v_add_u32 v{AOH}, s{S_TMP}, v{T0}")


def lane_constants():
    set_list_ptrs()
    e(f"v_and_b32 v{T0}, 7, v1")
    for i in range(4):
        e(f"v_xor_b32 v{LOFF+i}, {2*i}, v{T0}")
        e(f"v_lshlrev_b32 v{LOFF+i}, 4, v{LOFF+i}")
    e(f"v_bfe_u32 v{T0}, v1, 2, 2")
    e(f"v_lshlrev_b32 v{T0+1}, 10, v{T0}")
    e(f"v_and_b32 v{T0+2}, 16, v1")
    e(f"v_lshl_add_u32 v{T0+1}, v{T0+2}, 3, v{T0+1}")
    e(f"v_and_b32 v{T0+2}, 32, v1")
    e(f"v_lshl_add_u32 v{T0+1}, v{T0+2}, 4, v{T0+1}")
    e(f"v_and_b32 v{T0+2}, 3, v1")
    e(f"v_lshl_add_u32 v{T0+1}, v{T0+2}, 3, v{T0+1}")
    e(f"v_add_u32 v{T0+1}, s{S_SB}, v{T0+1}")
    for t in range(4):
        e(f"v_xor_b32 v{T0+2}, {t}, v{T0}")
        e(f"v_lshl_add_u32 v{TRA+t}, v{T0+2}, 5, v{T0+1}")
    e(f"v_and_b32 v{T0}, 15, v1")
    e(f"v_sub_u32 v{T0}, 15, v{T0}")
    e(f"v_lshl_or_b32 v{SHAMT}, v{T0}, 16, v{T0}")
    for i in range(16):
        e(f"v_mov_b32 v{ACC+i}, 0")
    e(f"v_lshrrev_b32 v{T0}, 4, v0")
    e(f"v_and_b32 v{J16}, 15, v0")
    e(f"v_mul_u32_u24 v{GBASE}, {4*CHB}, v{T0}")
    e(f"v_lshl_add_u32 v{GBASE}, v{J16}, 3, v{GBASE}")
    e(f"s_lshl_b32 s{S_TMP}, s{S_B}, 2")
    e(f"s_add_u32 s{S_TMP}, s{S_TMP}, {WS_TABLE}")
    e(f"v_lshlrev_b32 v{POS}, 12, v{T0}")
    e(f"v_add_u32 v{POS}, s{S_TMP}, v{POS}")
    e(f"v_mov_b32 v{T0+1}, 0x7f000000")
    e(f"v_lshlrev_b32 v{T0}, 2, v{T0}")
    e(f"v_cmp_gt_u32 vcc, {NCH-2}, v{T0}")
    e("s_nop 1")
    e(f"v_cndmask_b32 v{DESC+2}, v{T0+1}, v{POS}, vcc")
    e(f"v_cmp_gt_u32 vcc, {NCH}, v{T0}")
    e("s_nop 1")
    e(f"v_cndmask_b32 v{DESC}, v{T0+1}, v{POS}, vcc")


def entry_loads():
    e(f"s_lshl_b32 s{S_TMP+1}, s{S_W32}, 3")
    e(f"v_add_u32 v{T0+3}, 16, v{J16}")
    e(f"v_mov_b32 v{T0+4}, 0x7f000000")
    e(f"v_mov_b32 v{T0+6}, 0")
    for r in range(4):
        m0 = S_MASK + 4 * r
        m1 = m0 + 2
        e(f"s_waitcnt vmcnt({3 - r + 2*r})")
        e(f"v_lshrrev_b32 v{T0}, 16, v{DESC+r}")
        e(f"v_subrev_u32 v{T0}, s{S_W32}, v{T0}")
        e(f"v_max_i32 v{T0+6}, v{T0+6}, v{T0}")
        e(f"v_cmp_gt_i32 s[{m0}:{m0+1}], v{T0}, v{J16}")
        e(f"v_cmp_gt_i32 s[{m1}:{m1+1}], v{T0}, v{T0+3}")
        e(f"v_and_b32 v{T0+1}, 0xffff, v{DESC+r}")
        e(f"v_lshl_add_u32 v{T0+1}, v{T0+1}, 3, v{GBASE}")
        e(f"s_add_u32 s{S_TMP}, s{S_TMP+1}, {r*CHB}")
        e(f"v_cndmask_b32 v{T0+2}, v{T0+4}, v{T0+1}, s[{m0}:{m0+1}]")
        e(f"v_cndmask_b32 v{T0+5}, v{T0+4}, v{T0+1}, s[{m1}:{m1+1}]")
        en0 = EN + 4 * r
        e(f"buffer_load_dwordx2 v[{en0}:{en0+1}], v{T0+2}, s[16:19], s{S_TMP} offen")
        e(f"buffer_load_dwordx2 v[{en0+2}:{en0+3}], v{T0+5}, s[16:19], s{S_TMP} offen offset:128")


def pad_code():
    e(f"s_sub_i32 s{S_TMP}, s{S_CNT}, s{S_U}")
    e(f"s_max_i32 s{S_TMP}, s{S_TMP}, 0")
    e(f"s_min_i32 s{S_TMP}, s{S_TMP}, {TCAP}")
    e(f"s_add_u32 s{S_REM}, s{S_TMP}, 31")
    e(f"s_lshr_b32 s{S_REM}, s{S_REM}, 5")
    e(f"s_lshl_b32 s{S_TMP+1}, s{S_REM}, 5")
    e(f"v_add_u32 v{T0}, s{S_TMP}, v1")
    e(f"v_cmp_gt_u32 vcc, s{S_TMP+1}, v{T0}")
    e(f"s_sub_u32 s{S_TMP+1}, s{S_LB}, {L_LA}")
    e(f"v_lshl_add_u32 v{T0+1}, v{T0}, 2, s{S_TMP+1}")
    e(f"v_lshrrev_b32 v{T0+2}, 1, v{T0+1}")
    e(f"v_mov_b32 v{T0+3}, 0xffff")
    e("s_mov_b64 exec, vcc")
    e(f"ds_write_b32 v{T0+1}, v{T0+3} offset:{L_LA}")
    e(f"ds_write_b16 v{T0+2}, v{ZERO} offset:{L_LB}")
    e("s_mov_b64 exec, -1")


def xw_loads():
    e(f"s_cmp_ge_u32 s{S_TAU}, 13")
    e("s_cbranch_scc1 XW_W")
    e(f"v_and_b32 v{T0}, 15, v1")
    e(f"v_lshlrev_b32 v{T0}, 7, v{T0}")
    e(f"v_and_b32 v{T0+1}, 48, v1")
    e(f"v_lshl_add_u32 v{T0}, v{T0+1}, 1, v{T0}")
    e(f"buffer_load_dwordx4 v[{XT}:{XT+3}], v{T0}, s[20:23], s{S_TOFF} offen")
    e(f"buffer_load_dwordx4 v[{XT+4}:{XT+7}], v{T0}, s[20:23], s{S_TOFF} offen offset:16")
    e("s_branch XW_END")
    e("XW_W:")
    e(f"s_sub_u32 s{S_TMP}, s{S_TAU}, 13")
    e(f"s_lshl_b32 s{S_TMP}, s{S_TMP}, 13")
    for j in range(2):
        e(f"s_add_u32 m0, s{S_TMP}, {L_WF + j*4096}")
        e(f"s_add_u32 s{S_TMP+1}, s{S_TMP}, {WS_WF + j*4096}")
        for i in range(4):
            e(f"buffer_load_dwordx4 v{L16}, s[16:19], s{S_TMP+1} offen offset:{i*1024} lds")
    e("XW_END:")


def fast_sort():
    e(f"s_mov_b32 s{S_W32}, 0")
    e("FS_WIN:")
    entry_loads()
    e(f"s_movk_i32 s{S_TMP+2}, {TLA}")
    for k in range(8):
        en = EN + 2 * k
        m = S_MASK + 2 * k
        e(f"s_waitcnt vmcnt({7-k})")
        e(f"s_mov_b64 exec, s[{m}:{m+1}]")
        if k & 1:
            e(f"s_cbranch_execz FS_RK{k}")
        e(f"v_subrev_u32 v{en+1}, s{S_NB0}, v{en+1}")
        e(f"v_mad_u32_u16 v{T0}, v{en}, s{S_K}, 0")
        e(f"v_lshrrev_b32 v{T0+1}, 4, v{en+1}")
        e(f"v_lshrrev_b32 v{T0}, 26, v{T0}")
        e(f"v_lshl_add_u32 v{T0+2}, v{T0+1}, 2, v{T0}")
        e(f"v_lshlrev_b32 v{T0+2}, 2, v{T0+2}")
        e(f"ds_add_rtn_u32 v{POS+k}, v{T0+2}, v{FOUR}")
        e(f"v_mul_u32_u24 v{T0+1}, s{S_TMP+2}, v{T0+1}")
        e(f"v_lshl_add_u32 v{A+k}, v{T0}, 9, v{T0+1}")
        e(f"v_and_b32 v{en+1}, 15, v{en+1}")
        e(f"v_lshlrev_b32 v{en+1}, v{en+1}, v{ONE}")
        if k & 1:
            e(f"FS_RK{k}:")
    e("s_waitcnt lgkmcnt(0)")
    e(f"s_movk_i32 s{S_TMP+2}, 508")
    for k in range(8):
        en = EN + 2 * k
        m = S_MASK + 2 * k
        e(f"s_mov_b64 exec, s[{m}:{m+1}]")
        if k & 1:
            e(f"s_cbranch_execz FS_WR{k}")
        e(f"v_min_u32 v{POS+k}, s{S_TMP+2}, v{POS+k}")
        e(f"v_add_u32 v{POS+k}, v{POS+k}, v{A+k}")
        e(f"v_lshrrev_b32 v{A+k}, 1, v{POS+k}")
        e(f"ds_write_b32 v{POS+k}, v{en} offset:{L_LA}")
        e(f"ds_write_b16 v{A+k}, v{en+1} offset:{L_LB}")
        if k & 1:
            e(f"FS_WR{k}:")
    e("s_mov_b64 exec, -1")
    e(f"v_cmp_lt_i32 vcc, 32, v{T0+6}")
    e(f"s_add_u32 s{S_W32}, s{S_W32}, 32")
    e("s_cbranch_vccnz FS_WIN")
    xw_loads()
    e(f"v_lshlrev_b32 v{T0}, 2, v1")
    e("s_waitcnt lgkmcnt(0)")
    e("s_barrier")
    stamp(4)
    e(f"ds_read_b32 v{T0+4}, v{T0} offset:{L_BINS}")
    e(f"s_lshl_b32 s{S_TMP+3}, s{S_TAU}, 2")
    e(f"s_sub_u32 s{S_TMP+4}, s{S_LB}, {L_LA}")
    e(f"s_mov_b32 s{S_MSK}, 0")
    e(f"v_mov_b32 v{T0+3}, 0xffff")
    e("s_waitcnt lgkmcnt(0)")
    e(f"v_cmp_lt_u32 vcc, 0x200, v{T0+4}")
    e(f"s_mov_b32 s{S_FAST}, 0")
    e("s_cbranch_vccnz A_START0")
    e(f"s_mov_b32 s{S_FAST}, 1")
    e(f"s_cmp_ge_u32 s{S_TAU}, 13")
    e("s_cbranch_scc1 FS_END")
    for b_ in range(3):
        e(f"s_add_u32 s{S_TMP}, s{S_TMP+3}, {b_}")
        e("s_nop 0")
        e(f"v_readlane_b32 s{S_TMP}, v{T0+4}, s{S_TMP}")
        e("s_nop 0")
        e(f"s_add_u32 s{S_TMP+1}, s{S_TMP}, 127")
        e(f"s_lshr_b32 s{S_TMP+1}, s{S_TMP+1}, 7")
        e(f"s_bfm_b32 s{S_TMP+2}, s{S_TMP+1}, {4*b_}")
        e(f"s_or_b32 s{S_MSK}, s{S_MSK}, s{S_TMP+2}")
        e(f"s_lshl_b32 s{S_TMP+1}, s{S_TMP+1}, 7")
        e(f"v_add_u32 v{T0+1}, s{S_TMP}, v{T0}")
        e(f"v_cmp_gt_u32 vcc, s{S_TMP+1}, v{T0+1}")
        e(f"v_add_u32 v{T0+1}, s{S_TMP+4}, v{T0+1}")
        e(f"v_lshrrev_b32 v{T0+2}, 1, v{T0+1}")
        e("s_mov_b64 exec, vcc")
        e(f"ds_write_b32 v{T0+1}, v{T0+3} offset:{L_LA + 512*b_}")
        e(f"ds_write_b16 v{T0+2}, v{ZERO} offset:{L_LB + 256*b_}")
        e("s_mov_b64 exec, -1")
    e("FS_END:")
    e(f"s_mov_b32 s{S_HDR}, s{S_MSK}")
    e(f"s_mov_b32 s{S_U}, 0")
    e(f"s_mov_b32 s{S_MAXC}, 0")
    e(f"s_mov_b32 s{S_MORE}, 0")
    stamp(5)
    e("s_branch A_ML")
    e("A_START0:")
    e("s_barrier")


def generic_sort_and_loop(p):
    e(f"{p}_START:")
    e(f"s_mov_b32 s{S_W32}, 0")
    e(f"s_mov_b32 s{S_NWIN}, 0")
    e(f"{p}_WIN:")
    e(f"v_lshlrev_b32 v{T0}, 2, v0")
    e("v_cmp_gt_u32 vcc, 130, v0")
    e(f"s_and_saveexec_b64 s[{S_X}:{S_X+1}], vcc")
    e(f"ds_write_b32 v{T0}, v{ZERO}")
    e(f"s_mov_b64 exec, s[{S_X}:{S_X+1}]")
    entry_loads()
    e("s_waitcnt lgkmcnt(0)")
    e("s_barrier")
    e(f"v_cmp_lt_i32 vcc, 32, v{T0+6}")
    e(f"s_and_saveexec_b64 s[{S_X}:{S_X+1}], vcc")
    e(f"v_mov_b32 v{T0}, {L_MORE}")
    e(f"ds_write_b32 v{T0}, v{ONE}")
    e(f"s_mov_b64 exec, s[{S_X}:{S_X+1}]")
    e(f"s_movk_i32 s{S_TMP+2}, {TLA}")
    for k in range(8):
        en = EN + 2 * k
        ba = A + k
        m = S_MASK + 2 * k
        e(f"s_waitcnt vmcnt({7-k})")
        e(f"s_mov_b64 exec, s[{m}:{m+1}]")
        if k & 1:
            e(f"s_cbranch_execz {p}_RK{k}")
        e(f"v_subrev_u32 v{en+1}, s{S_NB0}, v{en+1}")
        e(f"v_mad_u32_u16 v{T0}, v{en}, 21, s{S_ROT}")
        e(f"v_lshrrev_b32 v{T0+1}, 4, v{en+1}")
        e(f"v_bfe_u32 v{T0}, v{T0}, 17, 3")
        e(f"v_lshl_add_u32 v{ba}, v{T0+1}, 3, v{T0}")
        e(f"v_lshlrev_b32 v{ba}, 2, v{ba}")
        e(f"ds_add_rtn_u32 v{POS+k}, v{ba}, v{FOUR}")
        e(f"v_and_b32 v{T0}, 15, v{en+1}")
        e(f"v_lshlrev_b32 v{T0}, v{T0}, v{ONE}")
        e(f"v_mul_u32_u24 v{T0+1}, s{S_TMP+2}, v{T0+1}")
        e(f"v_lshl_or_b32 v{en+1}, v{T0}, 16, v{T0+1}")
        if k & 1:
            e(f"{p}_RK{k}:")
    e("s_mov_b64 exec, -1")
    e("s_waitcnt lgkmcnt(0)")
    e("s_barrier")
    e(f"s_mov_b32 s{S_CNT}, 0")
    e(f"s_cmp_ge_u32 s{S_TAU}, s{S_NT}")
    e(f"s_cbranch_scc1 {p}_NOSCAN")
    e(f"s_lshl_b32 s{S_TMP}, s{S_TAU}, 5")
    e(f"v_lshlrev_b32 v{T0}, 2, v1")
    e(f"v_add_u32 v{T0}, s{S_TMP}, v{T0}")
    e(f"v_mov_b32 v{T0+1}, 0")
    e("s_mov_b64 exec, 0xff")
    e(f"ds_read_b32 v{T0+1}, v{T0} offset:{L_BINS}")
    e("s_mov_b64 exec, -1")
    e(f"s_sub_u32 s{S_TMP+1}, s{S_LB}, {L_LA}")
    e("s_waitcnt lgkmcnt(0)")
    e(f"v_mov_b32 v{T0+2}, v{T0+1}")
    wave_scan(T0 + 2, full=False)
    e(f"v_sub_u32 v{T0+3}, v{T0+2}, v{T0+1}")
    e(f"v_readlane_b32 s{S_CNT}, v{T0+2}, 7")
    e(f"v_add_u32 v{T0+3}, s{S_TMP+1}, v{T0+3}")
    e("s_mov_b64 exec, 0xff")
    e(f"ds_write_b32 v{T0}, v{T0+3} offset:{L_BINS}")
    e(f"s_lshr_b32 s{S_CNT}, s{S_CNT}, 2")
    e("s_mov_b64 exec, 1")
    e(f"v_mov_b32 v{T0}, {L_MAXC}")
    e(f"v_mov_b32 v{T0+1}, s{S_CNT}")
    e(f"ds_max_u32 v{T0}, v{T0+1}")
    e("s_mov_b64 exec, -1")
    e(f"{p}_NOSCAN:")
    e(f"s_mov_b32 s{S_U}, 0")
    pad_code()
    e("s_waitcnt lgkmcnt(0)")
    e("s_barrier")
    e(f"v_mov_b32 v{T0}, {L_MAXC}")
    e(f"ds_read_b64 v[{T0+1}:{T0+2}], v{T0}")
    for k in range(8):
        m = S_MASK + 2 * k
        e(f"s_mov_b64 exec, s[{m}:{m+1}]")
        e(f"ds_read_b32 v{A+k}, v{A+k}")
    e("s_mov_b64 exec, -1")
    e("s_waitcnt lgkmcnt(0)")
    e(f"v_readfirstlane_b32 s{S_MAXC}, v{T0+1}")
    e(f"v_readfirstlane_b32 s{S_MORE}, v{T0+2}")
    e(f"s_cmp_gt_u32 s{S_MAXC}, {TCAP}")
    e(f"s_cbranch_scc1 {p}_SLOWSC")
    for k in range(8):
        en = EN + 2 * k
        m = S_MASK + 2 * k
        e(f"s_mov_b64 exec, s[{m}:{m+1}]")
        if k & 1:
            e(f"s_cbranch_execz {p}_FS{k}")
        e(f"v_add_u32 v{POS+k}, v{POS+k}, v{A+k}")
        e(f"v_lshrrev_b32 v{A+k}, 1, v{POS+k}")
        e(f"ds_write_b32 v{POS+k}, v{en} offset:{L_LA}")
        e(f"ds_write_b16_d16_hi v{A+k}, v{en+1} offset:{L_LB}")
        if k & 1:
            e(f"{p}_FS{k}:")
    e("s_mov_b64 exec, -1")
    e(f"s_branch {p}_SCDONE")
    e(f"{p}_SLOWSC:")
    for k in range(8):
        e(f"v_add_u32 v{POS+k}, v{POS+k}, v{A+k}")
    e(f"{p}_SUB:")
    e(f"s_lshl_b32 s{S_TMP}, s{S_U}, 2")
    for k in range(8):
        en = EN + 2 * k
        m = S_MASK + 2 * k
        e(f"v_and_b32 v{T0+1}, 0xffff, v{en+1}")
        e(f"v_subrev_u32 v{T0}, s{S_TMP}, v{POS+k}")
        e(f"v_sub_u32 v{T0+1}, v{T0}, v{T0+1}")
        e(f"v_cmp_gt_u32 vcc, {TLA}, v{T0+1}")
        e(f"v_lshrrev_b32 v{T0+2}, 1, v{T0}")
        e(f"s_and_b64 exec, vcc, s[{m}:{m+1}]")
        e(f"ds_write_b32 v{T0}, v{en} offset:{L_LA}")
        e(f"ds_write_b16_d16_hi v{T0+2}, v{en+1} offset:{L_LB}")
        e("s_mov_b64 exec, -1")
    pad_code()
    e(f"{p}_SCDONE:")
    e(f"s_bfm_b32 s{S_MSK}, s{S_REM}, 0")
    e("s_waitcnt lgkmcnt(0)")
    e("s_barrier")
    e(f"{p}_ML:")
    main_loop(p + "G")
    e(f"s_add_u32 s{S_NWIN}, s{S_NWIN}, 1")
    e(f"s_add_u32 s{S_U}, s{S_U}, {TCAP}")
    e(f"s_cmp_lt_u32 s{S_U}, s{S_MAXC}")
    e(f"s_cbranch_scc0 {p}_SUBDONE")
    e("s_barrier")
    e(f"s_branch {p}_SUB")
    e(f"{p}_SUBDONE:")
    e(f"s_cmp_eq_u32 s{S_MORE}, 0")
    e(f"s_cbranch_scc1 {p}_WINDONE")
    e(f"s_add_u32 s{S_W32}, s{S_W32}, 32")
    e("s_barrier")
    e(f"s_branch {p}_WIN")
    e(f"{p}_WINDONE:")


def tile_store(regs, srdn, base_off, mods, lbl):
    e(f"v_and_b32 v{T0}, 15, v1")
    e(f"v_lshlrev_b32 v{T0}, 7, v{T0}")
    e(f"v_and_b32 v{T0+1}, 48, v1")
    e(f"v_lshl_add_u32 v{T0}, v{T0+1}, 1, v{T0}")
    e(f"v_add_u32 v{T0}, s{S_SB}, v{T0}")
    e(f"ds_write_b128 v{T0}, v[{regs}:{regs+3}]")
    e(f"ds_write_b128 v{T0}, v[{regs+4}:{regs+7}] offset:16")
    e(f"v_add_u32 v{T0+1}, s{S_SB}, v{L16}")
    e(f"s_add_u32 s{S_TMP}, s{S_TOFF}, {base_off}")
    e(f"s_sub_i32 s{S_TMP+1}, s{S_ROWB}, 1024")
    e(f"v_cmp_gt_i32 vcc, s{S_TMP+1}, v{L16}")
    e(f"v_cmp_gt_i32 s[{S_X}:{S_X+1}], s{S_ROWB}, v{L16}")
    e("s_waitcnt lgkmcnt(0)")
    e(f"ds_read_b128 v[{A}:{A+3}], v{T0+1}")
    e(f"ds_read_b128 v[{A+4}:{A+7}], v{T0+1} offset:1024")
    e(f"s_mov_b64 exec, s[{S_X}:{S_X+1}]")
    e("s_waitcnt lgkmcnt(1)")
    e(f"buffer_store_dwordx4 v[{A}:{A+3}], v{L16}, s[{srdn}:{srdn+3}], s{S_TMP} offen{mods}")
    e("s_mov_b64 exec, vcc")
    e(f"s_cbranch_execz {lbl}")
    e("s_waitcnt lgkmcnt(0)")
    e(f"buffer_store_dwordx4 v[{A+4}:{A+7}], v{L16}, s[{srdn}:{srdn+3}], s{S_TMP} offen offset:1024{mods}")
    e(f"{lbl}:")
    e("s_mov_b64 exec, -1")


def gemm_xt1(dst):
    e(f"v_add_u32 v{T0+1}, {L_WF}, v{L16}")
    WB = [A, BF]
    steps = [(0, 0), (0, 1), (1, 0), (1, 1)]
    Bsrc = {0: XT, 1: T1T}

    def ldw(idx):
        k, s_ = steps[idx]
        wb = WB[idx & 1]
        for t in range(4):
            f = k * 8 + s_ * 4 + t
            e(f"ds_read_b128 v[{wb+4*t}:{wb+4*t+3}], v{T0+1} offset:{f*1024}")
    ldw(0)
    for idx in range(4):
        if idx + 1 < 4:
            ldw(idx + 1)
            e("s_waitcnt lgkmcnt(4)")
        else:
            e("s_waitcnt lgkmcnt(0)")
        k, s_ = steps[idx]
        wb = WB[idx & 1]
        b = Bsrc[k] + 4 * s_
        for t in range(4):
            c = dst + 4 * t
            src_c = "0" if idx == 0 else f"v[{c}:{c+3}]"
            e(f"v_mfma_f32_16x16x32_bf16 v[{c}:{c+3}], v[{wb+4*t}:{wb+4*t+3}], v[{b}:{b+3}], {src_c}")


def gen():
    name = "standalone__spectral_conv_chebnet__graph_kernel"
    e(".text")
    e(f".globl {name}")
    e(".p2align 8")
    e(f".type {name},@function")
    e(f"{name}:")
    e(f"s_cmp_ge_u32 s2, {NB}")
    e("s_cbranch_scc1 K_END")
    e("s_load_dwordx2 s[4:5], s[0:1], 0")
    e("s_load_dwordx2 s[6:7], s[0:1], 56")
    e("s_load_dwordx4 s[8:11], s[0:1], 40")
    e("v_and_b32 v1, 63, v0")
    e(f"v_lshrrev_b32 v{T0}, 6, v0")
    e(f"v_lshlrev_b32 v{L16}, 4, v1")
    e(f"v_readfirstlane_b32 s{S_TAU}, v{T0}")
    e(f"v_mov_b32 v{ONE}, 1")
    e(f"v_mov_b32 v{ZERO}, 0")
    if os.environ.get("CPF"):
        e(f"s_cmp_eq_u32 s{S_TAU}, 13")
        e("s_cbranch_scc0 CPF_END")
        e("s_getpc_b64 s[36:37]")
        e("v_lshlrev_b32 v4, 7, v1")
        e("v_add_u32 v5, 0x2000, v4")
        e("s_mov_b64 exec, -1")
        e("global_load_dword v6, v4, s[36:37]")
        e("s_mov_b64 exec, 0xff")
        e("global_load_dword v7, v5, s[36:37]")
        e("s_mov_b64 exec, -1")
        e("CPF_END:")
    phase0()
    stamp(2)
    e(f"s_and_b32 s{S_B}, s2, 7")
    e(f"s_lshl_b32 s{S_ROT}, s{S_B}, 17")
    e(f"s_mov_b32 s{S_ROT}, 0")
    e(f"s_lshl_b32 s{S_B}, s{S_B}, 5")
    e(f"s_lshr_b32 s{S_TMP}, s2, 3")
    e(f"s_add_u32 s{S_B}, s{S_B}, s{S_TMP}")
    e(f"s_mul_i32 s{S_NB0}, s{S_B}, {BN}")
    e(f"s_sub_u32 s{S_TMP}, {N}, s{S_NB0}")
    e(f"s_min_u32 s{S_TMP}, s{S_TMP}, {BN}")
    e(f"s_add_u32 s{S_NT}, s{S_TMP}, 15")
    e(f"s_lshr_b32 s{S_NT}, s{S_NT}, 4")
    e(f"s_lshl_b32 s{S_TMP+1}, s{S_TAU}, 4")
    e(f"s_sub_i32 s{S_ROWB}, s{S_TMP}, s{S_TMP+1}")
    e(f"s_min_i32 s{S_ROWB}, s{S_ROWB}, 16")
    e(f"s_lshl_b32 s{S_ROWB}, s{S_ROWB}, 7")
    e(f"s_add_u32 s{S_TOFF}, s{S_NB0}, s{S_TMP+1}")
    e(f"s_lshl_b32 s{S_TOFF}, s{S_TOFF}, 7")
    e(f"v_mov_b32 v{FOUR}, 4")
    e(f"s_movk_i32 s{S_128}, 128")
    e(f"s_mov_b32 s{S_F}, 0x000f000f")
    e(f"s_mov_b32 s{S_PERM}, 0x07060302")
    e(f"s_min_u32 s{S_TMP}, s{S_TAU}, 12")
    e(f"s_lshl_b32 s{S_SB}, s{S_TMP}, 13")
    e(f"s_add_u32 s{S_SB}, s{S_SB}, {L_STAGE}")
    e(f"s_mul_i32 s{S_LB}, s{S_TMP}, {TLA}")
    e(f"s_add_u32 s{S_LB}, s{S_LB}, {L_LA}")
    e(f"s_mov_b32 s{S_PASS}, 1")
    e(f"s_movk_i32 s{S_K}, 4026")
    srd(12, 4, 5, N * 128)
    srd(24, 8, 9, N * 128)
    lane_constants()

    def between1():
        e(f"s_cmp_eq_u32 s{S_TAU}, 0")
        e("s_cbranch_scc0 B1_END")
        e(f"v_lshlrev_b32 v{T0}, 2, v1")
        e(f"ds_write_b32 v{T0}, v{ZERO} offset:{L_BINS}")
        e("s_waitcnt lgkmcnt(0)")
        e("B1_END:")
    grid_barrier(0, between1)
    stamp(3)
    e(f"v_mov_b32 v{T0}, v{DESC}")
    e(f"v_mov_b32 v{T0+1}, v{DESC+2}")
    e(f"buffer_load_dword v{DESC}, v{T0}, s[16:19], 0 offen")
    e(f"buffer_load_dword v{DESC+1}, v{T0}, s[16:19], 0 offen offset:1024")
    e(f"buffer_load_dword v{DESC+2}, v{T0+1}, s[16:19], 0 offen offset:2048")
    e(f"buffer_load_dword v{DESC+3}, v{T0+1}, s[16:19], 0 offen offset:3072")
    fast_sort()
    generic_sort_and_loop("A")
    e(f"s_cmp_eq_u32 s{S_PASS}, 2")
    e("s_cbranch_scc1 EPI")
    stamp(6)
    e(f"s_cmp_ge_u32 s{S_TAU}, s{S_NT}")
    e("s_cbranch_scc1 T1_DONE")
    e("s_nop 7")
    for t in range(4):
        e(f"v_cvt_pk_bf16_f32 v{T1T+2*t}, v{ACC+4*t}, v{ACC+4*t+1}")
        e(f"v_cvt_pk_bf16_f32 v{T1T+2*t+1}, v{ACC+4*t+2}, v{ACC+4*t+3}")
    tile_store(T1T, 16, WS_T1P, " sc1", "TS1")
    e("T1_DONE:")
    for i in range(16):
        e(f"v_mov_b32 v{ACC+i}, 0")
    srd_off(12, 6, 7, WS_T1P, N * 128)
    e(f"s_mov_b32 s{S_PASS}, 2")

    def between2():
        e(f"s_cmp_ge_u32 s{S_TAU}, s{S_NT}")
        e("s_cbranch_scc1 B2_END")
        e(f"s_cmp_eq_u32 s{S_FAST}, 1")
        e("s_cbranch_scc0 B2_END")
        gemm_xt1(EN)
        e("B2_END:")
    grid_barrier(1, between2)
    stamp(7)
    e(f"s_cmp_eq_u32 s{S_FAST}, 1")
    e("s_cbranch_scc0 A_START")
    e(f"s_mov_b32 s{S_MSK}, s{S_HDR}")
    e(f"s_mov_b32 s{S_MAXC}, 0")
    e(f"s_mov_b32 s{S_MORE}, 0")
    e("s_branch A_ML")
    e("EPI:")
    e(f"s_cmp_ge_u32 s{S_TAU}, s{S_NT}")
    e("s_cbranch_scc1 K_END")
    stamp(8)
    e(f"s_cmp_eq_u32 s{S_FAST}, 1")
    e("s_cbranch_scc1 EPI2")
    gemm_xt1(EN)
    e("EPI2:")
    e(f"v_add_u32 v{T0+1}, {L_WF}, v{L16}")
    for s_ in range(2):
        wb = [A, BF][s_]
        for t in range(4):
            f = 16 + s_ * 4 + t
            e(f"ds_read_b128 v[{wb+4*t}:{wb+4*t+3}], v{T0+1} offset:{f*1024}")
    e(f"s_mov_b32 s{S_TMP+2}, 0xffff0000")
    e("s_nop 3")
    T2 = POS
    TMPA = SRC4
    for i in range(8):
        a = ACC + 2 * i
        e(f"v_cvt_pk_bf16_f32 v{TMPA}, v{a}, v{a+1}")
        e(f"v_lshlrev_b32 v{TMPA+1}, 16, v{XT+i}")
        e(f"v_and_b32 v{TMPA+2}, s{S_TMP+2}, v{XT+i}")
        e(f"v_lshlrev_b32 v{TMPA+3}, 16, v{TMPA}")
        e(f"v_and_b32 v{TMPA+4}, s{S_TMP+2}, v{TMPA}")
        e(f"v_fma_f32 v{TMPA+3}, 2.0, v{TMPA+3}, -v{TMPA+1}")
        e(f"v_fma_f32 v{TMPA+4}, 2.0, v{TMPA+4}, -v{TMPA+2}")
        e(f"v_cvt_pk_bf16_f32 v{T2+i}, v{TMPA+3}, v{TMPA+4}")
    e("s_waitcnt lgkmcnt(0)")
    e("s_nop 1")
    for s_ in range(2):
        wb = [A, BF][s_]
        b = T2 + 4 * s_
        for t in range(4):
            c = EN + 4 * t
            e(f"v_mfma_f32_16x16x32_bf16 v[{c}:{c+3}], v[{wb+4*t}:{wb+4*t+3}], v[{b}:{b+3}], v[{c}:{c+3}]")
    e("s_nop 7")
    e("s_nop 3")
    for t in range(4):
        e(f"v_cvt_pk_bf16_f32 v{ACC+2*t}, v{EN+4*t}, v{EN+4*t+1}")
        e(f"v_cvt_pk_bf16_f32 v{ACC+2*t+1}, v{EN+4*t+2}, v{EN+4*t+3}")
    tile_store(ACC, 24, 0, "", "TS2")
    if DIAG:
        stamp(9)
        e("s_waitcnt vmcnt(0)")
        stamp(10)
        e("s_mov_b64 exec, 1")
        e(f"s_lshl_b32 s{S_TMP}, s2, 4")
        e(f"s_add_u32 s{S_TMP}, s{S_TMP}, s{S_TAU}")
        e(f"s_lshl_b32 s{S_TMP}, s{S_TMP}, 6")
        e(f"s_add_u32 s{S_TMP}, s{S_TMP}, {WS_DIAG}")
        for i in range(11):
            e(f"v_mov_b32 v{T0+1}, s{S_ST+2*i}")
            e(f"buffer_store_dword v{T0+1}, v{ZERO}, s[16:19], s{S_TMP} offen offset:{4*i}")
    if os.environ.get("DBGST"):
        e("s_cmp_eq_u32 s2, 0")
        e("s_cbranch_scc0 K_END")
        e(f"s_cmp_eq_u32 s{S_TAU}, 0")
        e("s_cbranch_scc0 K_END")
        words = [1, 2, 3, 5, 6, 7, 8, 9, 10, 11]
        for i in range(1, 11):
            e(f"s_sub_u32 s{S_TMP}, s{S_ST+2*i}, s{S_ST}")
            e(f"v_mov_b32 v{T0+1}, s{S_TMP}")
            e(f"v_mov_b32 v{T0}, {words[i-1]*4}")
            e(f"global_store_dword v{T0}, v{T0+1}, s[10:11]")
    e("K_END:")
    e("s_endpgm")
    e('.section .rodata,"a"')
    e(".p2align 6")
    e(f".amdhsa_kernel {name}")
    e(f"  .amdhsa_next_free_vgpr {NV}")
    e(f"  .amdhsa_next_free_sgpr {NS}")
    e(f"  .amdhsa_accum_offset {NV}")
    e("  .amdhsa_group_segment_fixed_size 0")
    e("  .amdhsa_kernarg_size 64")
    e("  .amdhsa_user_sgpr_count 2")
    e("  .amdhsa_user_sgpr_kernarg_segment_ptr 1")
    e("  .amdhsa_system_sgpr_workgroup_id_x 1")
    e("  .amdhsa_float_denorm_mode_32 3")
    e("  .amdhsa_float_denorm_mode_16_64 3")
    e(".end_amdhsa_kernel")


HEADER = """; Kernarg layout for this problem (64 bytes, ptrs only, base s[0:1]):
"""


def main():
    out.append(HEADER.rstrip())
    out.append(f"; @launch grid=({NB},1,1) block=(1024,1,1) lds={L_TOTAL}")
    out.append('.amdgcn_target "amdgcn-amd-amdhsa--gfx950"')
    gen()
    path = sys.argv[1] if len(sys.argv) > 1 else "standalone__spectral_conv_chebnet__graph.s"
    open(path, "w").write("\n".join(out) + "\n")


if __name__ == "__main__":
    main()
```

```python
import os
import sys

N = 50000
E = 800000
NCH = 250
CH = 3200
CHB = CH * 8
NB = 256
TCAP = 384
BN = 196
TLA = TCAP * 4
TLB = TCAP * 2

WS_ENT = 0
WS_TABLE = 0x680000
WS_T1P = 0x700000
WS_WF = 0xE00000
WS_USED = 0xE10000

L_BINS = 0
L_MAXC = 512
L_MORE = 516
L_LA = 1024
L_LB = L_LA + 13 * TLA
L_WF = L_LB + 13 * TLB
L_STAGE = L_WF + 24576
L_TOTAL = L_STAGE + 13 * 8192
assert L_STAGE % 256 == 0 and L_TOTAL <= 163840

DIAG = bool(os.environ.get("DIAG"))
PFA = int(os.environ.get("PFA", "0"))
PFB = int(os.environ.get("PFB", "0"))
PRIO = int(os.environ.get("PRIO", "1"))
PRTH = ((7, 2), (5, 1), (3, 0))
TLBW = int(os.environ.get("TLBW", "0"))
DFIRST = int(os.environ.get("DFIRST", "0"))
WS_DIAG = 0x1600000
if DIAG:
    WS_USED = 0x1800000

out = []


def e(s=""):
    out.append("    " + s if s and not s.endswith(":") else s)


S_ST = 80


def stamp(i):
    if DIAG:
        e("s_waitcnt lgkmcnt(0)")
        e(f"s_memrealtime s[{S_ST+2*i}:{S_ST+2*i+1}]")
        e("s_waitcnt lgkmcnt(0)")


def srd(d, plo, phi, size):
    e(f"s_mov_b32 s{d}, s{plo}")
    e(f"s_and_b32 s{d+1}, s{phi}, 0xffff")
    e(f"s_mov_b32 s{d+2}, {size}")
    e(f"s_mov_b32 s{d+3}, 0x00020000")


def srd_off(d, plo, phi, off, size):
    e(f"s_add_u32 s{d}, s{plo}, {off}")
    e(f"s_addc_u32 s{d+1}, s{phi}, 0")
    e(f"s_and_b32 s{d+1}, s{d+1}, 0xffff")
    e(f"s_mov_b32 s{d+2}, {size}")
    e(f"s_mov_b32 s{d+3}, 0x00020000")


def wave_scan(v, full=True):
    shifts = [1, 2, 4, 8] if full else [1, 2, 4]
    for sh in shifts:
        e("s_nop 1")
        e(f"v_add_u32_dpp v{v}, v{v}, v{v} row_shr:{sh} row_mask:0xf bank_mask:0xf bound_ctrl:0")
    if full:
        e("s_nop 1")
        e(f"v_add_u32_dpp v{v}, v{v}, v{v} row_bcast:15 row_mask:0xa bank_mask:0xf")
        e("s_nop 1")
        e(f"v_add_u32_dpp v{v}, v{v}, v{v} row_bcast:31 row_mask:0xc bank_mask:0xf")
    e("s_nop 1")


ACC = 4
A = 20
BF = 36
E8 = 40
OH4 = 48
SRC4 = 52
GOFF = 56
LOFF = 60
TRA = 64
ASRC = 68
AEW = 69
AOH = 70
SHAMT = 71
L16 = 72
T0 = 73
DESC = 80
EN = 84
POS = 100
XT = 108
T1T = 116
J16 = 124
GBASE = 125
ONE = 126
ZERO = 127
FOUR = 3
NV = 128

S_B, S_NB0, S_NT, S_TAU = 28, 29, 30, 31
S_128, S_F, S_SB, S_LB = 32, 33, 34, 35
S_W32, S_U, S_CNT, S_REM, S_MAXC, S_MORE = 36, 37, 38, 39, 40, 41
S_TMP = 42
S_MASK = 48
S_X = 64
S_NWIN = 66
S_HDR = 67
S_PERM = 68
S_ROT = 69
S_PASS = 70
S_SPIN = 71
S_MSK = 72
S_FAST = 73
S_ROWB = 74
S_TOFF = 75
S_Q0, S_Q1, S_Q2 = 76, 77, 78
S_K = 79
NS = 102 if DIAG else 80


def prefetch(firstkb, count, srdx, vdummy, st):
    if count == 0:
        return
    e(f"s_lshr_b32 s{st}, s2, 3")
    e(f"s_lshl_b32 s{st}, s{st}, 4")
    e(f"s_add_u32 s{st}, s{st}, s{S_TAU}")
    e(f"s_lshl_b32 s{st}, s{st}, 10")
    for k in range(count):
        e(f"s_add_u32 s{st+1}, s{st}, {(firstkb + 512*k) * 1024}")
        e(f"buffer_load_dwordx4 v[{vdummy}:{vdummy+3}], v{L16}, s[{srdx}:{srdx+3}], s{st+1} offen")


def grid_barrier(k, between=None):
    e("s_waitcnt vmcnt(0) lgkmcnt(0)")
    e("s_barrier")
    e(f"s_cmp_eq_u32 s{S_TAU}, 15")
    e(f"s_cbranch_scc1 GB{k}_POLL")
    if between:
        between()
    e(f"s_branch GB{k}_JOIN")
    e(f"GB{k}_POLL:")
    e("s_mov_b64 exec, 1")
    e(f"s_and_b32 s{S_TMP}, s2, 1")
    e(f"s_lshl_b32 s{S_TMP}, s{S_TMP}, 6")
    e(f"s_add_u32 s{S_TMP}, s{S_TMP}, {k*16}")
    e(f"v_mov_b32 v{T0}, s{S_TMP}")
    e(f"v_mov_b32 v{T0+1}, {128 + k*16}")
    e(f"global_atomic_add v{T0+2}, v{T0}, v{ONE}, s[10:11] sc0 sc1")
    e("s_waitcnt vmcnt(0)")
    e(f"v_readfirstlane_b32 s{S_TMP}, v{T0+2}")
    e(f"s_cmp_eq_u32 s{S_TMP}, {NB//2 - 1}")
    e(f"s_cbranch_scc0 GB{k}_SPIN0")
    e(f"global_atomic_add v{T0+1}, v{ONE}, s[10:11] sc1")
    e(f"GB{k}_SPIN0:")
    e(f"s_mov_b32 s{S_SPIN}, 0")
    e(f"GB{k}_SPIN:")
    e(f"global_load_dword v{T0+2}, v{T0+1}, s[10:11] sc1")
    e("s_waitcnt vmcnt(0)")
    e(f"v_readfirstlane_b32 s{S_TMP}, v{T0+2}")
    e(f"s_cmp_ge_u32 s{S_TMP}, 2")
    e(f"s_cbranch_scc1 GB{k}_DONE")
    e(f"s_add_u32 s{S_SPIN}, s{S_SPIN}, 1")
    e(f"s_cmp_ge_u32 s{S_SPIN}, 0x400000")
    e(f"s_cbranch_scc1 GB{k}_DONE")
    e("s_sleep 2")
    e(f"s_branch GB{k}_SPIN")
    e(f"GB{k}_DONE:")
    e("s_mov_b64 exec, -1")
    e(f"GB{k}_JOIN:")
    e("s_barrier")


def phase0():
    e("s_load_dwordx4 s[52:55], s[0:1], 8")
    e("s_load_dwordx4 s[56:59], s[0:1], 24")
    e(f"s_mul_i32 s3, s2, {CH*4}")
    e("v_lshlrev_b32 v2, 4, v0")
    e("v_add_u32 v2, s3, v2")
    e("v_lshrrev_b32 v3, 1, v2")
    e("v_and_b32 v24, 0xff, v0")
    e("v_lshlrev_b32 v24, 2, v24")
    e(f"ds_write_b32 v24, v{ZERO}")
    e("s_waitcnt lgkmcnt(0)")
    stamp(0)
    srd(16, 6, 7, WS_USED)
    srd(20, 4, 5, N * 128)
    srd(36, 52, 53, E * 4)
    srd(40, 54, 55, E * 4)
    srd(44, 56, 57, E * 2)
    srd(48, 58, 59, 3 * 64 * 64 * 2)
    if TLBW:
        srd(24, 8, 9, N * 128)
        e(f"s_cmp_eq_u32 s{S_TAU}, 13")
        e("s_cbranch_scc0 TLB_END")
        e("v_lshlrev_b32 v4, 20, v1")
        e("buffer_load_dword v5, v4, s[16:19], 0 offen")
        e("buffer_load_dword v6, v4, s[20:23], 0 offen")
        e("buffer_load_dword v7, v4, s[24:27], 0 offen")
        e(f"global_load_dword v8, v{ZERO}, s[10:11]")
        if TLBW >= 2:
            sh = {2: 16, 3: 12, 4: 14}[TLBW]
            e("s_lshr_b32 s52, s2, 3")
            e("v_lshlrev_b32 v4, 5, v1")
            e("v_add_u32 v4, s52, v4")
            e(f"v_lshlrev_b32 v4, {sh}, v4")
            e("buffer_load_dword v5, v4, s[16:19], 0 offen")
            e("buffer_load_dword v6, v4, s[20:23], 0 offen")
            e("buffer_load_dword v7, v4, s[24:27], 0 offen")
            if sh == 12:
                e("s_mov_b32 s52, 0x800000")
                e("buffer_load_dword v5, v4, s[16:19], s52 offen")
        e("TLB_END:")
    e(f"s_cmp_ge_u32 s2, {NCH}")
    e("s_cbranch_scc1 P_END")
    e("s_mov_b32 s60, 0xffff0000")
    e(f"v_cmp_gt_u32 vcc, {CH//4}, v0")
    e("s_and_saveexec_b64 s[64:65], vcc")
    e("s_mov_b64 s[62:63], exec")
    e("s_cbranch_execz P_SKIP1")
    e("buffer_load_dwordx4 v[4:7], v2, s[40:43], 0 offen")
    if not DFIRST:
        e("buffer_load_dwordx4 v[8:11], v2, s[36:39], 0 offen")
        e("buffer_load_dwordx2 v[12:13], v3, s[44:47], 0 offen")
    e("P_SKIP1:")
    e("s_mov_b64 exec, -1")
    e("s_cmp_ge_u32 s2, 48")
    e("s_cbranch_scc1 P_NOW")
    e(f"s_cmp_lt_u32 s{S_TAU}, 14")
    e("s_cbranch_scc1 P_NOW")
    e("s_lshr_b32 s52, s2, 1")
    e("s_and_b32 s53, s2, 1")
    e("s_lshl_b32 s53, s53, 7")
    e("v_subrev_u32 v30, 896, v0")
    e("v_add_u32 v30, s53, v30")
    e("s_lshr_b32 s54, s52, 3")
    e("s_bfe_u32 s55, s52, 0x10002")
    e("s_and_b32 s56, s52, 3")
    e("v_and_b32 v31, 3, v30")
    e("v_bfe_u32 v32, v30, 2, 4")
    e("v_lshrrev_b32 v33, 6, v30")
    e("v_lshrrev_b32 v34, 2, v32")
    e("v_lshlrev_b32 v34, 4, v34")
    e("v_and_b32 v35, 3, v32")
    e("v_add_u32 v34, v34, v35")
    e("s_lshl_b32 s57, s56, 2")
    e("v_add_u32 v34, s57, v34")
    e("v_lshlrev_b32 v36, 4, v33")
    e("v_lshl_add_u32 v36, v31, 1, v36")
    e("s_lshl_b32 s57, s55, 3")
    e("v_add_u32 v36, s57, v36")
    e("v_lshrrev_b32 v37, 1, v31")
    e("v_lshlrev_b32 v37, 4, v37")
    e("v_lshl_add_u32 v37, v33, 2, v37")
    e("v_and_b32 v35, 1, v31")
    e("v_lshl_add_u32 v37, v35, 1, v37")
    e("s_lshl_b32 s57, s55, 5")
    e("v_add_u32 v37, s57, v37")
    e("s_cmp_eq_u32 s54, 1")
    e("s_cselect_b64 vcc, -1, 0")
    e("s_nop 1")
    e("v_cndmask_b32 v36, v36, v37, vcc")
    e("v_lshlrev_b32 v36, 7, v36")
    e("v_lshl_add_u32 v36, v34, 1, v36")
    e("s_lshl_b32 s57, s54, 13")
    e("v_add_u32 v36, s57, v36")
    e("buffer_load_ushort v37, v36, s[48:51], 0 offen")
    e("buffer_load_ushort v38, v36, s[48:51], 0 offen offset:128")
    e("s_lshl_b32 s57, s52, 10")
    e(f"s_add_u32 s57, s57, {WS_WF}")
    e("v_lshlrev_b32 v39, 2, v30")
    e("v_add_u32 v39, s57, v39")
    e("s_barrier")
    e("s_waitcnt vmcnt(0)")
    e("v_lshl_or_b32 v37, v38, 16, v37")
    e("buffer_store_dword v37, v39, s[16:19], 0 offen sc1")
    e("s_branch P_SKIP2")
    e("P_NOW:")
    e("s_barrier")
    e("s_mov_b64 exec, s[62:63]")
    e("s_cbranch_execz P_SKIP2")
    if DFIRST:
        e("buffer_load_dwordx4 v[8:11], v2, s[36:39], 0 offen")
        e("buffer_load_dwordx2 v[12:13], v3, s[44:47], 0 offen")
    e("s_waitcnt vmcnt(2)")
    for i in range(4):
        e(f"v_lshrrev_b32 v{14+i}, 2, v{4+i}")
        e(f"v_mul_u32_u24 v{14+i}, 21400, v{14+i}")
        e(f"v_lshrrev_b32 v{14+i}, 20, v{14+i}")
        e(f"v_lshlrev_b32 v{14+i}, 2, v{14+i}")
        e(f"ds_add_rtn_u32 v{18+i}, v{14+i}, v{ONE}")
    e("P_SKIP2:")
    e("s_mov_b64 exec, -1")
    e("s_waitcnt lgkmcnt(0)")
    e("s_barrier")
    stamp(1)
    e(f"s_cmp_eq_u32 s{S_TAU}, 15")
    e("s_cbranch_scc0 P_SKIP3")
    e(f"ds_read_b128 v[32:35], v{L16}")
    e("s_waitcnt lgkmcnt(0)")
    e("v_add_u32 v36, v32, v33")
    e("v_add_u32 v37, v36, v34")
    e("v_add_u32 v38, v37, v35")
    e("v_mov_b32 v39, v38")
    wave_scan(39)
    e("v_sub_u32 v40, v39, v38")
    e("v_add_u32 v41, v40, v32")
    e("v_add_u32 v42, v40, v36")
    e("v_add_u32 v43, v40, v37")
    for i in range(4):
        e(f"v_add_u32 v{48+i}, 128, v{40+i}")
    e(f"ds_write_b128 v{L16}, v[48:51]")
    for i in range(4):
        e(f"v_lshl_or_b32 v{44+i}, v{32+i}, 16, v{40+i}")
    e("s_lshl_b32 s52, s2, 10")
    e(f"s_add_u32 s52, s52, {WS_TABLE}")
    e(f"buffer_store_dwordx4 v[44:47], v{L16}, s[16:19], s52 offen sc1")
    e("P_SKIP3:")
    e("s_waitcnt lgkmcnt(0)")
    e("s_barrier")
    e("s_mov_b64 exec, s[62:63]")
    e("s_cbranch_execz P_SKIP4")
    for i in range(4):
        e(f"ds_read_b32 v{14+i}, v{14+i}")
    e("s_waitcnt vmcnt(0)")
    e("v_lshl_or_b32 v8, v12, 16, v8")
    e("v_and_or_b32 v9, v12, s60, v9")
    e("v_lshl_or_b32 v10, v13, 16, v10")
    e("v_and_or_b32 v11, v13, s60, v11")
    for i in range(4):
        e(f"s_waitcnt lgkmcnt({3-i})")
        e(f"v_add_lshl_u32 v{14+i}, v{14+i}, v{18+i}, 3")
    for i in range(4):
        e(f"ds_write2_b32 v{14+i}, v{8+i}, v{4+i} offset0:0 offset1:1")
    e("P_SKIP4:")
    e("s_mov_b64 exec, -1")
    e("s_waitcnt lgkmcnt(0)")
    e("s_barrier")
    e("v_lshlrev_b32 v30, 4, v0")
    e("ds_read_b128 v[32:35], v30 offset:1024")
    e(f"s_mul_i32 s52, s2, {CHB}")
    e(f"s_add_u32 s53, s52, 0x4000")
    e(f"s_cmp_ge_u32 s{S_TAU}, {(CHB//16 - 1024)//64}")
    e("s_cbranch_scc1 P_SKIP5")
    e(f"ds_read_b128 v[36:39], v30 offset:{1024+16384}")
    e("s_waitcnt lgkmcnt(0)")
    e("buffer_store_dwordx4 v[36:39], v30, s[16:19], s53 offen sc1")
    e("P_SKIP5:")
    e("s_waitcnt lgkmcnt(0)")
    e("buffer_store_dwordx4 v[32:35], v30, s[16:19], s52 offen sc1")
    e("P_END:")


def issue_gather(slot, src=None):
    src = SRC4 if src is None else src
    for i in range(4):
        e(f"s_add_u32 m0, s{S_SB}, {slot*4096 + i*1024}")
        e(f"v_mad_u32_u16 v{GOFF+i}, v{src+i}, s{S_128}, v{LOFF+i}")
        e(f"buffer_load_dwordx4 v{GOFF+i}, s[12:15], 0 offen lds")


def next_slot(q):
    e(f"s_ff1_i32_b32 s{q}, s{S_MSK}")
    e(f"s_max_i32 s{q}, s{q}, 0")
    e(f"s_bitset0_b32 s{S_MSK}, s{q}")
    e(f"s_lshl_b32 s{q}, s{q}, 7")


def main_loop(p):
    e(f"s_bcnt1_i32_b32 s{S_REM}, s{S_MSK}")
    e(f"s_cmp_eq_u32 s{S_REM}, 0")
    e(f"s_cbranch_scc1 {p}_DONE")
    if PRIO:
        e("s_setprio 3")
    next_slot(S_Q0)
    e(f"v_add_u32 v{T0}, s{S_Q0}, v{ASRC}")
    e(f"ds_read_b128 v[{SRC4}:{SRC4+3}], v{T0}")
    next_slot(S_Q1)
    e(f"v_add_u32 v{T0+1}, s{S_Q1}, v{ASRC}")
    e(f"ds_read_b128 v[{E8}:{E8+3}], v{T0+1}")
    next_slot(S_Q2)
    e("s_waitcnt lgkmcnt(1)")
    issue_gather(0)
    e(f"s_cmp_lt_u32 s{S_REM}, 2")
    e(f"s_cbranch_scc1 {p}_LOOP0")
    e("s_waitcnt lgkmcnt(0)")
    issue_gather(1, E8)
    for P in range(2):
        e(f"{p}_LOOP{P}:")
        e(f"s_lshr_b32 s{S_TMP}, s{S_Q0}, 1")
        e(f"v_add_u32 v{T0}, s{S_Q0}, v{AEW}")
        e(f"v_add_u32 v{T0+1}, s{S_TMP}, v{AOH}")
        e(f"v_add_u32 v{T0+2}, s{S_Q2}, v{ASRC}")
        e(f"ds_read_b128 v[{E8}:{E8+3}], v{T0}")
        e(f"ds_read_b128 v[{E8+4}:{E8+7}], v{T0} offset:16")
        e(f"ds_read_b128 v[{OH4}:{OH4+3}], v{T0+1}")
        e(f"ds_read_b128 v[{SRC4}:{SRC4+3}], v{T0+2}")
        e(f"s_mov_b32 s{S_Q0}, s{S_Q1}")
        e(f"s_mov_b32 s{S_Q1}, s{S_Q2}")
        next_slot(S_Q2)
        if PRIO:
            for th, pr in PRTH:
                e(f"s_cmp_eq_u32 s{S_REM}, {th}")
                e(f"s_cbranch_scc0 {p}_PR{P}_{th}")
                e(f"s_setprio {pr}")
                e(f"{p}_PR{P}_{th}:")
        e(f"s_cmp_eq_u32 s{S_REM}, 1")
        e(f"s_cbranch_scc1 {p}_W0_{P}")
        e("s_waitcnt vmcnt(4)")
        e(f"s_branch {p}_W1_{P}")
        e(f"{p}_W0_{P}:")
        e("s_waitcnt vmcnt(0)")
        e(f"{p}_W1_{P}:")
        for t in range(4):
            for h in range(2):
                r = A + t * 4 + h * 2
                if os.environ.get("NOTR") and (t or h):
                    continue
                e(f"ds_read_b64_tr_b16 v[{r}:{r+1}], v{TRA+t} offset:{P*4096 + h*256}")
        e("s_waitcnt lgkmcnt(9)" if not os.environ.get("NOTR") else "s_waitcnt lgkmcnt(2)")
        for i in range(4):
            e(f"v_pk_lshlrev_b16 v{BF+i}, v{SHAMT}, v{OH4+i}")
            e(f"v_perm_b32 v{E8+2*i}, v{E8+2*i+1}, v{E8+2*i}, s{S_PERM}")
        for i in range(4):
            e(f"v_pk_ashrrev_i16 v{BF+i}, s{S_F}, v{BF+i}")
        for i in range(4):
            e(f"v_and_b32 v{BF+i}, v{BF+i}, v{E8+2*i}")
        e("s_waitcnt lgkmcnt(0)")
        e(f"s_cmp_lt_u32 s{S_REM}, 3")
        e(f"s_cbranch_scc1 {p}_NI_{P}")
        issue_gather(P)
        e(f"{p}_NI_{P}:")
        for t in range(4):
            a = A + t * 4
            c = ACC + t * 4
            e(f"v_mfma_f32_16x16x32_bf16 v[{c}:{c+3}], v[{a}:{a+3}], v[{BF}:{BF+3}], v[{c}:{c+3}]")
        e(f"s_sub_u32 s{S_REM}, s{S_REM}, 1")
        e(f"s_cmp_eq_u32 s{S_REM}, 0")
        e(f"s_cbranch_scc1 {p}_DONE")
        if P == 1:
            e(f"s_branch {p}_LOOP0")
    e(f"{p}_DONE:")
    if PRIO:
        e("s_setprio 0")


def set_list_ptrs():
    e(f"v_and_b32 v{T0}, 8, v1")
    e(f"v_lshlrev_b32 v{T0}, 2, v{T0}")
    e(f"v_and_b32 v{T0+1}, 16, v1")
    e(f"v_or_b32 v{T0}, v{T0}, v{T0+1}")
    e(f"v_and_b32 v{T0+1}, 32, v1")
    e(f"v_lshl_or_b32 v{T0}, v{T0+1}, 1, v{T0}")
    e(f"v_add_u32 v{ASRC}, s{S_LB}, v{T0}")
    e(f"v_and_b32 v{T0}, 48, v1")
    e(f"v_lshl_add_u32 v{AEW}, v{T0}, 1, s{S_LB}")
    e(f"s_sub_u32 s{S_TMP}, s{S_LB}, {L_LA}")
    e(f"s_lshr_b32 s{S_TMP}, s{S_TMP}, 1")
    e(f"s_add_u32 s{S_TMP}, s{S_TMP}, {L_LB}")
    e(f"v_add_u32 v{AOH}, s{S_TMP}, v{T0}")


def lane_constants():
    set_list_ptrs()
    e(f"v_and_b32 v{T0}, 7, v1")
    for i in range(4):
        e(f"v_xor_b32 v{LOFF+i}, {0 if os.environ.get('NOSWZ') else 2*i}, v{T0}")
        e(f"v_lshlrev_b32 v{LOFF+i}, 4, v{LOFF+i}")
    e(f"v_bfe_u32 v{T0}, v1, 2, 2")
    e(f"v_lshlrev_b32 v{T0+1}, 10, v{T0}")
    e(f"v_and_b32 v{T0+2}, 16, v1")
    e(f"v_lshl_add_u32 v{T0+1}, v{T0+2}, 3, v{T0+1}")
    e(f"v_and_b32 v{T0+2}, 32, v1")
    e(f"v_lshl_add_u32 v{T0+1}, v{T0+2}, 4, v{T0+1}")
    e(f"v_and_b32 v{T0+2}, 3, v1")
    e(f"v_lshl_add_u32 v{T0+1}, v{T0+2}, 3, v{T0+1}")
    e(f"v_add_u32 v{T0+1}, s{S_SB}, v{T0+1}")
    for t in range(4):
        e(f"v_xor_b32 v{T0+2}, {t}, v{T0}")
        e(f"v_lshl_add_u32 v{TRA+t}, v{T0+2}, 5, v{T0+1}")
    e(f"v_and_b32 v{T0}, 15, v1")
    e(f"v_sub_u32 v{T0}, 15, v{T0}")
    e(f"v_lshl_or_b32 v{SHAMT}, v{T0}, 16, v{T0}")
    for i in range(16):
        e(f"v_mov_b32 v{ACC+i}, 0")
    e(f"v_lshrrev_b32 v{T0}, 4, v0")
    e(f"v_and_b32 v{J16}, 15, v0")
    e(f"v_mul_u32_u24 v{GBASE}, {4*CHB}, v{T0}")
    e(f"v_lshl_add_u32 v{GBASE}, v{J16}, 3, v{GBASE}")
    e(f"s_lshl_b32 s{S_TMP}, s{S_B}, 2")
    e(f"s_add_u32 s{S_TMP}, s{S_TMP}, {WS_TABLE}")
    e(f"v_lshlrev_b32 v{POS}, 12, v{T0}")
    e(f"v_add_u32 v{POS}, s{S_TMP}, v{POS}")
    e(f"v_mov_b32 v{T0+1}, 0x7f000000")
    e(f"v_lshlrev_b32 v{T0}, 2, v{T0}")
    e(f"v_cmp_gt_u32 vcc, {NCH-2}, v{T0}")
    e("s_nop 1")
    e(f"v_cndmask_b32 v{DESC+2}, v{T0+1}, v{POS}, vcc")
    e(f"v_cmp_gt_u32 vcc, {NCH}, v{T0}")
    e("s_nop 1")
    e(f"v_cndmask_b32 v{DESC}, v{T0+1}, v{POS}, vcc")


def entry_loads():
    e(f"s_lshl_b32 s{S_TMP+1}, s{S_W32}, 3")
    e(f"v_add_u32 v{T0+3}, 16, v{J16}")
    e(f"v_mov_b32 v{T0+4}, 0x7f000000")
    e(f"v_mov_b32 v{T0+6}, 0")
    for r in range(4):
        m0 = S_MASK + 4 * r
        m1 = m0 + 2
        e(f"s_waitcnt vmcnt({3 - r + 2*r})")
        e(f"v_lshrrev_b32 v{T0}, 16, v{DESC+r}")
        e(f"v_subrev_u32 v{T0}, s{S_W32}, v{T0}")
        e(f"v_max_i32 v{T0+6}, v{T0+6}, v{T0}")
        e(f"v_cmp_gt_i32 s[{m0}:{m0+1}], v{T0}, v{J16}")
        e(f"v_cmp_gt_i32 s[{m1}:{m1+1}], v{T0}, v{T0+3}")
        e(f"v_and_b32 v{T0+1}, 0xffff, v{DESC+r}")
        e(f"v_lshl_add_u32 v{T0+1}, v{T0+1}, 3, v{GBASE}")
        e(f"s_add_u32 s{S_TMP}, s{S_TMP+1}, {r*CHB}")
        e(f"v_cndmask_b32 v{T0+2}, v{T0+4}, v{T0+1}, s[{m0}:{m0+1}]")
        e(f"v_cndmask_b32 v{T0+5}, v{T0+4}, v{T0+1}, s[{m1}:{m1+1}]")
        en0 = EN + 4 * r
        e(f"buffer_load_dwordx2 v[{en0}:{en0+1}], v{T0+2}, s[16:19], s{S_TMP} offen")
        e(f"buffer_load_dwordx2 v[{en0+2}:{en0+3}], v{T0+5}, s[16:19], s{S_TMP} offen offset:128")


def pad_code():
    e(f"s_sub_i32 s{S_TMP}, s{S_CNT}, s{S_U}")
    e(f"s_max_i32 s{S_TMP}, s{S_TMP}, 0")
    e(f"s_min_i32 s{S_TMP}, s{S_TMP}, {TCAP}")
    e(f"s_add_u32 s{S_REM}, s{S_TMP}, 31")
    e(f"s_lshr_b32 s{S_REM}, s{S_REM}, 5")
    e(f"s_lshl_b32 s{S_TMP+1}, s{S_REM}, 5")
    e(f"v_add_u32 v{T0}, s{S_TMP}, v1")
    e(f"v_cmp_gt_u32 vcc, s{S_TMP+1}, v{T0}")
    e(f"s_sub_u32 s{S_TMP+1}, s{S_LB}, {L_LA}")
    e(f"v_lshl_add_u32 v{T0+1}, v{T0}, 2, s{S_TMP+1}")
    e(f"v_lshrrev_b32 v{T0+2}, 1, v{T0+1}")
    e(f"v_mov_b32 v{T0+3}, 0xffff")
    e("s_mov_b64 exec, vcc")
    e(f"ds_write_b32 v{T0+1}, v{T0+3} offset:{L_LA}")
    e(f"ds_write_b16 v{T0+2}, v{ZERO} offset:{L_LB}")
    e("s_mov_b64 exec, -1")


def xw_loads():
    e(f"s_cmp_ge_u32 s{S_TAU}, 13")
    e("s_cbranch_scc1 XW_W")
    e(f"v_and_b32 v{T0}, 15, v1")
    e(f"v_lshlrev_b32 v{T0}, 7, v{T0}")
    e(f"v_and_b32 v{T0+1}, 48, v1")
    e(f"v_lshl_add_u32 v{T0}, v{T0+1}, 1, v{T0}")
    e(f"buffer_load_dwordx4 v[{XT}:{XT+3}], v{T0}, s[20:23], s{S_TOFF} offen")
    e(f"buffer_load_dwordx4 v[{XT+4}:{XT+7}], v{T0}, s[20:23], s{S_TOFF} offen offset:16")
    e("s_branch XW_END")
    e("XW_W:")
    e(f"s_sub_u32 s{S_TMP}, s{S_TAU}, 13")
    e(f"s_lshl_b32 s{S_TMP}, s{S_TMP}, 13")
    for j in range(2):
        e(f"s_add_u32 m0, s{S_TMP}, {L_WF + j*4096}")
        e(f"s_add_u32 s{S_TMP+1}, s{S_TMP}, {WS_WF + j*4096}")
        for i in range(4):
            e(f"buffer_load_dwordx4 v{L16}, s[16:19], s{S_TMP+1} offen offset:{i*1024} lds")
    e("XW_END:")


def fast_sort():
    e(f"s_mov_b32 s{S_W32}, 0")
    e("FS_WIN:")
    entry_loads()
    e(f"s_movk_i32 s{S_TMP+2}, {TLA}")
    for k in range(8):
        en = EN + 2 * k
        m = S_MASK + 2 * k
        e(f"s_waitcnt vmcnt({7-k})")
        e(f"s_mov_b64 exec, s[{m}:{m+1}]")
        if k & 1:
            e(f"s_cbranch_execz FS_RK{k}")
        e(f"v_subrev_u32 v{en+1}, s{S_NB0}, v{en+1}")
        e(f"v_mad_u32_u16 v{T0}, v{en}, s{S_K}, 0")
        e(f"v_lshrrev_b32 v{T0+1}, 4, v{en+1}")
        e(f"v_lshrrev_b32 v{T0}, 26, v{T0}")
        e(f"v_lshl_add_u32 v{T0+2}, v{T0+1}, 2, v{T0}")
        e(f"v_lshlrev_b32 v{T0+2}, 2, v{T0+2}")
        e(f"ds_add_rtn_u32 v{POS+k}, v{T0+2}, v{FOUR}")
        e(f"v_mul_u32_u24 v{T0+1}, s{S_TMP+2}, v{T0+1}")
        e(f"v_lshl_add_u32 v{A+k}, v{T0}, 9, v{T0+1}")
        e(f"v_and_b32 v{en+1}, 15, v{en+1}")
        e(f"v_lshlrev_b32 v{en+1}, v{en+1}, v{ONE}")
        if k & 1:
            e(f"FS_RK{k}:")
    e("s_waitcnt lgkmcnt(0)")
    e(f"s_movk_i32 s{S_TMP+2}, 508")
    for k in range(8):
        en = EN + 2 * k
        m = S_MASK + 2 * k
        e(f"s_mov_b64 exec, s[{m}:{m+1}]")
        if k & 1:
            e(f"s_cbranch_execz FS_WR{k}")
        e(f"v_min_u32 v{POS+k}, s{S_TMP+2}, v{POS+k}")
        e(f"v_add_u32 v{POS+k}, v{POS+k}, v{A+k}")
        e(f"v_lshrrev_b32 v{A+k}, 1, v{POS+k}")
        e(f"ds_write_b32 v{POS+k}, v{en} offset:{L_LA}")
        e(f"ds_write_b16 v{A+k}, v{en+1} offset:{L_LB}")
        if k & 1:
            e(f"FS_WR{k}:")
    e("s_mov_b64 exec, -1")
    e(f"v_cmp_lt_i32 vcc, 32, v{T0+6}")
    e(f"s_add_u32 s{S_W32}, s{S_W32}, 32")
    e("s_cbranch_vccnz FS_WIN")
    xw_loads()
    e(f"v_lshlrev_b32 v{T0}, 2, v1")
    e("s_waitcnt lgkmcnt(0)")
    e("s_barrier")
    stamp(4)
    e(f"ds_read_b32 v{T0+4}, v{T0} offset:{L_BINS}")
    e(f"s_lshl_b32 s{S_TMP+3}, s{S_TAU}, 2")
    e(f"s_sub_u32 s{S_TMP+4}, s{S_LB}, {L_LA}")
    e(f"s_mov_b32 s{S_MSK}, 0")
    e(f"v_mov_b32 v{T0+3}, 0xffff")
    e("s_waitcnt lgkmcnt(0)")
    e(f"v_cmp_lt_u32 vcc, 0x200, v{T0+4}")
    e(f"s_mov_b32 s{S_FAST}, 0")
    e("s_cbranch_vccnz A_START0")
    e(f"s_mov_b32 s{S_FAST}, 1")
    e(f"s_cmp_ge_u32 s{S_TAU}, 13")
    e("s_cbranch_scc1 FS_END")
    for b_ in range(3):
        e(f"s_add_u32 s{S_TMP}, s{S_TMP+3}, {b_}")
        e("s_nop 0")
        e(f"v_readlane_b32 s{S_TMP}, v{T0+4}, s{S_TMP}")
        e("s_nop 0")
        e(f"s_add_u32 s{S_TMP+1}, s{S_TMP}, 127")
        e(f"s_lshr_b32 s{S_TMP+1}, s{S_TMP+1}, 7")
        e(f"s_bfm_b32 s{S_TMP+2}, s{S_TMP+1}, {4*b_}")
        e(f"s_or_b32 s{S_MSK}, s{S_MSK}, s{S_TMP+2}")
        e(f"s_lshl_b32 s{S_TMP+1}, s{S_TMP+1}, 7")
        e(f"v_add_u32 v{T0+1}, s{S_TMP}, v{T0}")
        e(f"v_cmp_gt_u32 vcc, s{S_TMP+1}, v{T0+1}")
        e(f"v_add_u32 v{T0+1}, s{S_TMP+4}, v{T0+1}")
        e(f"v_lshrrev_b32 v{T0+2}, 1, v{T0+1}")
        e("s_mov_b64 exec, vcc")
        e(f"ds_write_b32 v{T0+1}, v{T0+3} offset:{L_LA + 512*b_}")
        e(f"ds_write_b16 v{T0+2}, v{ZERO} offset:{L_LB + 256*b_}")
        e("s_mov_b64 exec, -1")
    e("FS_END:")
    e(f"s_mov_b32 s{S_HDR}, s{S_MSK}")
    e(f"s_mov_b32 s{S_U}, 0")
    e(f"s_mov_b32 s{S_MAXC}, 0")
    e(f"s_mov_b32 s{S_MORE}, 0")
    stamp(5)
    e("s_branch A_ML")
    e("A_START0:")
    e("s_barrier")


def generic_sort_and_loop(p):
    e(f"{p}_START:")
    e(f"s_mov_b32 s{S_W32}, 0")
    e(f"s_mov_b32 s{S_NWIN}, 0")
    e(f"{p}_WIN:")
    e(f"v_lshlrev_b32 v{T0}, 2, v0")
    e("v_cmp_gt_u32 vcc, 130, v0")
    e(f"s_and_saveexec_b64 s[{S_X}:{S_X+1}], vcc")
    e(f"ds_write_b32 v{T0}, v{ZERO}")
    e(f"s_mov_b64 exec, s[{S_X}:{S_X+1}]")
    entry_loads()
    e("s_waitcnt lgkmcnt(0)")
    e("s_barrier")
    e(f"v_cmp_lt_i32 vcc, 32, v{T0+6}")
    e(f"s_and_saveexec_b64 s[{S_X}:{S_X+1}], vcc")
    e(f"v_mov_b32 v{T0}, {L_MORE}")
    e(f"ds_write_b32 v{T0}, v{ONE}")
    e(f"s_mov_b64 exec, s[{S_X}:{S_X+1}]")
    e(f"s_movk_i32 s{S_TMP+2}, {TLA}")
    for k in range(8):
        en = EN + 2 * k
        ba = A + k
        m = S_MASK + 2 * k
        e(f"s_waitcnt vmcnt({7-k})")
        e(f"s_mov_b64 exec, s[{m}:{m+1}]")
        if k & 1:
            e(f"s_cbranch_execz {p}_RK{k}")
        e(f"v_subrev_u32 v{en+1}, s{S_NB0}, v{en+1}")
        e(f"v_mad_u32_u16 v{T0}, v{en}, 21, s{S_ROT}")
        e(f"v_lshrrev_b32 v{T0+1}, 4, v{en+1}")
        e(f"v_bfe_u32 v{T0}, v{T0}, 17, 3")
        e(f"v_lshl_add_u32 v{ba}, v{T0+1}, 3, v{T0}")
        e(f"v_lshlrev_b32 v{ba}, 2, v{ba}")
        e(f"ds_add_rtn_u32 v{POS+k}, v{ba}, v{FOUR}")
        e(f"v_and_b32 v{T0}, 15, v{en+1}")
        e(f"v_lshlrev_b32 v{T0}, v{T0}, v{ONE}")
        e(f"v_mul_u32_u24 v{T0+1}, s{S_TMP+2}, v{T0+1}")
        e(f"v_lshl_or_b32 v{en+1}, v{T0}, 16, v{T0+1}")
        if k & 1:
            e(f"{p}_RK{k}:")
    e("s_mov_b64 exec, -1")
    e("s_waitcnt lgkmcnt(0)")
    e("s_barrier")
    e(f"s_mov_b32 s{S_CNT}, 0")
    e(f"s_cmp_ge_u32 s{S_TAU}, s{S_NT}")
    e(f"s_cbranch_scc1 {p}_NOSCAN")
    e(f"s_lshl_b32 s{S_TMP}, s{S_TAU}, 5")
    e(f"v_lshlrev_b32 v{T0}, 2, v1")
    e(f"v_add_u32 v{T0}, s{S_TMP}, v{T0}")
    e(f"v_mov_b32 v{T0+1}, 0")
    e("s_mov_b64 exec, 0xff")
    e(f"ds_read_b32 v{T0+1}, v{T0} offset:{L_BINS}")
    e("s_mov_b64 exec, -1")
    e(f"s_sub_u32 s{S_TMP+1}, s{S_LB}, {L_LA}")
    e("s_waitcnt lgkmcnt(0)")
    e(f"v_mov_b32 v{T0+2}, v{T0+1}")
    wave_scan(T0 + 2, full=False)
    e(f"v_sub_u32 v{T0+3}, v{T0+2}, v{T0+1}")
    e(f"v_readlane_b32 s{S_CNT}, v{T0+2}, 7")
    e(f"v_add_u32 v{T0+3}, s{S_TMP+1}, v{T0+3}")
    e("s_mov_b64 exec, 0xff")
    e(f"ds_write_b32 v{T0}, v{T0+3} offset:{L_BINS}")
    e(f"s_lshr_b32 s{S_CNT}, s{S_CNT}, 2")
    e("s_mov_b64 exec, 1")
    e(f"v_mov_b32 v{T0}, {L_MAXC}")
    e(f"v_mov_b32 v{T0+1}, s{S_CNT}")
    e(f"ds_max_u32 v{T0}, v{T0+1}")
    e("s_mov_b64 exec, -1")
    e(f"{p}_NOSCAN:")
    e(f"s_mov_b32 s{S_U}, 0")
    pad_code()
    e("s_waitcnt lgkmcnt(0)")
    e("s_barrier")
    e(f"v_mov_b32 v{T0}, {L_MAXC}")
    e(f"ds_read_b64 v[{T0+1}:{T0+2}], v{T0}")
    for k in range(8):
        m = S_MASK + 2 * k
        e(f"s_mov_b64 exec, s[{m}:{m+1}]")
        e(f"ds_read_b32 v{A+k}, v{A+k}")
    e("s_mov_b64 exec, -1")
    e("s_waitcnt lgkmcnt(0)")
    e(f"v_readfirstlane_b32 s{S_MAXC}, v{T0+1}")
    e(f"v_readfirstlane_b32 s{S_MORE}, v{T0+2}")
    e(f"s_cmp_gt_u32 s{S_MAXC}, {TCAP}")
    e(f"s_cbranch_scc1 {p}_SLOWSC")
    for k in range(8):
        en = EN + 2 * k
        m = S_MASK + 2 * k
        e(f"s_mov_b64 exec, s[{m}:{m+1}]")
        if k & 1:
            e(f"s_cbranch_execz {p}_FS{k}")
        e(f"v_add_u32 v{POS+k}, v{POS+k}, v{A+k}")
        e(f"v_lshrrev_b32 v{A+k}, 1, v{POS+k}")
        e(f"ds_write_b32 v{POS+k}, v{en} offset:{L_LA}")
        e(f"ds_write_b16_d16_hi v{A+k}, v{en+1} offset:{L_LB}")
        if k & 1:
            e(f"{p}_FS{k}:")
    e("s_mov_b64 exec, -1")
    e(f"s_branch {p}_SCDONE")
    e(f"{p}_SLOWSC:")
    for k in range(8):
        e(f"v_add_u32 v{POS+k}, v{POS+k}, v{A+k}")
    e(f"{p}_SUB:")
    e(f"s_lshl_b32 s{S_TMP}, s{S_U}, 2")
    for k in range(8):
        en = EN + 2 * k
        m = S_MASK + 2 * k
        e(f"v_and_b32 v{T0+1}, 0xffff, v{en+1}")
        e(f"v_subrev_u32 v{T0}, s{S_TMP}, v{POS+k}")
        e(f"v_sub_u32 v{T0+1}, v{T0}, v{T0+1}")
        e(f"v_cmp_gt_u32 vcc, {TLA}, v{T0+1}")
        e(f"v_lshrrev_b32 v{T0+2}, 1, v{T0}")
        e(f"s_and_b64 exec, vcc, s[{m}:{m+1}]")
        e(f"ds_write_b32 v{T0}, v{en} offset:{L_LA}")
        e(f"ds_write_b16_d16_hi v{T0+2}, v{en+1} offset:{L_LB}")
        e("s_mov_b64 exec, -1")
    pad_code()
    e(f"{p}_SCDONE:")
    e(f"s_bfm_b32 s{S_MSK}, s{S_REM}, 0")
    e("s_waitcnt lgkmcnt(0)")
    e("s_barrier")
    e(f"{p}_ML:")
    main_loop(p + "G")
    e(f"s_add_u32 s{S_NWIN}, s{S_NWIN}, 1")
    e(f"s_add_u32 s{S_U}, s{S_U}, {TCAP}")
    e(f"s_cmp_lt_u32 s{S_U}, s{S_MAXC}")
    e(f"s_cbranch_scc0 {p}_SUBDONE")
    e("s_barrier")
    e(f"s_branch {p}_SUB")
    e(f"{p}_SUBDONE:")
    e(f"s_cmp_eq_u32 s{S_MORE}, 0")
    e(f"s_cbranch_scc1 {p}_WINDONE")
    e(f"s_add_u32 s{S_W32}, s{S_W32}, 32")
    e("s_barrier")
    e(f"s_branch {p}_WIN")
    e(f"{p}_WINDONE:")


def tile_store(regs, srdn, base_off, mods, lbl):
    e(f"v_and_b32 v{T0}, 15, v1")
    e(f"v_lshlrev_b32 v{T0}, 7, v{T0}")
    e(f"v_and_b32 v{T0+1}, 48, v1")
    e(f"v_lshl_add_u32 v{T0}, v{T0+1}, 1, v{T0}")
    e(f"v_add_u32 v{T0}, s{S_SB}, v{T0}")
    e(f"ds_write_b128 v{T0}, v[{regs}:{regs+3}]")
    e(f"ds_write_b128 v{T0}, v[{regs+4}:{regs+7}] offset:16")
    e(f"v_add_u32 v{T0+1}, s{S_SB}, v{L16}")
    e(f"s_add_u32 s{S_TMP}, s{S_TOFF}, {base_off}")
    e(f"s_sub_i32 s{S_TMP+1}, s{S_ROWB}, 1024")
    e(f"v_cmp_gt_i32 vcc, s{S_TMP+1}, v{L16}")
    e(f"v_cmp_gt_i32 s[{S_X}:{S_X+1}], s{S_ROWB}, v{L16}")
    e("s_waitcnt lgkmcnt(0)")
    e(f"ds_read_b128 v[{A}:{A+3}], v{T0+1}")
    e(f"ds_read_b128 v[{A+4}:{A+7}], v{T0+1} offset:1024")
    e(f"s_mov_b64 exec, s[{S_X}:{S_X+1}]")
    e("s_waitcnt lgkmcnt(1)")
    e(f"buffer_store_dwordx4 v[{A}:{A+3}], v{L16}, s[{srdn}:{srdn+3}], s{S_TMP} offen{mods}")
    e("s_mov_b64 exec, vcc")
    e(f"s_cbranch_execz {lbl}")
    e("s_waitcnt lgkmcnt(0)")
    e(f"buffer_store_dwordx4 v[{A+4}:{A+7}], v{L16}, s[{srdn}:{srdn+3}], s{S_TMP} offen offset:1024{mods}")
    e(f"{lbl}:")
    e("s_mov_b64 exec, -1")


def gemm_xt1(dst):
    e(f"v_add_u32 v{T0+1}, {L_WF}, v{L16}")
    WB = [A, BF]
    steps = [(0, 0), (0, 1), (1, 0), (1, 1)]
    Bsrc = {0: XT, 1: T1T}

    def ldw(idx):
        k, s_ = steps[idx]
        wb = WB[idx & 1]
        for t in range(4):
            f = k * 8 + s_ * 4 + t
            e(f"ds_read_b128 v[{wb+4*t}:{wb+4*t+3}], v{T0+1} offset:{f*1024}")
    ldw(0)
    for idx in range(4):
        if idx + 1 < 4:
            ldw(idx + 1)
            e("s_waitcnt lgkmcnt(4)")
        else:
            e("s_waitcnt lgkmcnt(0)")
        k, s_ = steps[idx]
        wb = WB[idx & 1]
        b = Bsrc[k] + 4 * s_
        for t in range(4):
            c = dst + 4 * t
            src_c = "0" if idx == 0 else f"v[{c}:{c+3}]"
            e(f"v_mfma_f32_16x16x32_bf16 v[{c}:{c+3}], v[{wb+4*t}:{wb+4*t+3}], v[{b}:{b+3}], {src_c}")


def gen():
    name = "standalone__spectral_conv_chebnet__graph_kernel"
    e(".text")
    e(f".globl {name}")
    e(".p2align 8")
    e(f".type {name},@function")
    e(f"{name}:")
    e(f"s_cmp_ge_u32 s2, {NB}")
    e("s_cbranch_scc1 K_END")
    e("s_load_dwordx2 s[4:5], s[0:1], 0")
    e("s_load_dwordx2 s[6:7], s[0:1], 56")
    e("s_load_dwordx4 s[8:11], s[0:1], 40")
    e("v_and_b32 v1, 63, v0")
    e(f"v_lshrrev_b32 v{T0}, 6, v0")
    e(f"v_lshlrev_b32 v{L16}, 4, v1")
    e(f"v_readfirstlane_b32 s{S_TAU}, v{T0}")
    e(f"v_mov_b32 v{ONE}, 1")
    e(f"v_mov_b32 v{ZERO}, 0")
    if os.environ.get("CPF"):
        e(f"s_cmp_eq_u32 s{S_TAU}, 13")
        e("s_cbranch_scc0 CPF_END")
        e("s_getpc_b64 s[36:37]")
        e("v_lshlrev_b32 v4, 7, v1")
        e("v_add_u32 v5, 0x2000, v4")
        e("s_mov_b64 exec, -1")
        e("global_load_dword v6, v4, s[36:37]")
        e("s_mov_b64 exec, 0xff")
        e("global_load_dword v7, v5, s[36:37]")
        e("s_mov_b64 exec, -1")
        e("CPF_END:")
    phase0()
    stamp(2)
    e(f"s_and_b32 s{S_B}, s2, 7")
    e(f"s_lshl_b32 s{S_ROT}, s{S_B}, 17")
    e(f"s_mov_b32 s{S_ROT}, 0")
    e(f"s_lshl_b32 s{S_B}, s{S_B}, 5")
    e(f"s_lshr_b32 s{S_TMP}, s2, 3")
    e(f"s_add_u32 s{S_B}, s{S_B}, s{S_TMP}")
    e(f"s_mul_i32 s{S_NB0}, s{S_B}, {BN}")
    e(f"s_sub_u32 s{S_TMP}, {N}, s{S_NB0}")
    e(f"s_min_u32 s{S_TMP}, s{S_TMP}, {BN}")
    e(f"s_add_u32 s{S_NT}, s{S_TMP}, 15")
    e(f"s_lshr_b32 s{S_NT}, s{S_NT}, 4")
    e(f"s_lshl_b32 s{S_TMP+1}, s{S_TAU}, 4")
    e(f"s_sub_i32 s{S_ROWB}, s{S_TMP}, s{S_TMP+1}")
    e(f"s_min_i32 s{S_ROWB}, s{S_ROWB}, 16")
    e(f"s_lshl_b32 s{S_ROWB}, s{S_ROWB}, 7")
    e(f"s_add_u32 s{S_TOFF}, s{S_NB0}, s{S_TMP+1}")
    e(f"s_lshl_b32 s{S_TOFF}, s{S_TOFF}, 7")
    e(f"v_mov_b32 v{FOUR}, 4")
    e(f"s_movk_i32 s{S_128}, 128")
    e(f"s_mov_b32 s{S_F}, 0x000f000f")
    e(f"s_mov_b32 s{S_PERM}, 0x07060302")
    e(f"s_min_u32 s{S_TMP}, s{S_TAU}, 12")
    e(f"s_lshl_b32 s{S_SB}, s{S_TMP}, 13")
    e(f"s_add_u32 s{S_SB}, s{S_SB}, {L_STAGE}")
    e(f"s_mul_i32 s{S_LB}, s{S_TMP}, {TLA}")
    e(f"s_add_u32 s{S_LB}, s{S_LB}, {L_LA}")
    e(f"s_mov_b32 s{S_PASS}, 1")
    e(f"s_movk_i32 s{S_K}, 4026")
    srd(12, 4, 5, N * 128)
    srd(24, 8, 9, N * 128)
    lane_constants()

    def between1():
        e(f"s_cmp_eq_u32 s{S_TAU}, 0")
        e("s_cbranch_scc0 B1_END")
        e(f"v_lshlrev_b32 v{T0}, 2, v1")
        e(f"ds_write_b32 v{T0}, v{ZERO} offset:{L_BINS}")
        e("s_waitcnt lgkmcnt(0)")
        e("B1_END:")
    grid_barrier(0, between1)
    stamp(3)
    e(f"v_mov_b32 v{T0}, v{DESC}")
    e(f"v_mov_b32 v{T0+1}, v{DESC+2}")
    e(f"buffer_load_dword v{DESC}, v{T0}, s[16:19], 0 offen")
    e(f"buffer_load_dword v{DESC+1}, v{T0}, s[16:19], 0 offen offset:1024")
    e(f"buffer_load_dword v{DESC+2}, v{T0+1}, s[16:19], 0 offen offset:2048")
    e(f"buffer_load_dword v{DESC+3}, v{T0+1}, s[16:19], 0 offen offset:3072")
    fast_sort()
    generic_sort_and_loop("A")
    e(f"s_cmp_eq_u32 s{S_PASS}, 2")
    e("s_cbranch_scc1 EPI")
    stamp(6)
    e(f"s_cmp_ge_u32 s{S_TAU}, s{S_NT}")
    e("s_cbranch_scc1 T1_DONE")
    e("s_nop 7")
    for t in range(4):
        e(f"v_cvt_pk_bf16_f32 v{T1T+2*t}, v{ACC+4*t}, v{ACC+4*t+1}")
        e(f"v_cvt_pk_bf16_f32 v{T1T+2*t+1}, v{ACC+4*t+2}, v{ACC+4*t+3}")
    tile_store(T1T, 16, WS_T1P, " sc1", "TS1")
    e("T1_DONE:")
    for i in range(16):
        e(f"v_mov_b32 v{ACC+i}, 0")
    srd_off(12, 6, 7, WS_T1P, N * 128)
    e(f"s_mov_b32 s{S_PASS}, 2")

    def between2():
        e(f"s_cmp_ge_u32 s{S_TAU}, s{S_NT}")
        e("s_cbranch_scc1 B2_END")
        e(f"s_cmp_eq_u32 s{S_FAST}, 1")
        e("s_cbranch_scc0 B2_END")
        gemm_xt1(EN)
        e("B2_END:")
    grid_barrier(1, between2)
    stamp(7)
    e(f"s_cmp_eq_u32 s{S_FAST}, 1")
    e("s_cbranch_scc0 A_START")
    e(f"s_mov_b32 s{S_MSK}, s{S_HDR}")
    e(f"s_mov_b32 s{S_MAXC}, 0")
    e(f"s_mov_b32 s{S_MORE}, 0")
    e("s_branch A_ML")
    e("EPI:")
    e(f"s_cmp_ge_u32 s{S_TAU}, s{S_NT}")
    e("s_cbranch_scc1 K_END")
    stamp(8)
    e(f"s_cmp_eq_u32 s{S_FAST}, 1")
    e("s_cbranch_scc1 EPI2")
    gemm_xt1(EN)
    e("EPI2:")
    e(f"v_add_u32 v{T0+1}, {L_WF}, v{L16}")
    for s_ in range(2):
        wb = [A, BF][s_]
        for t in range(4):
            f = 16 + s_ * 4 + t
            e(f"ds_read_b128 v[{wb+4*t}:{wb+4*t+3}], v{T0+1} offset:{f*1024}")
    e(f"s_mov_b32 s{S_TMP+2}, 0xffff0000")
    e("s_nop 3")
    T2 = POS
    TMPA = SRC4
    for i in range(8):
        a = ACC + 2 * i
        e(f"v_cvt_pk_bf16_f32 v{TMPA}, v{a}, v{a+1}")
        e(f"v_lshlrev_b32 v{TMPA+1}, 16, v{XT+i}")
        e(f"v_and_b32 v{TMPA+2}, s{S_TMP+2}, v{XT+i}")
        e(f"v_lshlrev_b32 v{TMPA+3}, 16, v{TMPA}")
        e(f"v_and_b32 v{TMPA+4}, s{S_TMP+2}, v{TMPA}")
        e(f"v_fma_f32 v{TMPA+3}, 2.0, v{TMPA+3}, -v{TMPA+1}")
        e(f"v_fma_f32 v{TMPA+4}, 2.0, v{TMPA+4}, -v{TMPA+2}")
        e(f"v_cvt_pk_bf16_f32 v{T2+i}, v{TMPA+3}, v{TMPA+4}")
    e("s_waitcnt lgkmcnt(0)")
    e("s_nop 1")
    for s_ in range(2):
        wb = [A, BF][s_]
        b = T2 + 4 * s_
        for t in range(4):
            c = EN + 4 * t
            e(f"v_mfma_f32_16x16x32_bf16 v[{c}:{c+3}], v[{wb+4*t}:{wb+4*t+3}], v[{b}:{b+3}], v[{c}:{c+3}]")
    e("s_nop 7")
    e("s_nop 3")
    for t in range(4):
        e(f"v_cvt_pk_bf16_f32 v{ACC+2*t}, v{EN+4*t}, v{EN+4*t+1}")
        e(f"v_cvt_pk_bf16_f32 v{ACC+2*t+1}, v{EN+4*t+2}, v{EN+4*t+3}")
    tile_store(ACC, 24, 0, os.environ.get("OUTMOD", ""), "TS2")
    if DIAG:
        stamp(9)
        e("s_waitcnt vmcnt(0)")
        stamp(10)
        e("s_mov_b64 exec, 1")
        e(f"s_lshl_b32 s{S_TMP}, s2, 4")
        e(f"s_add_u32 s{S_TMP}, s{S_TMP}, s{S_TAU}")
        e(f"s_lshl_b32 s{S_TMP}, s{S_TMP}, 6")
        e(f"s_add_u32 s{S_TMP}, s{S_TMP}, {WS_DIAG}")
        for i in range(11):
            e(f"v_mov_b32 v{T0+1}, s{S_ST+2*i}")
            e(f"buffer_store_dword v{T0+1}, v{ZERO}, s[16:19], s{S_TMP} offen offset:{4*i}")
    if os.environ.get("DBGST"):
        e("s_cmp_eq_u32 s2, 0")
        e("s_cbranch_scc0 K_END")
        e(f"s_cmp_eq_u32 s{S_TAU}, 0")
        e("s_cbranch_scc0 K_END")
        words = [1, 2, 3, 5, 6, 7, 8, 9, 10, 11]
        for i in range(1, 11):
            e(f"s_sub_u32 s{S_TMP}, s{S_ST+2*i}, s{S_ST}")
            e(f"v_mov_b32 v{T0+1}, s{S_TMP}")
            e(f"v_mov_b32 v{T0}, {words[i-1]*4}")
            e(f"global_store_dword v{T0}, v{T0+1}, s[10:11]")
    e("K_END:")
    e("s_endpgm")
    e('.section .rodata,"a"')
    e(".p2align 6")
    e(f".amdhsa_kernel {name}")
    e(f"  .amdhsa_next_free_vgpr {NV}")
    e(f"  .amdhsa_next_free_sgpr {NS}")
    e(f"  .amdhsa_accum_offset {NV}")
    e("  .amdhsa_group_segment_fixed_size 0")
    e("  .amdhsa_kernarg_size 64")
    e("  .amdhsa_user_sgpr_count 2")
    e("  .amdhsa_user_sgpr_kernarg_segment_ptr 1")
    e("  .amdhsa_system_sgpr_workgroup_id_x 1")
    e("  .amdhsa_float_denorm_mode_32 3")
    e("  .amdhsa_float_denorm_mode_16_64 3")
    e(".end_amdhsa_kernel")


HEADER = """; Kernarg layout for this problem (64 bytes, ptrs only, base s[0:1]):
"""


def main():
    out.append(HEADER.rstrip())
    out.append(f"; @launch grid=({NB},1,1) block=(1024,1,1) lds={L_TOTAL}")
    out.append('.amdgcn_target "amdgcn-amd-amdhsa--gfx950"')
    gen()
    path = sys.argv[1] if len(sys.argv) > 1 else "standalone__spectral_conv_chebnet__graph.s"
    open(path, "w").write("\n".join(out) + "\n")


if __name__ == "__main__":
    main()
```

```python
import os
import sys

N = 50000
E = 800000
NCH = 250
CH = 3200
CHB = CH * 8
NB = 256
TCAP = 384
BN = 196
TLA = TCAP * 4
TLB = TCAP * 2

WS_ENT = 0
WS_TABLE = 0x680000
WS_T1P = 0x700000
WS_WF = 0xE00000
WS_USED = 0xE10000

L_BINS = 0
L_MAXC = 512
L_MORE = 516
L_LA = 1024
L_LB = L_LA + 13 * TLA
L_WF = L_LB + 13 * TLB
L_STAGE = L_WF + 24576
L_TOTAL = L_STAGE + 13 * 8192
assert L_STAGE % 256 == 0 and L_TOTAL <= 163840

DIAG = bool(os.environ.get("DIAG"))
PFA = int(os.environ.get("PFA", "0"))
PFB = int(os.environ.get("PFB", "0"))
PRIO = int(os.environ.get("PRIO", "1"))
_pt = [int(x) for x in os.environ.get("PRT", "7,5,3").split(",")]
PRTH = ((_pt[0], 2), (_pt[1], 1), (_pt[2], 0))
TLBW = int(os.environ.get("TLBW", "0"))
PFP = int(os.environ.get("PFP", "0"))
DFIRST = int(os.environ.get("DFIRST", "1"))
WS_DIAG = 0x1600000
if DIAG:
    WS_USED = 0x1800000

out = []


def e(s=""):
    out.append("    " + s if s and not s.endswith(":") else s)


S_ST = 80


def stamp(i):
    if DIAG:
        e("s_waitcnt lgkmcnt(0)")
        e(f"s_memrealtime s[{S_ST+2*i}:{S_ST+2*i+1}]")
        e("s_waitcnt lgkmcnt(0)")


def srd(d, plo, phi, size):
    e(f"s_mov_b32 s{d}, s{plo}")
    e(f"s_and_b32 s{d+1}, s{phi}, 0xffff")
    e(f"s_mov_b32 s{d+2}, {size}")
    e(f"s_mov_b32 s{d+3}, 0x00020000")


def srd_off(d, plo, phi, off, size):
    e(f"s_add_u32 s{d}, s{plo}, {off}")
    e(f"s_addc_u32 s{d+1}, s{phi}, 0")
    e(f"s_and_b32 s{d+1}, s{d+1}, 0xffff")
    e(f"s_mov_b32 s{d+2}, {size}")
    e(f"s_mov_b32 s{d+3}, 0x00020000")


def wave_scan(v, full=True):
    shifts = [1, 2, 4, 8] if full else [1, 2, 4]
    for sh in shifts:
        e("s_nop 1")
        e(f"v_add_u32_dpp v{v}, v{v}, v{v} row_shr:{sh} row_mask:0xf bank_mask:0xf bound_ctrl:0")
    if full:
        e("s_nop 1")
        e(f"v_add_u32_dpp v{v}, v{v}, v{v} row_bcast:15 row_mask:0xa bank_mask:0xf")
        e("s_nop 1")
        e(f"v_add_u32_dpp v{v}, v{v}, v{v} row_bcast:31 row_mask:0xc bank_mask:0xf")
    e("s_nop 1")


ACC = 4
A = 20
BF = 36
E8 = 40
OH4 = 48
SRC4 = 52
GOFF = 56
LOFF = 60
TRA = 64
ASRC = 68
AEW = 69
AOH = 70
SHAMT = 71
L16 = 72
T0 = 73
DESC = 80
EN = 84
POS = 100
XT = 108
T1T = 116
J16 = 124
GBASE = 125
ONE = 126
ZERO = 127
FOUR = 3
NV = 128

S_B, S_NB0, S_NT, S_TAU = 28, 29, 30, 31
S_128, S_F, S_SB, S_LB = 32, 33, 34, 35
S_W32, S_U, S_CNT, S_REM, S_MAXC, S_MORE = 36, 37, 38, 39, 40, 41
S_TMP = 42
S_MASK = 48
S_X = 64
S_NWIN = 66
S_HDR = 67
S_PERM = 68
S_ROT = 69
S_PASS = 70
S_SPIN = 71
S_MSK = 72
S_FAST = 73
S_ROWB = 74
S_TOFF = 75
S_Q0, S_Q1, S_Q2 = 76, 77, 78
S_K = 79
NS = 102 if DIAG else 80


def prefetch(firstkb, count, srdx, vdummy, st):
    if count == 0:
        return
    e(f"s_lshr_b32 s{st}, s2, 3")
    e(f"s_lshl_b32 s{st}, s{st}, 4")
    e(f"s_add_u32 s{st}, s{st}, s{S_TAU}")
    e(f"s_lshl_b32 s{st}, s{st}, 10")
    for k in range(count):
        e(f"s_add_u32 s{st+1}, s{st}, {(firstkb + 512*k) * 1024}")
        e(f"buffer_load_dwordx4 v[{vdummy}:{vdummy+3}], v{L16}, s[{srdx}:{srdx+3}], s{st+1} offen")


def grid_barrier(k, between=None):
    e("s_waitcnt vmcnt(0) lgkmcnt(0)")
    e("s_barrier")
    e(f"s_cmp_eq_u32 s{S_TAU}, 15")
    e(f"s_cbranch_scc1 GB{k}_POLL")
    if between:
        between()
    e(f"s_branch GB{k}_JOIN")
    e(f"GB{k}_POLL:")
    e("s_mov_b64 exec, 1")
    e(f"s_and_b32 s{S_TMP}, s2, 1")
    e(f"s_lshl_b32 s{S_TMP}, s{S_TMP}, 6")
    e(f"s_add_u32 s{S_TMP}, s{S_TMP}, {k*16}")
    e(f"v_mov_b32 v{T0}, s{S_TMP}")
    e(f"v_mov_b32 v{T0+1}, {128 + k*16}")
    e(f"global_atomic_add v{T0+2}, v{T0}, v{ONE}, s[10:11] sc0 sc1")
    e("s_waitcnt vmcnt(0)")
    e(f"v_readfirstlane_b32 s{S_TMP}, v{T0+2}")
    e(f"s_cmp_eq_u32 s{S_TMP}, {NB//2 - 1}")
    e(f"s_cbranch_scc0 GB{k}_SPIN0")
    e(f"global_atomic_add v{T0+1}, v{ONE}, s[10:11] sc1")
    e(f"GB{k}_SPIN0:")
    e(f"s_mov_b32 s{S_SPIN}, 0")
    e(f"GB{k}_SPIN:")
    e(f"global_load_dword v{T0+2}, v{T0+1}, s[10:11] sc1")
    e("s_waitcnt vmcnt(0)")
    e(f"v_readfirstlane_b32 s{S_TMP}, v{T0+2}")
    e(f"s_cmp_ge_u32 s{S_TMP}, 2")
    e(f"s_cbranch_scc1 GB{k}_DONE")
    e(f"s_add_u32 s{S_SPIN}, s{S_SPIN}, 1")
    e(f"s_cmp_ge_u32 s{S_SPIN}, 0x400000")
    e(f"s_cbranch_scc1 GB{k}_DONE")
    e("s_sleep 2")
    e(f"s_branch GB{k}_SPIN")
    e(f"GB{k}_DONE:")
    e("s_mov_b64 exec, -1")
    e(f"GB{k}_JOIN:")
    e("s_barrier")


def phase0():
    e("s_load_dwordx4 s[52:55], s[0:1], 8")
    e("s_load_dwordx4 s[56:59], s[0:1], 24")
    e(f"s_mul_i32 s3, s2, {CH*4}")
    e("v_lshlrev_b32 v2, 4, v0")
    e("v_add_u32 v2, s3, v2")
    e("v_lshrrev_b32 v3, 1, v2")
    e("v_and_b32 v24, 0xff, v0")
    e("v_lshlrev_b32 v24, 2, v24")
    e(f"ds_write_b32 v24, v{ZERO}")
    e("s_waitcnt lgkmcnt(0)")
    stamp(0)
    srd(16, 6, 7, WS_USED)
    srd(20, 4, 5, N * 128)
    srd(36, 52, 53, E * 4)
    srd(40, 54, 55, E * 4)
    srd(44, 56, 57, E * 2)
    srd(48, 58, 59, 3 * 64 * 64 * 2)
    if TLBW:
        srd(24, 8, 9, N * 128)
        e(f"s_cmp_eq_u32 s{S_TAU}, 13")
        e("s_cbranch_scc0 TLB_END")
        e("v_lshlrev_b32 v4, 20, v1")
        e("buffer_load_dword v5, v4, s[16:19], 0 offen")
        e("buffer_load_dword v6, v4, s[20:23], 0 offen")
        e("buffer_load_dword v7, v4, s[24:27], 0 offen")
        e(f"global_load_dword v8, v{ZERO}, s[10:11]")
        if TLBW >= 2:
            sh = {2: 16, 3: 12, 4: 14}[TLBW]
            e("s_lshr_b32 s52, s2, 3")
            e("v_lshlrev_b32 v4, 5, v1")
            e("v_add_u32 v4, s52, v4")
            e(f"v_lshlrev_b32 v4, {sh}, v4")
            e("buffer_load_dword v5, v4, s[16:19], 0 offen")
            e("buffer_load_dword v6, v4, s[20:23], 0 offen")
            e("buffer_load_dword v7, v4, s[24:27], 0 offen")
            if sh == 12:
                e("s_mov_b32 s52, 0x800000")
                e("buffer_load_dword v5, v4, s[16:19], s52 offen")
        e("TLB_END:")
    e(f"s_cmp_ge_u32 s2, {NCH}")
    e("s_cbranch_scc1 P_END")
    e("s_mov_b32 s60, 0xffff0000")
    e(f"v_cmp_gt_u32 vcc, {CH//4}, v0")
    e("s_and_saveexec_b64 s[64:65], vcc")
    e("s_mov_b64 s[62:63], exec")
    e("s_cbranch_execz P_SKIP1")
    e("buffer_load_dwordx4 v[4:7], v2, s[40:43], 0 offen")
    if not DFIRST:
        e("buffer_load_dwordx4 v[8:11], v2, s[36:39], 0 offen")
        e("buffer_load_dwordx2 v[12:13], v3, s[44:47], 0 offen")
    e("P_SKIP1:")
    e("s_mov_b64 exec, -1")
    e("s_cmp_ge_u32 s2, 48")
    e("s_cbranch_scc1 P_NOW")
    e(f"s_cmp_lt_u32 s{S_TAU}, 14")
    e("s_cbranch_scc1 P_NOW")
    e("s_lshr_b32 s52, s2, 1")
    e("s_and_b32 s53, s2, 1")
    e("s_lshl_b32 s53, s53, 7")
    e("v_subrev_u32 v30, 896, v0")
    e("v_add_u32 v30, s53, v30")
    e("s_lshr_b32 s54, s52, 3")
    e("s_bfe_u32 s55, s52, 0x10002")
    e("s_and_b32 s56, s52, 3")
    e("v_and_b32 v31, 3, v30")
    e("v_bfe_u32 v32, v30, 2, 4")
    e("v_lshrrev_b32 v33, 6, v30")
    e("v_lshrrev_b32 v34, 2, v32")
    e("v_lshlrev_b32 v34, 4, v34")
    e("v_and_b32 v35, 3, v32")
    e("v_add_u32 v34, v34, v35")
    e("s_lshl_b32 s57, s56, 2")
    e("v_add_u32 v34, s57, v34")
    e("v_lshlrev_b32 v36, 4, v33")
    e("v_lshl_add_u32 v36, v31, 1, v36")
    e("s_lshl_b32 s57, s55, 3")
    e("v_add_u32 v36, s57, v36")
    e("v_lshrrev_b32 v37, 1, v31")
    e("v_lshlrev_b32 v37, 4, v37")
    e("v_lshl_add_u32 v37, v33, 2, v37")
    e("v_and_b32 v35, 1, v31")
    e("v_lshl_add_u32 v37, v35, 1, v37")
    e("s_lshl_b32 s57, s55, 5")
    e("v_add_u32 v37, s57, v37")
    e("s_cmp_eq_u32 s54, 1")
    e("s_cselect_b64 vcc, -1, 0")
    e("s_nop 1")
    e("v_cndmask_b32 v36, v36, v37, vcc")
    e("v_lshlrev_b32 v36, 7, v36")
    e("v_lshl_add_u32 v36, v34, 1, v36")
    e("s_lshl_b32 s57, s54, 13")
    e("v_add_u32 v36, s57, v36")
    e("buffer_load_ushort v37, v36, s[48:51], 0 offen")
    e("buffer_load_ushort v38, v36, s[48:51], 0 offen offset:128")
    e("s_lshl_b32 s57, s52, 10")
    e(f"s_add_u32 s57, s57, {WS_WF}")
    e("v_lshlrev_b32 v39, 2, v30")
    e("v_add_u32 v39, s57, v39")
    e("s_barrier")
    e("s_waitcnt vmcnt(0)")
    e("v_lshl_or_b32 v37, v38, 16, v37")
    e("buffer_store_dword v37, v39, s[16:19], 0 offen sc1")
    e("s_branch P_SKIP2")
    e("P_NOW:")
    e("s_barrier")
    if PFP:
        e(f"s_cmp_eq_u32 s{S_TAU}, 13")
        e("s_cbranch_scc0 P_NOPF")
        e("s_sleep 2")
        e("s_lshr_b32 s52, s2, 3")
        e("s_lshl_b32 s52, s52, 10")
        for k in range(PFP):
            e(f"s_add_u32 s53, s52, {k*32*1024}")
            e(f"buffer_load_dwordx4 v[40:43], v{L16}, s[20:23], s53 offen")
        e("P_NOPF:")
    e("s_mov_b64 exec, s[62:63]")
    e("s_cbranch_execz P_SKIP2")
    if DFIRST:
        e("buffer_load_dwordx4 v[8:11], v2, s[36:39], 0 offen")
        e("buffer_load_dwordx2 v[12:13], v3, s[44:47], 0 offen")
    e("s_waitcnt vmcnt(2)")
    for i in range(4):
        e(f"v_lshrrev_b32 v{14+i}, 2, v{4+i}")
        e(f"v_mul_u32_u24 v{14+i}, 21400, v{14+i}")
        e(f"v_lshrrev_b32 v{14+i}, 20, v{14+i}")
        e(f"v_lshlrev_b32 v{14+i}, 2, v{14+i}")
        e(f"ds_add_rtn_u32 v{18+i}, v{14+i}, v{ONE}")
    e("P_SKIP2:")
    e("s_mov_b64 exec, -1")
    e("s_waitcnt lgkmcnt(0)")
    e("s_barrier")
    stamp(1)
    e(f"s_cmp_eq_u32 s{S_TAU}, 15")
    e("s_cbranch_scc0 P_SKIP3")
    e(f"ds_read_b128 v[32:35], v{L16}")
    e("s_waitcnt lgkmcnt(0)")
    e("v_add_u32 v36, v32, v33")
    e("v_add_u32 v37, v36, v34")
    e("v_add_u32 v38, v37, v35")
    e("v_mov_b32 v39, v38")
    wave_scan(39)
    e("v_sub_u32 v40, v39, v38")
    e("v_add_u32 v41, v40, v32")
    e("v_add_u32 v42, v40, v36")
    e("v_add_u32 v43, v40, v37")
    for i in range(4):
        e(f"v_add_u32 v{48+i}, 128, v{40+i}")
    e(f"ds_write_b128 v{L16}, v[48:51]")
    for i in range(4):
        e(f"v_lshl_or_b32 v{44+i}, v{32+i}, 16, v{40+i}")
    e("s_lshl_b32 s52, s2, 10")
    e(f"s_add_u32 s52, s52, {WS_TABLE}")
    e(f"buffer_store_dwordx4 v[44:47], v{L16}, s[16:19], s52 offen sc1")
    e("P_SKIP3:")
    e("s_waitcnt lgkmcnt(0)")
    e("s_barrier")
    e("s_mov_b64 exec, s[62:63]")
    e("s_cbranch_execz P_SKIP4")
    for i in range(4):
        e(f"ds_read_b32 v{14+i}, v{14+i}")
    e("s_waitcnt vmcnt(0)")
    e("v_lshl_or_b32 v8, v12, 16, v8")
    e("v_and_or_b32 v9, v12, s60, v9")
    e("v_lshl_or_b32 v10, v13, 16, v10")
    e("v_and_or_b32 v11, v13, s60, v11")
    for i in range(4):
        e(f"s_waitcnt lgkmcnt({3-i})")
        e(f"v_add_lshl_u32 v{14+i}, v{14+i}, v{18+i}, 3")
    for i in range(4):
        e(f"ds_write2_b32 v{14+i}, v{8+i}, v{4+i} offset0:0 offset1:1")
    e("P_SKIP4:")
    e("s_mov_b64 exec, -1")
    e("s_waitcnt lgkmcnt(0)")
    e("s_barrier")
    e("v_lshlrev_b32 v30, 4, v0")
    e("ds_read_b128 v[32:35], v30 offset:1024")
    e(f"s_mul_i32 s52, s2, {CHB}")
    e(f"s_add_u32 s53, s52, 0x4000")
    e(f"s_cmp_ge_u32 s{S_TAU}, {(CHB//16 - 1024)//64}")
    e("s_cbranch_scc1 P_SKIP5")
    e(f"ds_read_b128 v[36:39], v30 offset:{1024+16384}")
    e("s_waitcnt lgkmcnt(0)")
    e("buffer_store_dwordx4 v[36:39], v30, s[16:19], s53 offen sc1")
    e("P_SKIP5:")
    e("s_waitcnt lgkmcnt(0)")
    e("buffer_store_dwordx4 v[32:35], v30, s[16:19], s52 offen sc1")
    e("P_END:")


def issue_gather(slot, src=None):
    src = SRC4 if src is None else src
    for i in range(4):
        e(f"s_add_u32 m0, s{S_SB}, {slot*4096 + i*1024}")
        e(f"v_mad_u32_u16 v{GOFF+i}, v{src+i}, s{S_128}, v{LOFF+i}")
        e(f"buffer_load_dwordx4 v{GOFF+i}, s[12:15], 0 offen lds")


def next_slot(q):
    e(f"s_ff1_i32_b32 s{q}, s{S_MSK}")
    e(f"s_max_i32 s{q}, s{q}, 0")
    e(f"s_bitset0_b32 s{S_MSK}, s{q}")
    e(f"s_lshl_b32 s{q}, s{q}, 7")


def main_loop(p):
    e(f"s_bcnt1_i32_b32 s{S_REM}, s{S_MSK}")
    e(f"s_cmp_eq_u32 s{S_REM}, 0")
    e(f"s_cbranch_scc1 {p}_DONE")
    if PRIO:
        e("s_setprio 3")
    next_slot(S_Q0)
    e(f"v_add_u32 v{T0}, s{S_Q0}, v{ASRC}")
    e(f"ds_read_b128 v[{SRC4}:{SRC4+3}], v{T0}")
    next_slot(S_Q1)
    e(f"v_add_u32 v{T0+1}, s{S_Q1}, v{ASRC}")
    e(f"ds_read_b128 v[{E8}:{E8+3}], v{T0+1}")
    next_slot(S_Q2)
    e("s_waitcnt lgkmcnt(1)")
    issue_gather(0)
    e(f"s_cmp_lt_u32 s{S_REM}, 2")
    e(f"s_cbranch_scc1 {p}_LOOP0")
    e("s_waitcnt lgkmcnt(0)")
    issue_gather(1, E8)
    for P in range(2):
        e(f"{p}_LOOP{P}:")
        e(f"s_lshr_b32 s{S_TMP}, s{S_Q0}, 1")
        e(f"v_add_u32 v{T0}, s{S_Q0}, v{AEW}")
        e(f"v_add_u32 v{T0+1}, s{S_TMP}, v{AOH}")
        e(f"v_add_u32 v{T0+2}, s{S_Q2}, v{ASRC}")
        e(f"ds_read_b128 v[{E8}:{E8+3}], v{T0}")
        e(f"ds_read_b128 v[{E8+4}:{E8+7}], v{T0} offset:16")
        e(f"ds_read_b128 v[{OH4}:{OH4+3}], v{T0+1}")
        e(f"ds_read_b128 v[{SRC4}:{SRC4+3}], v{T0+2}")
        e(f"s_mov_b32 s{S_Q0}, s{S_Q1}")
        e(f"s_mov_b32 s{S_Q1}, s{S_Q2}")
        next_slot(S_Q2)
        if PRIO:
            for th, pr in PRTH:
                e(f"s_cmp_eq_u32 s{S_REM}, {th}")
                e(f"s_cbranch_scc0 {p}_PR{P}_{th}")
                e(f"s_setprio {pr}")
                e(f"{p}_PR{P}_{th}:")
        e(f"s_cmp_eq_u32 s{S_REM}, 1")
        e(f"s_cbranch_scc1 {p}_W0_{P}")
        e("s_waitcnt vmcnt(4)")
        e(f"s_branch {p}_W1_{P}")
        e(f"{p}_W0_{P}:")
        e("s_waitcnt vmcnt(0)")
        e(f"{p}_W1_{P}:")
        for t in range(4):
            for h in range(2):
                r = A + t * 4 + h * 2
                if os.environ.get("NOTR") and (t or h):
                    continue
                e(f"ds_read_b64_tr_b16 v[{r}:{r+1}], v{TRA+t} offset:{P*4096 + h*256}")
        e("s_waitcnt lgkmcnt(9)" if not os.environ.get("NOTR") else "s_waitcnt lgkmcnt(2)")
        for i in range(4):
            e(f"v_pk_lshlrev_b16 v{BF+i}, v{SHAMT}, v{OH4+i}")
            e(f"v_perm_b32 v{E8+2*i}, v{E8+2*i+1}, v{E8+2*i}, s{S_PERM}")
        for i in range(4):
            e(f"v_pk_ashrrev_i16 v{BF+i}, s{S_F}, v{BF+i}")
        for i in range(4):
            e(f"v_and_b32 v{BF+i}, v{BF+i}, v{E8+2*i}")
        e("s_waitcnt lgkmcnt(0)")
        e(f"s_cmp_lt_u32 s{S_REM}, 3")
        e(f"s_cbranch_scc1 {p}_NI_{P}")
        issue_gather(P)
        e(f"{p}_NI_{P}:")
        for t in range(4):
            a = A + t * 4
            c = ACC + t * 4
            e(f"v_mfma_f32_16x16x32_bf16 v[{c}:{c+3}], v[{a}:{a+3}], v[{BF}:{BF+3}], v[{c}:{c+3}]")
        e(f"s_sub_u32 s{S_REM}, s{S_REM}, 1")
        e(f"s_cmp_eq_u32 s{S_REM}, 0")
        e(f"s_cbranch_scc1 {p}_DONE")
        if P == 1:
            e(f"s_branch {p}_LOOP0")
    e(f"{p}_DONE:")
    if PRIO:
        e("s_setprio 0")


def set_list_ptrs():
    e(f"v_and_b32 v{T0}, 8, v1")
    e(f"v_lshlrev_b32 v{T0}, 2, v{T0}")
    e(f"v_and_b32 v{T0+1}, 16, v1")
    e(f"v_or_b32 v{T0}, v{T0}, v{T0+1}")
    e(f"v_and_b32 v{T0+1}, 32, v1")
    e(f"v_lshl_or_b32 v{T0}, v{T0+1}, 1, v{T0}")
    e(f"v_add_u32 v{ASRC}, s{S_LB}, v{T0}")
    e(f"v_and_b32 v{T0}, 48, v1")
    e(f"v_lshl_add_u32 v{AEW}, v{T0}, 1, s{S_LB}")
    e(f"s_sub_u32 s{S_TMP}, s{S_LB}, {L_LA}")
    e(f"s_lshr_b32 s{S_TMP}, s{S_TMP}, 1")
    e(f"s_add_u32 s{S_TMP}, s{S_TMP}, {L_LB}")
    e(f"v_add_u32 v{AOH}, s{S_TMP}, v{T0}")


def lane_constants():
    set_list_ptrs()
    e(f"v_and_b32 v{T0}, 7, v1")
    for i in range(4):
        e(f"v_xor_b32 v{LOFF+i}, {0 if os.environ.get('NOSWZ') else 2*i}, v{T0}")
        e(f"v_lshlrev_b32 v{LOFF+i}, 4, v{LOFF+i}")
    e(f"v_bfe_u32 v{T0}, v1, 2, 2")
    e(f"v_lshlrev_b32 v{T0+1}, 10, v{T0}")
    e(f"v_and_b32 v{T0+2}, 16, v1")
    e(f"v_lshl_add_u32 v{T0+1}, v{T0+2}, 3, v{T0+1}")
    e(f"v_and_b32 v{T0+2}, 32, v1")
    e(f"v_lshl_add_u32 v{T0+1}, v{T0+2}, 4, v{T0+1}")
    e(f"v_and_b32 v{T0+2}, 3, v1")
    e(f"v_lshl_add_u32 v{T0+1}, v{T0+2}, 3, v{T0+1}")
    e(f"v_add_u32 v{T0+1}, s{S_SB}, v{T0+1}")
    for t in range(4):
        e(f"v_xor_b32 v{T0+2}, {t}, v{T0}")
        e(f"v_lshl_add_u32 v{TRA+t}, v{T0+2}, 5, v{T0+1}")
    e(f"v_and_b32 v{T0}, 15, v1")
    e(f"v_sub_u32 v{T0}, 15, v{T0}")
    e(f"v_lshl_or_b32 v{SHAMT}, v{T0}, 16, v{T0}")
    for i in range(16):
        e(f"v_mov_b32 v{ACC+i}, 0")
    e(f"v_lshrrev_b32 v{T0}, 4, v0")
    e(f"v_and_b32 v{J16}, 15, v0")
    e(f"v_mul_u32_u24 v{GBASE}, {4*CHB}, v{T0}")
    e(f"v_lshl_add_u32 v{GBASE}, v{J16}, 3, v{GBASE}")
    e(f"s_lshl_b32 s{S_TMP}, s{S_B}, 2")
    e(f"s_add_u32 s{S_TMP}, s{S_TMP}, {WS_TABLE}")
    e(f"v_lshlrev_b32 v{POS}, 12, v{T0}")
    e(f"v_add_u32 v{POS}, s{S_TMP}, v{POS}")
    e(f"v_mov_b32 v{T0+1}, 0x7f000000")
    e(f"v_lshlrev_b32 v{T0}, 2, v{T0}")
    e(f"v_cmp_gt_u32 vcc, {NCH-2}, v{T0}")
    e("s_nop 1")
    e(f"v_cndmask_b32 v{DESC+2}, v{T0+1}, v{POS}, vcc")
    e(f"v_cmp_gt_u32 vcc, {NCH}, v{T0}")
    e("s_nop 1")
    e(f"v_cndmask_b32 v{DESC}, v{T0+1}, v{POS}, vcc")


def entry_loads():
    e(f"s_lshl_b32 s{S_TMP+1}, s{S_W32}, 3")
    e(f"v_add_u32 v{T0+3}, 16, v{J16}")
    e(f"v_mov_b32 v{T0+4}, 0x7f000000")
    e(f"v_mov_b32 v{T0+6}, 0")
    for r in range(4):
        m0 = S_MASK + 4 * r
        m1 = m0 + 2
        e(f"s_waitcnt vmcnt({3 - r + 2*r})")
        e(f"v_lshrrev_b32 v{T0}, 16, v{DESC+r}")
        e(f"v_subrev_u32 v{T0}, s{S_W32}, v{T0}")
        e(f"v_max_i32 v{T0+6}, v{T0+6}, v{T0}")
        e(f"v_cmp_gt_i32 s[{m0}:{m0+1}], v{T0}, v{J16}")
        e(f"v_cmp_gt_i32 s[{m1}:{m1+1}], v{T0}, v{T0+3}")
        e(f"v_and_b32 v{T0+1}, 0xffff, v{DESC+r}")
        e(f"v_lshl_add_u32 v{T0+1}, v{T0+1}, 3, v{GBASE}")
        e(f"s_add_u32 s{S_TMP}, s{S_TMP+1}, {r*CHB}")
        e(f"v_cndmask_b32 v{T0+2}, v{T0+4}, v{T0+1}, s[{m0}:{m0+1}]")
        e(f"v_cndmask_b32 v{T0+5}, v{T0+4}, v{T0+1}, s[{m1}:{m1+1}]")
        en0 = EN + 4 * r
        e(f"buffer_load_dwordx2 v[{en0}:{en0+1}], v{T0+2}, s[16:19], s{S_TMP} offen")
        e(f"buffer_load_dwordx2 v[{en0+2}:{en0+3}], v{T0+5}, s[16:19], s{S_TMP} offen offset:128")


def pad_code():
    e(f"s_sub_i32 s{S_TMP}, s{S_CNT}, s{S_U}")
    e(f"s_max_i32 s{S_TMP}, s{S_TMP}, 0")
    e(f"s_min_i32 s{S_TMP}, s{S_TMP}, {TCAP}")
    e(f"s_add_u32 s{S_REM}, s{S_TMP}, 31")
    e(f"s_lshr_b32 s{S_REM}, s{S_REM}, 5")
    e(f"s_lshl_b32 s{S_TMP+1}, s{S_REM}, 5")
    e(f"v_add_u32 v{T0}, s{S_TMP}, v1")
    e(f"v_cmp_gt_u32 vcc, s{S_TMP+1}, v{T0}")
    e(f"s_sub_u32 s{S_TMP+1}, s{S_LB}, {L_LA}")
    e(f"v_lshl_add_u32 v{T0+1}, v{T0}, 2, s{S_TMP+1}")
    e(f"v_lshrrev_b32 v{T0+2}, 1, v{T0+1}")
    e(f"v_mov_b32 v{T0+3}, 0xffff")
    e("s_mov_b64 exec, vcc")
    e(f"ds_write_b32 v{T0+1}, v{T0+3} offset:{L_LA}")
    e(f"ds_write_b16 v{T0+2}, v{ZERO} offset:{L_LB}")
    e("s_mov_b64 exec, -1")


def xw_loads():
    e(f"s_cmp_ge_u32 s{S_TAU}, 13")
    e("s_cbranch_scc1 XW_W")
    e(f"v_and_b32 v{T0}, 15, v1")
    e(f"v_lshlrev_b32 v{T0}, 7, v{T0}")
    e(f"v_and_b32 v{T0+1}, 48, v1")
    e(f"v_lshl_add_u32 v{T0}, v{T0+1}, 1, v{T0}")
    e(f"buffer_load_dwordx4 v[{XT}:{XT+3}], v{T0}, s[20:23], s{S_TOFF} offen")
    e(f"buffer_load_dwordx4 v[{XT+4}:{XT+7}], v{T0}, s[20:23], s{S_TOFF} offen offset:16")
    e("s_branch XW_END")
    e("XW_W:")
    e(f"s_sub_u32 s{S_TMP}, s{S_TAU}, 13")
    e(f"s_lshl_b32 s{S_TMP}, s{S_TMP}, 13")
    for j in range(2):
        e(f"s_add_u32 m0, s{S_TMP}, {L_WF + j*4096}")
        e(f"s_add_u32 s{S_TMP+1}, s{S_TMP}, {WS_WF + j*4096}")
        for i in range(4):
            e(f"buffer_load_dwordx4 v{L16}, s[16:19], s{S_TMP+1} offen offset:{i*1024} lds")
    e("XW_END:")


def fast_sort():
    e(f"s_mov_b32 s{S_W32}, 0")
    e("FS_WIN:")
    entry_loads()
    e(f"s_movk_i32 s{S_TMP+2}, {TLA}")
    for k in range(8):
        en = EN + 2 * k
        m = S_MASK + 2 * k
        e(f"s_waitcnt vmcnt({7-k})")
        e(f"s_mov_b64 exec, s[{m}:{m+1}]")
        if k & 1:
            e(f"s_cbranch_execz FS_RK{k}")
        e(f"v_subrev_u32 v{en+1}, s{S_NB0}, v{en+1}")
        e(f"v_mad_u32_u16 v{T0}, v{en}, s{S_K}, 0")
        e(f"v_lshrrev_b32 v{T0+1}, 4, v{en+1}")
        e(f"v_lshrrev_b32 v{T0}, 26, v{T0}")
        e(f"v_lshl_add_u32 v{T0+2}, v{T0+1}, 2, v{T0}")
        e(f"v_lshlrev_b32 v{T0+2}, 2, v{T0+2}")
        e(f"ds_add_rtn_u32 v{POS+k}, v{T0+2}, v{FOUR}")
        e(f"v_mul_u32_u24 v{T0+1}, s{S_TMP+2}, v{T0+1}")
        e(f"v_lshl_add_u32 v{A+k}, v{T0}, 9, v{T0+1}")
        e(f"v_and_b32 v{en+1}, 15, v{en+1}")
        e(f"v_lshlrev_b32 v{en+1}, v{en+1}, v{ONE}")
        if k & 1:
            e(f"FS_RK{k}:")
    e("s_waitcnt lgkmcnt(0)")
    e(f"s_movk_i32 s{S_TMP+2}, 508")
    for k in range(8):
        en = EN + 2 * k
        m = S_MASK + 2 * k
        e(f"s_mov_b64 exec, s[{m}:{m+1}]")
        if k & 1:
            e(f"s_cbranch_execz FS_WR{k}")
        e(f"v_min_u32 v{POS+k}, s{S_TMP+2}, v{POS+k}")
        e(f"v_add_u32 v{POS+k}, v{POS+k}, v{A+k}")
        e(f"v_lshrrev_b32 v{A+k}, 1, v{POS+k}")
        e(f"ds_write_b32 v{POS+k}, v{en} offset:{L_LA}")
        e(f"ds_write_b16 v{A+k}, v{en+1} offset:{L_LB}")
        if k & 1:
            e(f"FS_WR{k}:")
    e("s_mov_b64 exec, -1")
    e(f"v_cmp_lt_i32 vcc, 32, v{T0+6}")
    e(f"s_add_u32 s{S_W32}, s{S_W32}, 32")
    e("s_cbranch_vccnz FS_WIN")
    xw_loads()
    e(f"v_lshlrev_b32 v{T0}, 2, v1")
    e("s_waitcnt lgkmcnt(0)")
    e("s_barrier")
    stamp(4)
    e(f"ds_read_b32 v{T0+4}, v{T0} offset:{L_BINS}")
    e(f"s_lshl_b32 s{S_TMP+3}, s{S_TAU}, 2")
    e(f"s_sub_u32 s{S_TMP+4}, s{S_LB}, {L_LA}")
    e(f"s_mov_b32 s{S_MSK}, 0")
    e(f"v_mov_b32 v{T0+3}, 0xffff")
    e("s_waitcnt lgkmcnt(0)")
    e(f"v_cmp_lt_u32 vcc, 0x200, v{T0+4}")
    e(f"s_mov_b32 s{S_FAST}, 0")
    e("s_cbranch_vccnz A_START0")
    e(f"s_mov_b32 s{S_FAST}, 1")
    e(f"s_cmp_ge_u32 s{S_TAU}, 13")
    e("s_cbranch_scc1 FS_END")
    for b_ in range(3):
        e(f"s_add_u32 s{S_TMP}, s{S_TMP+3}, {b_}")
        e("s_nop 0")
        e(f"v_readlane_b32 s{S_TMP}, v{T0+4}, s{S_TMP}")
        e("s_nop 0")
        e(f"s_add_u32 s{S_TMP+1}, s{S_TMP}, 127")
        e(f"s_lshr_b32 s{S_TMP+1}, s{S_TMP+1}, 7")
        e(f"s_bfm_b32 s{S_TMP+2}, s{S_TMP+1}, {4*b_}")
        e(f"s_or_b32 s{S_MSK}, s{S_MSK}, s{S_TMP+2}")
        e(f"s_lshl_b32 s{S_TMP+1}, s{S_TMP+1}, 7")
        e(f"v_add_u32 v{T0+1}, s{S_TMP}, v{T0}")
        e(f"v_cmp_gt_u32 vcc, s{S_TMP+1}, v{T0+1}")
        e(f"v_add_u32 v{T0+1}, s{S_TMP+4}, v{T0+1}")
        e(f"v_lshrrev_b32 v{T0+2}, 1, v{T0+1}")
        e("s_mov_b64 exec, vcc")
        e(f"ds_write_b32 v{T0+1}, v{T0+3} offset:{L_LA + 512*b_}")
        e(f"ds_write_b16 v{T0+2}, v{ZERO} offset:{L_LB + 256*b_}")
        e("s_mov_b64 exec, -1")
    e("FS_END:")
    e(f"s_mov_b32 s{S_HDR}, s{S_MSK}")
    e(f"s_mov_b32 s{S_U}, 0")
    e(f"s_mov_b32 s{S_MAXC}, 0")
    e(f"s_mov_b32 s{S_MORE}, 0")
    stamp(5)
    e("s_branch A_ML")
    e("A_START0:")
    e("s_barrier")


def generic_sort_and_loop(p):
    e(f"{p}_START:")
    e(f"s_mov_b32 s{S_W32}, 0")
    e(f"s_mov_b32 s{S_NWIN}, 0")
    e(f"{p}_WIN:")
    e(f"v_lshlrev_b32 v{T0}, 2, v0")
    e("v_cmp_gt_u32 vcc, 130, v0")
    e(f"s_and_saveexec_b64 s[{S_X}:{S_X+1}], vcc")
    e(f"ds_write_b32 v{T0}, v{ZERO}")
    e(f"s_mov_b64 exec, s[{S_X}:{S_X+1}]")
    entry_loads()
    e("s_waitcnt lgkmcnt(0)")
    e("s_barrier")
    e(f"v_cmp_lt_i32 vcc, 32, v{T0+6}")
    e(f"s_and_saveexec_b64 s[{S_X}:{S_X+1}], vcc")
    e(f"v_mov_b32 v{T0}, {L_MORE}")
    e(f"ds_write_b32 v{T0}, v{ONE}")
    e(f"s_mov_b64 exec, s[{S_X}:{S_X+1}]")
    e(f"s_movk_i32 s{S_TMP+2}, {TLA}")
    for k in range(8):
        en = EN + 2 * k
        ba = A + k
        m = S_MASK + 2 * k
        e(f"s_waitcnt vmcnt({7-k})")
        e(f"s_mov_b64 exec, s[{m}:{m+1}]")
        if k & 1:
            e(f"s_cbranch_execz {p}_RK{k}")
        e(f"v_subrev_u32 v{en+1}, s{S_NB0}, v{en+1}")
        e(f"v_mad_u32_u16 v{T0}, v{en}, 21, s{S_ROT}")
        e(f"v_lshrrev_b32 v{T0+1}, 4, v{en+1}")
        e(f"v_bfe_u32 v{T0}, v{T0}, 17, 3")
        e(f"v_lshl_add_u32 v{ba}, v{T0+1}, 3, v{T0}")
        e(f"v_lshlrev_b32 v{ba}, 2, v{ba}")
        e(f"ds_add_rtn_u32 v{POS+k}, v{ba}, v{FOUR}")
        e(f"v_and_b32 v{T0}, 15, v{en+1}")
        e(f"v_lshlrev_b32 v{T0}, v{T0}, v{ONE}")
        e(f"v_mul_u32_u24 v{T0+1}, s{S_TMP+2}, v{T0+1}")
        e(f"v_lshl_or_b32 v{en+1}, v{T0}, 16, v{T0+1}")
        if k & 1:
            e(f"{p}_RK{k}:")
    e("s_mov_b64 exec, -1")
    e("s_waitcnt lgkmcnt(0)")
    e("s_barrier")
    e(f"s_mov_b32 s{S_CNT}, 0")
    e(f"s_cmp_ge_u32 s{S_TAU}, s{S_NT}")
    e(f"s_cbranch_scc1 {p}_NOSCAN")
    e(f"s_lshl_b32 s{S_TMP}, s{S_TAU}, 5")
    e(f"v_lshlrev_b32 v{T0}, 2, v1")
    e(f"v_add_u32 v{T0}, s{S_TMP}, v{T0}")
    e(f"v_mov_b32 v{T0+1}, 0")
    e("s_mov_b64 exec, 0xff")
    e(f"ds_read_b32 v{T0+1}, v{T0} offset:{L_BINS}")
    e("s_mov_b64 exec, -1")
    e(f"s_sub_u32 s{S_TMP+1}, s{S_LB}, {L_LA}")
    e("s_waitcnt lgkmcnt(0)")
    e(f"v_mov_b32 v{T0+2}, v{T0+1}")
    wave_scan(T0 + 2, full=False)
    e(f"v_sub_u32 v{T0+3}, v{T0+2}, v{T0+1}")
    e(f"v_readlane_b32 s{S_CNT}, v{T0+2}, 7")
    e(f"v_add_u32 v{T0+3}, s{S_TMP+1}, v{T0+3}")
    e("s_mov_b64 exec, 0xff")
    e(f"ds_write_b32 v{T0}, v{T0+3} offset:{L_BINS}")
    e(f"s_lshr_b32 s{S_CNT}, s{S_CNT}, 2")
    e("s_mov_b64 exec, 1")
    e(f"v_mov_b32 v{T0}, {L_MAXC}")
    e(f"v_mov_b32 v{T0+1}, s{S_CNT}")
    e(f"ds_max_u32 v{T0}, v{T0+1}")
    e("s_mov_b64 exec, -1")
    e(f"{p}_NOSCAN:")
    e(f"s_mov_b32 s{S_U}, 0")
    pad_code()
    e("s_waitcnt lgkmcnt(0)")
    e("s_barrier")
    e(f"v_mov_b32 v{T0}, {L_MAXC}")
    e(f"ds_read_b64 v[{T0+1}:{T0+2}], v{T0}")
    for k in range(8):
        m = S_MASK + 2 * k
        e(f"s_mov_b64 exec, s[{m}:{m+1}]")
        e(f"ds_read_b32 v{A+k}, v{A+k}")
    e("s_mov_b64 exec, -1")
    e("s_waitcnt lgkmcnt(0)")
    e(f"v_readfirstlane_b32 s{S_MAXC}, v{T0+1}")
    e(f"v_readfirstlane_b32 s{S_MORE}, v{T0+2}")
    e(f"s_cmp_gt_u32 s{S_MAXC}, {TCAP}")
    e(f"s_cbranch_scc1 {p}_SLOWSC")
    for k in range(8):
        en = EN + 2 * k
        m = S_MASK + 2 * k
        e(f"s_mov_b64 exec, s[{m}:{m+1}]")
        if k & 1:
            e(f"s_cbranch_execz {p}_FS{k}")
        e(f"v_add_u32 v{POS+k}, v{POS+k}, v{A+k}")
        e(f"v_lshrrev_b32 v{A+k}, 1, v{POS+k}")
        e(f"ds_write_b32 v{POS+k}, v{en} offset:{L_LA}")
        e(f"ds_write_b16_d16_hi v{A+k}, v{en+1} offset:{L_LB}")
        if k & 1:
            e(f"{p}_FS{k}:")
    e("s_mov_b64 exec, -1")
    e(f"s_branch {p}_SCDONE")
    e(f"{p}_SLOWSC:")
    for k in range(8):
        e(f"v_add_u32 v{POS+k}, v{POS+k}, v{A+k}")
    e(f"{p}_SUB:")
    e(f"s_lshl_b32 s{S_TMP}, s{S_U}, 2")
    for k in range(8):
        en = EN + 2 * k
        m = S_MASK + 2 * k
        e(f"v_and_b32 v{T0+1}, 0xffff, v{en+1}")
        e(f"v_subrev_u32 v{T0}, s{S_TMP}, v{POS+k}")
        e(f"v_sub_u32 v{T0+1}, v{T0}, v{T0+1}")
        e(f"v_cmp_gt_u32 vcc, {TLA}, v{T0+1}")
        e(f"v_lshrrev_b32 v{T0+2}, 1, v{T0}")
        e(f"s_and_b64 exec, vcc, s[{m}:{m+1}]")
        e(f"ds_write_b32 v{T0}, v{en} offset:{L_LA}")
        e(f"ds_write_b16_d16_hi v{T0+2}, v{en+1} offset:{L_LB}")
        e("s_mov_b64 exec, -1")
    pad_code()
    e(f"{p}_SCDONE:")
    e(f"s_bfm_b32 s{S_MSK}, s{S_REM}, 0")
    e("s_waitcnt lgkmcnt(0)")
    e("s_barrier")
    e(f"{p}_ML:")
    main_loop(p + "G")
    e(f"s_add_u32 s{S_NWIN}, s{S_NWIN}, 1")
    e(f"s_add_u32 s{S_U}, s{S_U}, {TCAP}")
    e(f"s_cmp_lt_u32 s{S_U}, s{S_MAXC}")
    e(f"s_cbranch_scc0 {p}_SUBDONE")
    e("s_barrier")
    e(f"s_branch {p}_SUB")
    e(f"{p}_SUBDONE:")
    e(f"s_cmp_eq_u32 s{S_MORE}, 0")
    e(f"s_cbranch_scc1 {p}_WINDONE")
    e(f"s_add_u32 s{S_W32}, s{S_W32}, 32")
    e("s_barrier")
    e(f"s_branch {p}_WIN")
    e(f"{p}_WINDONE:")


def tile_store(regs, srdn, base_off, mods, lbl):
    e(f"v_and_b32 v{T0}, 15, v1")
    e(f"v_lshlrev_b32 v{T0}, 7, v{T0}")
    e(f"v_and_b32 v{T0+1}, 48, v1")
    e(f"v_lshl_add_u32 v{T0}, v{T0+1}, 1, v{T0}")
    e(f"v_add_u32 v{T0}, s{S_SB}, v{T0}")
    e(f"ds_write_b128 v{T0}, v[{regs}:{regs+3}]")
    e(f"ds_write_b128 v{T0}, v[{regs+4}:{regs+7}] offset:16")
    e(f"v_add_u32 v{T0+1}, s{S_SB}, v{L16}")
    e(f"s_add_u32 s{S_TMP}, s{S_TOFF}, {base_off}")
    e(f"s_sub_i32 s{S_TMP+1}, s{S_ROWB}, 1024")
    e(f"v_cmp_gt_i32 vcc, s{S_TMP+1}, v{L16}")
    e(f"v_cmp_gt_i32 s[{S_X}:{S_X+1}], s{S_ROWB}, v{L16}")
    e("s_waitcnt lgkmcnt(0)")
    e(f"ds_read_b128 v[{A}:{A+3}], v{T0+1}")
    e(f"ds_read_b128 v[{A+4}:{A+7}], v{T0+1} offset:1024")
    e(f"s_mov_b64 exec, s[{S_X}:{S_X+1}]")
    e("s_waitcnt lgkmcnt(1)")
    e(f"buffer_store_dwordx4 v[{A}:{A+3}], v{L16}, s[{srdn}:{srdn+3}], s{S_TMP} offen{mods}")
    e("s_mov_b64 exec, vcc")
    e(f"s_cbranch_execz {lbl}")
    e("s_waitcnt lgkmcnt(0)")
    e(f"buffer_store_dwordx4 v[{A+4}:{A+7}], v{L16}, s[{srdn}:{srdn+3}], s{S_TMP} offen offset:1024{mods}")
    e(f"{lbl}:")
    e("s_mov_b64 exec, -1")


def gemm_xt1(dst):
    e(f"v_add_u32 v{T0+1}, {L_WF}, v{L16}")
    WB = [A, BF]
    steps = [(0, 0), (0, 1), (1, 0), (1, 1)]
    Bsrc = {0: XT, 1: T1T}

    def ldw(idx):
        k, s_ = steps[idx]
        wb = WB[idx & 1]
        for t in range(4):
            f = k * 8 + s_ * 4 + t
            e(f"ds_read_b128 v[{wb+4*t}:{wb+4*t+3}], v{T0+1} offset:{f*1024}")
    ldw(0)
    for idx in range(4):
        if idx + 1 < 4:
            ldw(idx + 1)
            e("s_waitcnt lgkmcnt(4)")
        else:
            e("s_waitcnt lgkmcnt(0)")
        k, s_ = steps[idx]
        wb = WB[idx & 1]
        b = Bsrc[k] + 4 * s_
        for t in range(4):
            c = dst + 4 * t
            src_c = "0" if idx == 0 else f"v[{c}:{c+3}]"
            e(f"v_mfma_f32_16x16x32_bf16 v[{c}:{c+3}], v[{wb+4*t}:{wb+4*t+3}], v[{b}:{b+3}], {src_c}")


def gen():
    name = "standalone__spectral_conv_chebnet__graph_kernel"
    e(".text")
    e(f".globl {name}")
    e(".p2align 8")
    e(f".type {name},@function")
    e(f"{name}:")
    e(f"s_cmp_ge_u32 s2, {NB}")
    e("s_cbranch_scc1 K_END")
    e("s_load_dwordx2 s[4:5], s[0:1], 0")
    e("s_load_dwordx2 s[6:7], s[0:1], 56")
    e("s_load_dwordx4 s[8:11], s[0:1], 40")
    e("v_and_b32 v1, 63, v0")
    e(f"v_lshrrev_b32 v{T0}, 6, v0")
    e(f"v_lshlrev_b32 v{L16}, 4, v1")
    e(f"v_readfirstlane_b32 s{S_TAU}, v{T0}")
    e(f"v_mov_b32 v{ONE}, 1")
    e(f"v_mov_b32 v{ZERO}, 0")
    if os.environ.get("CPF"):
        e(f"s_cmp_eq_u32 s{S_TAU}, 13")
        e("s_cbranch_scc0 CPF_END")
        e("s_getpc_b64 s[36:37]")
        e("v_lshlrev_b32 v4, 7, v1")
        e("v_add_u32 v5, 0x2000, v4")
        e("s_mov_b64 exec, -1")
        e("global_load_dword v6, v4, s[36:37]")
        e("s_mov_b64 exec, 0xff")
        e("global_load_dword v7, v5, s[36:37]")
        e("s_mov_b64 exec, -1")
        e("CPF_END:")
    phase0()
    stamp(2)
    e(f"s_and_b32 s{S_B}, s2, 7")
    e(f"s_lshl_b32 s{S_ROT}, s{S_B}, 17")
    e(f"s_mov_b32 s{S_ROT}, 0")
    e(f"s_lshl_b32 s{S_B}, s{S_B}, 5")
    e(f"s_lshr_b32 s{S_TMP}, s2, 3")
    e(f"s_add_u32 s{S_B}, s{S_B}, s{S_TMP}")
    e(f"s_mul_i32 s{S_NB0}, s{S_B}, {BN}")
    e(f"s_sub_u32 s{S_TMP}, {N}, s{S_NB0}")
    e(f"s_min_u32 s{S_TMP}, s{S_TMP}, {BN}")
    e(f"s_add_u32 s{S_NT}, s{S_TMP}, 15")
    e(f"s_lshr_b32 s{S_NT}, s{S_NT}, 4")
    e(f"s_lshl_b32 s{S_TMP+1}, s{S_TAU}, 4")
    e(f"s_sub_i32 s{S_ROWB}, s{S_TMP}, s{S_TMP+1}")
    e(f"s_min_i32 s{S_ROWB}, s{S_ROWB}, 16")
    e(f"s_lshl_b32 s{S_ROWB}, s{S_ROWB}, 7")
    e(f"s_add_u32 s{S_TOFF}, s{S_NB0}, s{S_TMP+1}")
    e(f"s_lshl_b32 s{S_TOFF}, s{S_TOFF}, 7")
    e(f"v_mov_b32 v{FOUR}, 4")
    e(f"s_movk_i32 s{S_128}, 128")
    e(f"s_mov_b32 s{S_F}, 0x000f000f")
    e(f"s_mov_b32 s{S_PERM}, 0x07060302")
    e(f"s_min_u32 s{S_TMP}, s{S_TAU}, 12")
    e(f"s_lshl_b32 s{S_SB}, s{S_TMP}, 13")
    e(f"s_add_u32 s{S_SB}, s{S_SB}, {L_STAGE}")
    e(f"s_mul_i32 s{S_LB}, s{S_TMP}, {TLA}")
    e(f"s_add_u32 s{S_LB}, s{S_LB}, {L_LA}")
    e(f"s_mov_b32 s{S_PASS}, 1")
    e(f"s_movk_i32 s{S_K}, 4026")
    srd(12, 4, 5, N * 128)
    srd(24, 8, 9, N * 128)
    lane_constants()

    def between1():
        e(f"s_cmp_eq_u32 s{S_TAU}, 0")
        e("s_cbranch_scc0 B1_END")
        e(f"v_lshlrev_b32 v{T0}, 2, v1")
        e(f"ds_write_b32 v{T0}, v{ZERO} offset:{L_BINS}")
        e("s_waitcnt lgkmcnt(0)")
        e("B1_END:")
    grid_barrier(0, between1)
    stamp(3)
    e(f"v_mov_b32 v{T0}, v{DESC}")
    e(f"v_mov_b32 v{T0+1}, v{DESC+2}")
    e(f"buffer_load_dword v{DESC}, v{T0}, s[16:19], 0 offen")
    e(f"buffer_load_dword v{DESC+1}, v{T0}, s[16:19], 0 offen offset:1024")
    e(f"buffer_load_dword v{DESC+2}, v{T0+1}, s[16:19], 0 offen offset:2048")
    e(f"buffer_load_dword v{DESC+3}, v{T0+1}, s[16:19], 0 offen offset:3072")
    fast_sort()
    generic_sort_and_loop("A")
    e(f"s_cmp_eq_u32 s{S_PASS}, 2")
    e("s_cbranch_scc1 EPI")
    stamp(6)
    e(f"s_cmp_ge_u32 s{S_TAU}, s{S_NT}")
    e("s_cbranch_scc1 T1_DONE")
    e("s_nop 7")
    for t in range(4):
        e(f"v_cvt_pk_bf16_f32 v{T1T+2*t}, v{ACC+4*t}, v{ACC+4*t+1}")
        e(f"v_cvt_pk_bf16_f32 v{T1T+2*t+1}, v{ACC+4*t+2}, v{ACC+4*t+3}")
    tile_store(T1T, 16, WS_T1P, " sc1", "TS1")
    e("T1_DONE:")
    for i in range(16):
        e(f"v_mov_b32 v{ACC+i}, 0")
    srd_off(12, 6, 7, WS_T1P, N * 128)
    e(f"s_mov_b32 s{S_PASS}, 2")

    def between2():
        e(f"s_cmp_ge_u32 s{S_TAU}, s{S_NT}")
        e("s_cbranch_scc1 B2_END")
        e(f"s_cmp_eq_u32 s{S_FAST}, 1")
        e("s_cbranch_scc0 B2_END")
        gemm_xt1(EN)
        e("B2_END:")
    grid_barrier(1, between2)
    stamp(7)
    e(f"s_cmp_eq_u32 s{S_FAST}, 1")
    e("s_cbranch_scc0 A_START")
    e(f"s_mov_b32 s{S_MSK}, s{S_HDR}")
    e(f"s_mov_b32 s{S_MAXC}, 0")
    e(f"s_mov_b32 s{S_MORE}, 0")
    e("s_branch A_ML")
    e("EPI:")
    e(f"s_cmp_ge_u32 s{S_TAU}, s{S_NT}")
    e("s_cbranch_scc1 K_END")
    stamp(8)
    e(f"s_cmp_eq_u32 s{S_FAST}, 1")
    e("s_cbranch_scc1 EPI2")
    gemm_xt1(EN)
    e("EPI2:")
    e(f"v_add_u32 v{T0+1}, {L_WF}, v{L16}")
    for s_ in range(2):
        wb = [A, BF][s_]
        for t in range(4):
            f = 16 + s_ * 4 + t
            e(f"ds_read_b128 v[{wb+4*t}:{wb+4*t+3}], v{T0+1} offset:{f*1024}")
    e(f"s_mov_b32 s{S_TMP+2}, 0xffff0000")
    e("s_nop 3")
    T2 = POS
    TMPA = SRC4
    for i in range(8):
        a = ACC + 2 * i
        e(f"v_cvt_pk_bf16_f32 v{TMPA}, v{a}, v{a+1}")
        e(f"v_lshlrev_b32 v{TMPA+1}, 16, v{XT+i}")
        e(f"v_and_b32 v{TMPA+2}, s{S_TMP+2}, v{XT+i}")
        e(f"v_lshlrev_b32 v{TMPA+3}, 16, v{TMPA}")
        e(f"v_and_b32 v{TMPA+4}, s{S_TMP+2}, v{TMPA}")
        e(f"v_fma_f32 v{TMPA+3}, 2.0, v{TMPA+3}, -v{TMPA+1}")
        e(f"v_fma_f32 v{TMPA+4}, 2.0, v{TMPA+4}, -v{TMPA+2}")
        e(f"v_cvt_pk_bf16_f32 v{T2+i}, v{TMPA+3}, v{TMPA+4}")
    e("s_waitcnt lgkmcnt(0)")
    e("s_nop 1")
    for s_ in range(2):
        wb = [A, BF][s_]
        b = T2 + 4 * s_
        for t in range(4):
            c = EN + 4 * t
            e(f"v_mfma_f32_16x16x32_bf16 v[{c}:{c+3}], v[{wb+4*t}:{wb+4*t+3}], v[{b}:{b+3}], v[{c}:{c+3}]")
    e("s_nop 7")
    e("s_nop 3")
    for t in range(4):
        e(f"v_cvt_pk_bf16_f32 v{ACC+2*t}, v{EN+4*t}, v{EN+4*t+1}")
        e(f"v_cvt_pk_bf16_f32 v{ACC+2*t+1}, v{EN+4*t+2}, v{EN+4*t+3}")
    tile_store(ACC, 24, 0, os.environ.get("OUTMOD", " sc1"), "TS2")
    if DIAG:
        stamp(9)
        e("s_waitcnt vmcnt(0)")
        stamp(10)
        e("s_mov_b64 exec, 1")
        e(f"s_lshl_b32 s{S_TMP}, s2, 4")
        e(f"s_add_u32 s{S_TMP}, s{S_TMP}, s{S_TAU}")
        e(f"s_lshl_b32 s{S_TMP}, s{S_TMP}, 6")
        e(f"s_add_u32 s{S_TMP}, s{S_TMP}, {WS_DIAG}")
        for i in range(11):
            e(f"v_mov_b32 v{T0+1}, s{S_ST+2*i}")
            e(f"buffer_store_dword v{T0+1}, v{ZERO}, s[16:19], s{S_TMP} offen offset:{4*i}")
    if os.environ.get("PROBE"):
        a_, b_ = [int(x) for x in os.environ["PROBE"].split(",")]
        e("s_cmp_eq_u32 s2, 0")
        e("s_cbranch_scc0 K_END")
        e(f"s_cmp_eq_u32 s{S_TAU}, 0")
        e("s_cbranch_scc0 K_END")
        e(f"s_sub_u32 s{S_TMP}, s{S_ST+2*b_}, s{S_ST+2*a_}")
        e(f"s_add_u32 s{S_TMP}, s{S_TMP}, 300")
        e("PRB:")
        e(f"s_memrealtime s[{S_TMP+2}:{S_TMP+3}]")
        e("s_waitcnt lgkmcnt(0)")
        e(f"s_sub_u32 s{S_TMP+1}, s{S_TMP+2}, s{S_ST+20}")
        e(f"s_cmp_lt_u32 s{S_TMP+1}, s{S_TMP}")
        e("s_cbranch_scc1 PRB")
    if os.environ.get("DBGST"):
        e("s_cmp_eq_u32 s2, 0")
        e("s_cbranch_scc0 K_END")
        e(f"s_cmp_eq_u32 s{S_TAU}, 0")
        e("s_cbranch_scc0 K_END")
        words = [1, 2, 3, 5, 6, 7, 8, 9, 10, 11]
        for i in range(1, 11):
            e(f"s_sub_u32 s{S_TMP}, s{S_ST+2*i}, s{S_ST}")
            e(f"v_mov_b32 v{T0+1}, s{S_TMP}")
            e(f"v_mov_b32 v{T0}, {words[i-1]*4}")
            e(f"global_store_dword v{T0}, v{T0+1}, s[10:11]")
    e("K_END:")
    e("s_endpgm")
    e('.section .rodata,"a"')
    e(".p2align 6")
    e(f".amdhsa_kernel {name}")
    e(f"  .amdhsa_next_free_vgpr {NV}")
    e(f"  .amdhsa_next_free_sgpr {NS}")
    e(f"  .amdhsa_accum_offset {NV}")
    e("  .amdhsa_group_segment_fixed_size 0")
    e("  .amdhsa_kernarg_size 64")
    e("  .amdhsa_user_sgpr_count 2")
    e("  .amdhsa_user_sgpr_kernarg_segment_ptr 1")
    e("  .amdhsa_system_sgpr_workgroup_id_x 1")
    e("  .amdhsa_float_denorm_mode_32 3")
    e("  .amdhsa_float_denorm_mode_16_64 3")
    e(".end_amdhsa_kernel")


HEADER = """; Kernarg layout for this problem (64 bytes, ptrs only, base s[0:1]):
"""


def main():
    out.append(HEADER.rstrip())
    out.append(f"; @launch grid=({NB},1,1) block=(1024,1,1) lds={L_TOTAL}")
    out.append('.amdgcn_target "amdgcn-amd-amdhsa--gfx950"')
    gen()
    path = sys.argv[1] if len(sys.argv) > 1 else "standalone__spectral_conv_chebnet__graph.s"
    open(path, "w").write("\n".join(out) + "\n")


if __name__ == "__main__":
    main()
```

```python
import os
import sys

N = 50000
E = 800000
NCH = 250
CH = 3200
CHB = CH * 8
NB = 256
TCAP = 384
BN = 196
TLA = TCAP * 4
TLB = TCAP * 2

WS_ENT = 0
WS_TABLE = 0x680000
WS_T1P = 0x700000
WS_WF = 0xE00000
WS_USED = 0xE10000

L_BINS = 0
L_MAXC = 512
L_MORE = 516
L_LA = 1024
L_LB = L_LA + 13 * TLA
L_WF = L_LB + 13 * TLB
L_STAGE = L_WF + 24576
L_TOTAL = L_STAGE + 13 * 8192
assert L_STAGE % 256 == 0 and L_TOTAL <= 163840

DIAG = bool(os.environ.get("DIAG"))
PFA = int(os.environ.get("PFA", "0"))
PFB = int(os.environ.get("PFB", "0"))
PRIO = int(os.environ.get("PRIO", "1"))
_pt = [int(x) for x in os.environ.get("PRT", "7,5,3").split(",")]
PRTH = ((_pt[0], 2), (_pt[1], 1), (_pt[2], 0))
TLBW = int(os.environ.get("TLBW", "0"))
PFP = int(os.environ.get("PFP", "0"))
D1 = int(os.environ.get("D1", "0"))
D1W = int(os.environ.get("D1W", "0"))
DFIRST = int(os.environ.get("DFIRST", "1"))
WS_DIAG = 0x1600000
if DIAG:
    WS_USED = 0x1800000

out = []


def e(s=""):
    out.append("    " + s if s and not s.endswith(":") else s)


S_ST = 80


def stamp(i):
    if DIAG:
        e("s_waitcnt lgkmcnt(0)")
        e(f"s_memrealtime s[{S_ST+2*i}:{S_ST+2*i+1}]")
        e("s_waitcnt lgkmcnt(0)")


def srd(d, plo, phi, size):
    e(f"s_mov_b32 s{d}, s{plo}")
    e(f"s_and_b32 s{d+1}, s{phi}, 0xffff")
    e(f"s_mov_b32 s{d+2}, {size}")
    e(f"s_mov_b32 s{d+3}, 0x00020000")


def srd_off(d, plo, phi, off, size):
    e(f"s_add_u32 s{d}, s{plo}, {off}")
    e(f"s_addc_u32 s{d+1}, s{phi}, 0")
    e(f"s_and_b32 s{d+1}, s{d+1}, 0xffff")
    e(f"s_mov_b32 s{d+2}, {size}")
    e(f"s_mov_b32 s{d+3}, 0x00020000")


def wave_scan(v, full=True):
    shifts = [1, 2, 4, 8] if full else [1, 2, 4]
    for sh in shifts:
        e("s_nop 1")
        e(f"v_add_u32_dpp v{v}, v{v}, v{v} row_shr:{sh} row_mask:0xf bank_mask:0xf bound_ctrl:0")
    if full:
        e("s_nop 1")
        e(f"v_add_u32_dpp v{v}, v{v}, v{v} row_bcast:15 row_mask:0xa bank_mask:0xf")
        e("s_nop 1")
        e(f"v_add_u32_dpp v{v}, v{v}, v{v} row_bcast:31 row_mask:0xc bank_mask:0xf")
    e("s_nop 1")


ACC = 4
A = 20
BF = 36
E8 = 40
OH4 = 48
SRC4 = 52
GOFF = 56
LOFF = 60
TRA = 64
ASRC = 68
AEW = 69
AOH = 70
SHAMT = 71
L16 = 72
T0 = 73
DESC = 80
EN = 84
POS = 100
XT = 108
T1T = 116
J16 = 124
GBASE = 125
ONE = 126
ZERO = 127
FOUR = 3
NV = 128

S_B, S_NB0, S_NT, S_TAU = 28, 29, 30, 31
S_128, S_F, S_SB, S_LB = 32, 33, 34, 35
S_W32, S_U, S_CNT, S_REM, S_MAXC, S_MORE = 36, 37, 38, 39, 40, 41
S_TMP = 42
S_MASK = 48
S_X = 64
S_NWIN = 66
S_HDR = 67
S_PERM = 68
S_ROT = 69
S_PASS = 70
S_SPIN = 71
S_MSK = 72
S_FAST = 73
S_ROWB = 74
S_TOFF = 75
S_Q0, S_Q1, S_Q2 = 76, 77, 78
S_K = 79
NS = 102 if DIAG else 80


def prefetch(firstkb, count, srdx, vdummy, st):
    if count == 0:
        return
    e(f"s_lshr_b32 s{st}, s2, 3")
    e(f"s_lshl_b32 s{st}, s{st}, 4")
    e(f"s_add_u32 s{st}, s{st}, s{S_TAU}")
    e(f"s_lshl_b32 s{st}, s{st}, 10")
    for k in range(count):
        e(f"s_add_u32 s{st+1}, s{st}, {(firstkb + 512*k) * 1024}")
        e(f"buffer_load_dwordx4 v[{vdummy}:{vdummy+3}], v{L16}, s[{srdx}:{srdx+3}], s{st+1} offen")


def grid_barrier(k, between=None):
    e("s_waitcnt vmcnt(0) lgkmcnt(0)")
    e("s_barrier")
    e(f"s_cmp_eq_u32 s{S_TAU}, 15")
    e(f"s_cbranch_scc1 GB{k}_POLL")
    if between:
        between()
    e(f"s_branch GB{k}_JOIN")
    e(f"GB{k}_POLL:")
    e("s_mov_b64 exec, 1")
    e(f"s_and_b32 s{S_TMP}, s2, 1")
    e(f"s_lshl_b32 s{S_TMP}, s{S_TMP}, 6")
    e(f"s_add_u32 s{S_TMP}, s{S_TMP}, {k*16}")
    e(f"v_mov_b32 v{T0}, s{S_TMP}")
    e(f"v_mov_b32 v{T0+1}, {128 + k*16}")
    e(f"global_atomic_add v{T0+2}, v{T0}, v{ONE}, s[10:11] sc0 sc1")
    e("s_waitcnt vmcnt(0)")
    e(f"v_readfirstlane_b32 s{S_TMP}, v{T0+2}")
    e(f"s_cmp_eq_u32 s{S_TMP}, {NB//2 - 1}")
    e(f"s_cbranch_scc0 GB{k}_SPIN0")
    e(f"global_atomic_add v{T0+1}, v{ONE}, s[10:11] sc1")
    e(f"GB{k}_SPIN0:")
    e(f"s_mov_b32 s{S_SPIN}, 0")
    e(f"GB{k}_SPIN:")
    e(f"global_load_dword v{T0+2}, v{T0+1}, s[10:11] sc1")
    e("s_waitcnt vmcnt(0)")
    e(f"v_readfirstlane_b32 s{S_TMP}, v{T0+2}")
    e(f"s_cmp_ge_u32 s{S_TMP}, 2")
    e(f"s_cbranch_scc1 GB{k}_DONE")
    e(f"s_add_u32 s{S_SPIN}, s{S_SPIN}, 1")
    e(f"s_cmp_ge_u32 s{S_SPIN}, 0x400000")
    e(f"s_cbranch_scc1 GB{k}_DONE")
    e("s_sleep 2")
    e(f"s_branch GB{k}_SPIN")
    e(f"GB{k}_DONE:")
    e("s_mov_b64 exec, -1")
    e(f"GB{k}_JOIN:")
    e("s_barrier")


def phase0():
    e("s_load_dwordx4 s[52:55], s[0:1], 8")
    e("s_load_dwordx4 s[56:59], s[0:1], 24")
    e(f"s_mul_i32 s3, s2, {CH*4}")
    e("v_lshlrev_b32 v2, 4, v0")
    e("v_add_u32 v2, s3, v2")
    e("v_lshrrev_b32 v3, 1, v2")
    e("v_and_b32 v24, 0xff, v0")
    e("v_lshlrev_b32 v24, 2, v24")
    e(f"ds_write_b32 v24, v{ZERO}")
    e("s_waitcnt lgkmcnt(0)")
    stamp(0)
    e(f"s_cmp_ge_u32 s2, {NCH}")
    e("s_cbranch_scc1 P_WPREP")
    srd(40, 54, 55, E * 4)
    e(f"v_cmp_gt_u32 vcc, {CH//4}, v0")
    e("s_and_saveexec_b64 s[64:65], vcc")
    e("s_mov_b64 s[62:63], exec")
    e("s_cbranch_execz P_SKIP1")
    e("buffer_load_dwordx4 v[4:7], v2, s[40:43], 0 offen")
    e("P_SKIP1:")
    e("s_mov_b64 exec, -1")
    srd(36, 52, 53, E * 4)
    srd(44, 56, 57, E * 2)
    e("s_barrier")
    e("s_mov_b64 exec, s[62:63]")
    e("s_cbranch_execz P_SKIP2")
    if DFIRST:
        e("buffer_load_dwordx4 v[8:11], v2, s[36:39], 0 offen")
        e("buffer_load_dwordx2 v[12:13], v3, s[44:47], 0 offen")
    e("s_waitcnt vmcnt(2)")
    for i in range(4):
        e(f"v_lshrrev_b32 v{14+i}, 2, v{4+i}")
        e(f"v_mul_u32_u24 v{14+i}, 21400, v{14+i}")
        e(f"v_lshrrev_b32 v{14+i}, 20, v{14+i}")
        e(f"v_lshlrev_b32 v{14+i}, 2, v{14+i}")
        e(f"ds_add_rtn_u32 v{18+i}, v{14+i}, v{ONE}")
    e("P_SKIP2:")
    e("s_mov_b64 exec, -1")
    srd(16, 6, 7, WS_USED)
    e("s_mov_b32 s60, 0xffff0000")
    e("s_waitcnt lgkmcnt(0)")
    e("s_barrier")
    stamp(1)
    e(f"s_cmp_eq_u32 s{S_TAU}, 15")
    e("s_cbranch_scc0 P_SKIP3")
    e(f"ds_read_b128 v[32:35], v{L16}")
    e("s_waitcnt lgkmcnt(0)")
    e("v_add_u32 v36, v32, v33")
    e("v_add_u32 v37, v36, v34")
    e("v_add_u32 v38, v37, v35")
    e("v_mov_b32 v39, v38")
    wave_scan(39)
    e("v_sub_u32 v40, v39, v38")
    e("v_add_u32 v41, v40, v32")
    e("v_add_u32 v42, v40, v36")
    e("v_add_u32 v43, v40, v37")
    for i in range(4):
        e(f"v_add_u32 v{48+i}, 128, v{40+i}")
    e(f"ds_write_b128 v{L16}, v[48:51]")
    for i in range(4):
        e(f"v_lshl_or_b32 v{44+i}, v{32+i}, 16, v{40+i}")
    e("s_lshl_b32 s52, s2, 10")
    e(f"s_add_u32 s52, s52, {WS_TABLE}")
    e(f"buffer_store_dwordx4 v[44:47], v{L16}, s[16:19], s52 offen sc1")
    e("P_SKIP3:")
    e("s_waitcnt lgkmcnt(0)")
    e("s_barrier")
    e("s_mov_b64 exec, s[62:63]")
    e("s_cbranch_execz P_SKIP4")
    for i in range(4):
        e(f"ds_read_b32 v{14+i}, v{14+i}")
    e("s_waitcnt vmcnt(0)")
    e("v_lshl_or_b32 v8, v12, 16, v8")
    e("v_and_or_b32 v9, v12, s60, v9")
    e("v_lshl_or_b32 v10, v13, 16, v10")
    e("v_and_or_b32 v11, v13, s60, v11")
    for i in range(4):
        e(f"s_waitcnt lgkmcnt({3-i})")
        e(f"v_add_lshl_u32 v{14+i}, v{14+i}, v{18+i}, 3")
    for i in range(4):
        e(f"ds_write2_b32 v{14+i}, v{8+i}, v{4+i} offset0:0 offset1:1")
    e("P_SKIP4:")
    e("s_mov_b64 exec, -1")
    e("s_waitcnt lgkmcnt(0)")
    e("s_barrier")
    e("v_lshlrev_b32 v30, 4, v0")
    e("ds_read_b128 v[32:35], v30 offset:1024")
    e(f"s_mul_i32 s52, s2, {CHB}")
    e(f"s_add_u32 s53, s52, 0x4000")
    e(f"s_cmp_ge_u32 s{S_TAU}, {(CHB//16 - 1024)//64}")
    e("s_cbranch_scc1 P_SKIP5")
    e(f"ds_read_b128 v[36:39], v30 offset:{1024+16384}")
    e("s_waitcnt lgkmcnt(0)")
    e("buffer_store_dwordx4 v[36:39], v30, s[16:19], s53 offen sc1")
    e("P_SKIP5:")
    e("s_waitcnt lgkmcnt(0)")
    e("buffer_store_dwordx4 v[32:35], v30, s[16:19], s52 offen sc1")
    e("s_branch P_END")
    e("P_WPREP:")
    srd(16, 6, 7, WS_USED)
    srd(48, 58, 59, 3 * 64 * 64 * 2)
    e(f"s_sub_u32 s52, s2, {NCH}")
    e("s_lshl_b32 s52, s52, 2")
    e(f"s_lshr_b32 s53, s{S_TAU}, 2")
    e("s_add_u32 s52, s52, s53")
    e("v_and_b32 v30, 0xff, v0")
    e("s_lshr_b32 s54, s52, 3")
    e("s_bfe_u32 s55, s52, 0x10002")
    e("s_and_b32 s56, s52, 3")
    e("v_and_b32 v31, 3, v30")
    e("v_bfe_u32 v32, v30, 2, 4")
    e("v_lshrrev_b32 v33, 6, v30")
    e("v_lshrrev_b32 v34, 2, v32")
    e("v_lshlrev_b32 v34, 4, v34")
    e("v_and_b32 v35, 3, v32")
    e("v_add_u32 v34, v34, v35")
    e("s_lshl_b32 s57, s56, 2")
    e("v_add_u32 v34, s57, v34")
    e("v_lshlrev_b32 v36, 4, v33")
    e("v_lshl_add_u32 v36, v31, 1, v36")
    e("s_lshl_b32 s57, s55, 3")
    e("v_add_u32 v36, s57, v36")
    e("v_lshrrev_b32 v37, 1, v31")
    e("v_lshlrev_b32 v37, 4, v37")
    e("v_lshl_add_u32 v37, v33, 2, v37")
    e("v_and_b32 v35, 1, v31")
    e("v_lshl_add_u32 v37, v35, 1, v37")
    e("s_lshl_b32 s57, s55, 5")
    e("v_add_u32 v37, s57, v37")
    e("s_cmp_eq_u32 s54, 1")
    e("s_cselect_b64 vcc, -1, 0")
    e("s_nop 1")
    e("v_cndmask_b32 v36, v36, v37, vcc")
    e("v_lshlrev_b32 v36, 7, v36")
    e("v_lshl_add_u32 v36, v34, 1, v36")
    e("s_lshl_b32 s57, s54, 13")
    e("v_add_u32 v36, s57, v36")
    e("buffer_load_ushort v37, v36, s[48:51], 0 offen")
    e("buffer_load_ushort v38, v36, s[48:51], 0 offen offset:128")
    e("s_lshl_b32 s57, s52, 10")
    e(f"s_add_u32 s57, s57, {WS_WF}")
    e("v_lshlrev_b32 v39, 2, v30")
    e("v_add_u32 v39, s57, v39")
    e("s_waitcnt vmcnt(0)")
    e("v_lshl_or_b32 v37, v38, 16, v37")
    e("buffer_store_dword v37, v39, s[16:19], 0 offen sc1")
    e("P_END:")
    srd(20, 4, 5, N * 128)


def issue_gather(slot, src=None):
    src = SRC4 if src is None else src
    for i in range(4):
        e(f"s_add_u32 m0, s{S_SB}, {slot*4096 + i*1024}")
        e(f"v_mad_u32_u16 v{GOFF+i}, v{src+i}, s{S_128}, v{LOFF+i}")
        e(f"buffer_load_dwordx4 v{GOFF+i}, s[12:15], 0 offen lds")


def next_slot(q):
    e(f"s_ff1_i32_b32 s{q}, s{S_MSK}")
    e(f"s_max_i32 s{q}, s{q}, 0")
    e(f"s_bitset0_b32 s{S_MSK}, s{q}")
    e(f"s_lshl_b32 s{q}, s{q}, 7")


def main_loop(p):
    e(f"s_bcnt1_i32_b32 s{S_REM}, s{S_MSK}")
    e(f"s_cmp_eq_u32 s{S_REM}, 0")
    e(f"s_cbranch_scc1 {p}_DONE")
    if PRIO:
        e("s_setprio 3")
    next_slot(S_Q0)
    e(f"v_add_u32 v{T0}, s{S_Q0}, v{ASRC}")
    e(f"ds_read_b128 v[{SRC4}:{SRC4+3}], v{T0}")
    next_slot(S_Q1)
    e(f"v_add_u32 v{T0+1}, s{S_Q1}, v{ASRC}")
    e(f"ds_read_b128 v[{E8}:{E8+3}], v{T0+1}")
    next_slot(S_Q2)
    e("s_waitcnt lgkmcnt(1)")
    issue_gather(0)
    e(f"s_cmp_lt_u32 s{S_REM}, 2")
    e(f"s_cbranch_scc1 {p}_LOOP0")
    e("s_waitcnt lgkmcnt(0)")
    issue_gather(1, E8)
    for P in range(2):
        e(f"{p}_LOOP{P}:")
        e(f"s_lshr_b32 s{S_TMP}, s{S_Q0}, 1")
        e(f"v_add_u32 v{T0}, s{S_Q0}, v{AEW}")
        e(f"v_add_u32 v{T0+1}, s{S_TMP}, v{AOH}")
        e(f"v_add_u32 v{T0+2}, s{S_Q2}, v{ASRC}")
        e(f"ds_read_b128 v[{E8}:{E8+3}], v{T0}")
        e(f"ds_read_b128 v[{E8+4}:{E8+7}], v{T0} offset:16")
        e(f"ds_read_b128 v[{OH4}:{OH4+3}], v{T0+1}")
        e(f"ds_read_b128 v[{SRC4}:{SRC4+3}], v{T0+2}")
        e(f"s_mov_b32 s{S_Q0}, s{S_Q1}")
        e(f"s_mov_b32 s{S_Q1}, s{S_Q2}")
        next_slot(S_Q2)
        if PRIO:
            for th, pr in PRTH:
                e(f"s_cmp_eq_u32 s{S_REM}, {th}")
                e(f"s_cbranch_scc0 {p}_PR{P}_{th}")
                e(f"s_setprio {pr}")
                e(f"{p}_PR{P}_{th}:")
        e(f"s_cmp_eq_u32 s{S_REM}, 1")
        e(f"s_cbranch_scc1 {p}_W0_{P}")
        e("s_waitcnt vmcnt(4)")
        e(f"s_branch {p}_W1_{P}")
        e(f"{p}_W0_{P}:")
        e("s_waitcnt vmcnt(0)")
        e(f"{p}_W1_{P}:")
        for t in range(4):
            for h in range(2):
                r = A + t * 4 + h * 2
                if os.environ.get("NOTR") and (t or h):
                    continue
                e(f"ds_read_b64_tr_b16 v[{r}:{r+1}], v{TRA+t} offset:{P*4096 + h*256}")
        e("s_waitcnt lgkmcnt(9)" if not os.environ.get("NOTR") else "s_waitcnt lgkmcnt(2)")
        for i in range(4):
            e(f"v_pk_lshlrev_b16 v{BF+i}, v{SHAMT}, v{OH4+i}")
            e(f"v_perm_b32 v{E8+2*i}, v{E8+2*i+1}, v{E8+2*i}, s{S_PERM}")
        for i in range(4):
            e(f"v_pk_ashrrev_i16 v{BF+i}, s{S_F}, v{BF+i}")
        for i in range(4):
            e(f"v_and_b32 v{BF+i}, v{BF+i}, v{E8+2*i}")
        e("s_waitcnt lgkmcnt(0)")
        e(f"s_cmp_lt_u32 s{S_REM}, 3")
        e(f"s_cbranch_scc1 {p}_NI_{P}")
        issue_gather(P)
        e(f"{p}_NI_{P}:")
        for t in range(4):
            a = A + t * 4
            c = ACC + t * 4
            e(f"v_mfma_f32_16x16x32_bf16 v[{c}:{c+3}], v[{a}:{a+3}], v[{BF}:{BF+3}], v[{c}:{c+3}]")
        e(f"s_sub_u32 s{S_REM}, s{S_REM}, 1")
        e(f"s_cmp_eq_u32 s{S_REM}, 0")
        e(f"s_cbranch_scc1 {p}_DONE")
        if P == 1:
            e(f"s_branch {p}_LOOP0")
    e(f"{p}_DONE:")
    if PRIO:
        e("s_setprio 0")


def main_loop_d1(p):
    e(f"s_bcnt1_i32_b32 s{S_REM}, s{S_MSK}")
    e(f"s_cmp_eq_u32 s{S_REM}, 0")
    e(f"s_cbranch_scc1 {p}_DONE")
    if PRIO:
        e("s_setprio 3")
    next_slot(S_Q0)
    e(f"v_add_u32 v{T0}, s{S_Q0}, v{ASRC}")
    e(f"ds_read_b128 v[{SRC4}:{SRC4+3}], v{T0}")
    next_slot(S_Q1)
    e("s_waitcnt lgkmcnt(0)")
    issue_gather(0)
    for P in range(2):
        e(f"{p}_LOOP{P}:")
        e(f"s_lshr_b32 s{S_TMP}, s{S_Q0}, 1")
        e(f"v_add_u32 v{T0}, s{S_Q0}, v{AEW}")
        e(f"v_add_u32 v{T0+1}, s{S_TMP}, v{AOH}")
        e(f"v_add_u32 v{T0+2}, s{S_Q1}, v{ASRC}")
        e(f"ds_read_b128 v[{SRC4}:{SRC4+3}], v{T0+2}")
        e(f"ds_read_b128 v[{E8}:{E8+3}], v{T0}")
        e(f"ds_read_b128 v[{E8+4}:{E8+7}], v{T0} offset:16")
        e(f"ds_read_b128 v[{OH4}:{OH4+3}], v{T0+1}")
        e(f"s_mov_b32 s{S_Q0}, s{S_Q1}")
        next_slot(S_Q1)
        if PRIO:
            for th, pr in PRTH:
                e(f"s_cmp_eq_u32 s{S_REM}, {th}")
                e(f"s_cbranch_scc0 {p}_PR{P}_{th}")
                e(f"s_setprio {pr}")
                e(f"{p}_PR{P}_{th}:")
        e("s_waitcnt lgkmcnt(0)")
        for i in range(4):
            e(f"v_pk_lshlrev_b16 v{BF+i}, v{SHAMT}, v{OH4+i}")
            e(f"v_perm_b32 v{E8+2*i}, v{E8+2*i+1}, v{E8+2*i}, s{S_PERM}")
        for i in range(4):
            e(f"v_pk_ashrrev_i16 v{BF+i}, s{S_F}, v{BF+i}")
        for i in range(4):
            e(f"v_and_b32 v{BF+i}, v{BF+i}, v{E8+2*i}")
        e(f"s_waitcnt vmcnt({D1W})")
        e(f"s_cmp_lt_u32 s{S_REM}, 2")
        e(f"s_cbranch_scc1 {p}_NI_{P}")
        issue_gather(1 - P)
        e("s_waitcnt vmcnt(4)")
        e(f"s_branch {p}_GO_{P}")
        e(f"{p}_NI_{P}:")
        e("s_waitcnt vmcnt(0)")
        e(f"{p}_GO_{P}:")
        for t in range(4):
            for h in range(2):
                r = A + t * 4 + h * 2
                e(f"ds_read_b64_tr_b16 v[{r}:{r+1}], v{TRA+t} offset:{P*4096 + h*256}")
        e("s_waitcnt lgkmcnt(0)")
        for t in range(4):
            a = A + t * 4
            c = ACC + t * 4
            e(f"v_mfma_f32_16x16x32_bf16 v[{c}:{c+3}], v[{a}:{a+3}], v[{BF}:{BF+3}], v[{c}:{c+3}]")
        e(f"s_sub_u32 s{S_REM}, s{S_REM}, 1")
        e(f"s_cmp_eq_u32 s{S_REM}, 0")
        e(f"s_cbranch_scc1 {p}_DONE")
        if P == 1:
            e(f"s_branch {p}_LOOP0")
    e(f"{p}_DONE:")
    if PRIO:
        e("s_setprio 0")


def set_list_ptrs():
    e(f"v_and_b32 v{T0}, 8, v1")
    e(f"v_lshlrev_b32 v{T0}, 2, v{T0}")
    e(f"v_and_b32 v{T0+1}, 16, v1")
    e(f"v_or_b32 v{T0}, v{T0}, v{T0+1}")
    e(f"v_and_b32 v{T0+1}, 32, v1")
    e(f"v_lshl_or_b32 v{T0}, v{T0+1}, 1, v{T0}")
    e(f"v_add_u32 v{ASRC}, s{S_LB}, v{T0}")
    e(f"v_and_b32 v{T0}, 48, v1")
    e(f"v_lshl_add_u32 v{AEW}, v{T0}, 1, s{S_LB}")
    e(f"s_sub_u32 s{S_TMP}, s{S_LB}, {L_LA}")
    e(f"s_lshr_b32 s{S_TMP}, s{S_TMP}, 1")
    e(f"s_add_u32 s{S_TMP}, s{S_TMP}, {L_LB}")
    e(f"v_add_u32 v{AOH}, s{S_TMP}, v{T0}")


def lane_constants():
    set_list_ptrs()
    e(f"v_and_b32 v{T0}, 7, v1")
    for i in range(4):
        e(f"v_xor_b32 v{LOFF+i}, {0 if os.environ.get('NOSWZ') else 2*i}, v{T0}")
        e(f"v_lshlrev_b32 v{LOFF+i}, 4, v{LOFF+i}")
    e(f"v_bfe_u32 v{T0}, v1, 2, 2")
    e(f"v_lshlrev_b32 v{T0+1}, 10, v{T0}")
    e(f"v_and_b32 v{T0+2}, 16, v1")
    e(f"v_lshl_add_u32 v{T0+1}, v{T0+2}, 3, v{T0+1}")
    e(f"v_and_b32 v{T0+2}, 32, v1")
    e(f"v_lshl_add_u32 v{T0+1}, v{T0+2}, 4, v{T0+1}")
    e(f"v_and_b32 v{T0+2}, 3, v1")
    e(f"v_lshl_add_u32 v{T0+1}, v{T0+2}, 3, v{T0+1}")
    e(f"v_add_u32 v{T0+1}, s{S_SB}, v{T0+1}")
    for t in range(4):
        e(f"v_xor_b32 v{T0+2}, {t}, v{T0}")
        e(f"v_lshl_add_u32 v{TRA+t}, v{T0+2}, 5, v{T0+1}")
    e(f"v_and_b32 v{T0}, 15, v1")
    e(f"v_sub_u32 v{T0}, 15, v{T0}")
    e(f"v_lshl_or_b32 v{SHAMT}, v{T0}, 16, v{T0}")
    for i in range(16):
        e(f"v_mov_b32 v{ACC+i}, 0")
    e(f"v_lshrrev_b32 v{T0}, 4, v0")
    e(f"v_and_b32 v{J16}, 15, v0")
    e(f"v_mul_u32_u24 v{GBASE}, {4*CHB}, v{T0}")
    e(f"v_lshl_add_u32 v{GBASE}, v{J16}, 3, v{GBASE}")
    e(f"s_lshl_b32 s{S_TMP}, s{S_B}, 2")
    e(f"s_add_u32 s{S_TMP}, s{S_TMP}, {WS_TABLE}")
    e(f"v_lshlrev_b32 v{POS}, 12, v{T0}")
    e(f"v_add_u32 v{POS}, s{S_TMP}, v{POS}")
    e(f"v_mov_b32 v{T0+1}, 0x7f000000")
    e(f"v_lshlrev_b32 v{T0}, 2, v{T0}")
    e(f"v_cmp_gt_u32 vcc, {NCH-2}, v{T0}")
    e("s_nop 1")
    e(f"v_cndmask_b32 v{DESC+2}, v{T0+1}, v{POS}, vcc")
    e(f"v_cmp_gt_u32 vcc, {NCH}, v{T0}")
    e("s_nop 1")
    e(f"v_cndmask_b32 v{DESC}, v{T0+1}, v{POS}, vcc")


def entry_loads():
    e(f"s_lshl_b32 s{S_TMP+1}, s{S_W32}, 3")
    e(f"v_add_u32 v{T0+3}, 16, v{J16}")
    e(f"v_mov_b32 v{T0+4}, 0x7f000000")
    e(f"v_mov_b32 v{T0+6}, 0")
    for r in range(4):
        m0 = S_MASK + 4 * r
        m1 = m0 + 2
        e(f"s_waitcnt vmcnt({3 - r + 2*r})")
        e(f"v_lshrrev_b32 v{T0}, 16, v{DESC+r}")
        e(f"v_subrev_u32 v{T0}, s{S_W32}, v{T0}")
        e(f"v_max_i32 v{T0+6}, v{T0+6}, v{T0}")
        e(f"v_cmp_gt_i32 s[{m0}:{m0+1}], v{T0}, v{J16}")
        e(f"v_cmp_gt_i32 s[{m1}:{m1+1}], v{T0}, v{T0+3}")
        e(f"v_and_b32 v{T0+1}, 0xffff, v{DESC+r}")
        e(f"v_lshl_add_u32 v{T0+1}, v{T0+1}, 3, v{GBASE}")
        e(f"s_add_u32 s{S_TMP}, s{S_TMP+1}, {r*CHB}")
        e(f"v_cndmask_b32 v{T0+2}, v{T0+4}, v{T0+1}, s[{m0}:{m0+1}]")
        e(f"v_cndmask_b32 v{T0+5}, v{T0+4}, v{T0+1}, s[{m1}:{m1+1}]")
        en0 = EN + 4 * r
        e(f"buffer_load_dwordx2 v[{en0}:{en0+1}], v{T0+2}, s[16:19], s{S_TMP} offen")
        e(f"buffer_load_dwordx2 v[{en0+2}:{en0+3}], v{T0+5}, s[16:19], s{S_TMP} offen offset:128")


def pad_code():
    e(f"s_sub_i32 s{S_TMP}, s{S_CNT}, s{S_U}")
    e(f"s_max_i32 s{S_TMP}, s{S_TMP}, 0")
    e(f"s_min_i32 s{S_TMP}, s{S_TMP}, {TCAP}")
    e(f"s_add_u32 s{S_REM}, s{S_TMP}, 31")
    e(f"s_lshr_b32 s{S_REM}, s{S_REM}, 5")
    e(f"s_lshl_b32 s{S_TMP+1}, s{S_REM}, 5")
    e(f"v_add_u32 v{T0}, s{S_TMP}, v1")
    e(f"v_cmp_gt_u32 vcc, s{S_TMP+1}, v{T0}")
    e(f"s_sub_u32 s{S_TMP+1}, s{S_LB}, {L_LA}")
    e(f"v_lshl_add_u32 v{T0+1}, v{T0}, 2, s{S_TMP+1}")
    e(f"v_lshrrev_b32 v{T0+2}, 1, v{T0+1}")
    e(f"v_mov_b32 v{T0+3}, 0xffff")
    e("s_mov_b64 exec, vcc")
    e(f"ds_write_b32 v{T0+1}, v{T0+3} offset:{L_LA}")
    e(f"ds_write_b16 v{T0+2}, v{ZERO} offset:{L_LB}")
    e("s_mov_b64 exec, -1")


def xw_loads():
    e(f"s_cmp_ge_u32 s{S_TAU}, 13")
    e("s_cbranch_scc1 XW_W")
    e(f"v_and_b32 v{T0}, 15, v1")
    e(f"v_lshlrev_b32 v{T0}, 7, v{T0}")
    e(f"v_and_b32 v{T0+1}, 48, v1")
    e(f"v_lshl_add_u32 v{T0}, v{T0+1}, 1, v{T0}")
    e(f"buffer_load_dwordx4 v[{XT}:{XT+3}], v{T0}, s[20:23], s{S_TOFF} offen")
    e(f"buffer_load_dwordx4 v[{XT+4}:{XT+7}], v{T0}, s[20:23], s{S_TOFF} offen offset:16")
    e("s_branch XW_END")
    e("XW_W:")
    e(f"s_sub_u32 s{S_TMP}, s{S_TAU}, 13")
    e(f"s_lshl_b32 s{S_TMP}, s{S_TMP}, 13")
    for j in range(2):
        e(f"s_add_u32 m0, s{S_TMP}, {L_WF + j*4096}")
        e(f"s_add_u32 s{S_TMP+1}, s{S_TMP}, {WS_WF + j*4096}")
        for i in range(4):
            e(f"buffer_load_dwordx4 v{L16}, s[16:19], s{S_TMP+1} offen offset:{i*1024} lds")
    e("XW_END:")


def fast_sort():
    e(f"s_mov_b32 s{S_W32}, 0")
    e("FS_WIN:")
    entry_loads()
    e(f"s_movk_i32 s{S_TMP+2}, {TLA}")
    for k in range(8):
        en = EN + 2 * k
        m = S_MASK + 2 * k
        e(f"s_waitcnt vmcnt({7-k})")
        e(f"s_mov_b64 exec, s[{m}:{m+1}]")
        if k & 1:
            e(f"s_cbranch_execz FS_RK{k}")
        e(f"v_subrev_u32 v{en+1}, s{S_NB0}, v{en+1}")
        e(f"v_mad_u32_u16 v{T0}, v{en}, s{S_K}, 0")
        e(f"v_lshrrev_b32 v{T0+1}, 4, v{en+1}")
        e(f"v_lshrrev_b32 v{T0}, 26, v{T0}")
        e(f"v_lshl_add_u32 v{T0+2}, v{T0+1}, 2, v{T0}")
        e(f"v_lshlrev_b32 v{T0+2}, 2, v{T0+2}")
        e(f"ds_add_rtn_u32 v{POS+k}, v{T0+2}, v{FOUR}")
        e(f"v_mul_u32_u24 v{T0+1}, s{S_TMP+2}, v{T0+1}")
        e(f"v_lshl_add_u32 v{A+k}, v{T0}, 9, v{T0+1}")
        e(f"v_and_b32 v{en+1}, 15, v{en+1}")
        e(f"v_lshlrev_b32 v{en+1}, v{en+1}, v{ONE}")
        if k & 1:
            e(f"FS_RK{k}:")
    e("s_waitcnt lgkmcnt(0)")
    e(f"s_movk_i32 s{S_TMP+2}, 508")
    for k in range(8):
        en = EN + 2 * k
        m = S_MASK + 2 * k
        e(f"s_mov_b64 exec, s[{m}:{m+1}]")
        if k & 1:
            e(f"s_cbranch_execz FS_WR{k}")
        e(f"v_min_u32 v{POS+k}, s{S_TMP+2}, v{POS+k}")
        e(f"v_add_u32 v{POS+k}, v{POS+k}, v{A+k}")
        e(f"v_lshrrev_b32 v{A+k}, 1, v{POS+k}")
        e(f"ds_write_b32 v{POS+k}, v{en} offset:{L_LA}")
        e(f"ds_write_b16 v{A+k}, v{en+1} offset:{L_LB}")
        if k & 1:
            e(f"FS_WR{k}:")
    e("s_mov_b64 exec, -1")
    e(f"v_cmp_lt_i32 vcc, 32, v{T0+6}")
    e(f"s_add_u32 s{S_W32}, s{S_W32}, 32")
    e("s_cbranch_vccnz FS_WIN")
    xw_loads()
    e(f"v_lshlrev_b32 v{T0}, 2, v1")
    e("s_waitcnt lgkmcnt(0)")
    e("s_barrier")
    stamp(4)
    e(f"ds_read_b32 v{T0+4}, v{T0} offset:{L_BINS}")
    e(f"s_lshl_b32 s{S_TMP+3}, s{S_TAU}, 2")
    e(f"s_sub_u32 s{S_TMP+4}, s{S_LB}, {L_LA}")
    e(f"s_mov_b32 s{S_MSK}, 0")
    e(f"v_mov_b32 v{T0+3}, 0xffff")
    e("s_waitcnt lgkmcnt(0)")
    e(f"v_cmp_lt_u32 vcc, 0x200, v{T0+4}")
    e(f"s_mov_b32 s{S_FAST}, 0")
    e("s_cbranch_vccnz A_START0")
    e(f"s_mov_b32 s{S_FAST}, 1")
    e(f"s_cmp_ge_u32 s{S_TAU}, 13")
    e("s_cbranch_scc1 FS_END")
    for b_ in range(3):
        e(f"s_add_u32 s{S_TMP}, s{S_TMP+3}, {b_}")
        e("s_nop 0")
        e(f"v_readlane_b32 s{S_TMP}, v{T0+4}, s{S_TMP}")
        e("s_nop 0")
        e(f"s_add_u32 s{S_TMP+1}, s{S_TMP}, 127")
        e(f"s_lshr_b32 s{S_TMP+1}, s{S_TMP+1}, 7")
        e(f"s_bfm_b32 s{S_TMP+2}, s{S_TMP+1}, {4*b_}")
        e(f"s_or_b32 s{S_MSK}, s{S_MSK}, s{S_TMP+2}")
        e(f"s_lshl_b32 s{S_TMP+1}, s{S_TMP+1}, 7")
        e(f"v_add_u32 v{T0+1}, s{S_TMP}, v{T0}")
        e(f"v_cmp_gt_u32 vcc, s{S_TMP+1}, v{T0+1}")
        e(f"v_add_u32 v{T0+1}, s{S_TMP+4}, v{T0+1}")
        e(f"v_lshrrev_b32 v{T0+2}, 1, v{T0+1}")
        e("s_mov_b64 exec, vcc")
        e(f"ds_write_b32 v{T0+1}, v{T0+3} offset:{L_LA + 512*b_}")
        e(f"ds_write_b16 v{T0+2}, v{ZERO} offset:{L_LB + 256*b_}")
        e("s_mov_b64 exec, -1")
    e("FS_END:")
    e(f"s_mov_b32 s{S_HDR}, s{S_MSK}")
    e(f"s_mov_b32 s{S_U}, 0")
    e(f"s_mov_b32 s{S_MAXC}, 0")
    e(f"s_mov_b32 s{S_MORE}, 0")
    stamp(5)
    e("s_branch A_ML")
    e("A_START0:")
    e("s_barrier")


def generic_sort_and_loop(p):
    e(f"{p}_START:")
    e(f"s_mov_b32 s{S_W32}, 0")
    e(f"s_mov_b32 s{S_NWIN}, 0")
    e(f"{p}_WIN:")
    e(f"v_lshlrev_b32 v{T0}, 2, v0")
    e("v_cmp_gt_u32 vcc, 130, v0")
    e(f"s_and_saveexec_b64 s[{S_X}:{S_X+1}], vcc")
    e(f"ds_write_b32 v{T0}, v{ZERO}")
    e(f"s_mov_b64 exec, s[{S_X}:{S_X+1}]")
    entry_loads()
    e("s_waitcnt lgkmcnt(0)")
    e("s_barrier")
    e(f"v_cmp_lt_i32 vcc, 32, v{T0+6}")
    e(f"s_and_saveexec_b64 s[{S_X}:{S_X+1}], vcc")
    e(f"v_mov_b32 v{T0}, {L_MORE}")
    e(f"ds_write_b32 v{T0}, v{ONE}")
    e(f"s_mov_b64 exec, s[{S_X}:{S_X+1}]")
    e(f"s_movk_i32 s{S_TMP+2}, {TLA}")
    for k in range(8):
        en = EN + 2 * k
        ba = A + k
        m = S_MASK + 2 * k
        e(f"s_waitcnt vmcnt({7-k})")
        e(f"s_mov_b64 exec, s[{m}:{m+1}]")
        if k & 1:
            e(f"s_cbranch_execz {p}_RK{k}")
        e(f"v_subrev_u32 v{en+1}, s{S_NB0}, v{en+1}")
        e(f"v_mad_u32_u16 v{T0}, v{en}, 21, s{S_ROT}")
        e(f"v_lshrrev_b32 v{T0+1}, 4, v{en+1}")
        e(f"v_bfe_u32 v{T0}, v{T0}, 17, 3")
        e(f"v_lshl_add_u32 v{ba}, v{T0+1}, 3, v{T0}")
        e(f"v_lshlrev_b32 v{ba}, 2, v{ba}")
        e(f"ds_add_rtn_u32 v{POS+k}, v{ba}, v{FOUR}")
        e(f"v_and_b32 v{T0}, 15, v{en+1}")
        e(f"v_lshlrev_b32 v{T0}, v{T0}, v{ONE}")
        e(f"v_mul_u32_u24 v{T0+1}, s{S_TMP+2}, v{T0+1}")
        e(f"v_lshl_or_b32 v{en+1}, v{T0}, 16, v{T0+1}")
        if k & 1:
            e(f"{p}_RK{k}:")
    e("s_mov_b64 exec, -1")
    e("s_waitcnt lgkmcnt(0)")
    e("s_barrier")
    e(f"s_mov_b32 s{S_CNT}, 0")
    e(f"s_cmp_ge_u32 s{S_TAU}, s{S_NT}")
    e(f"s_cbranch_scc1 {p}_NOSCAN")
    e(f"s_lshl_b32 s{S_TMP}, s{S_TAU}, 5")
    e(f"v_lshlrev_b32 v{T0}, 2, v1")
    e(f"v_add_u32 v{T0}, s{S_TMP}, v{T0}")
    e(f"v_mov_b32 v{T0+1}, 0")
    e("s_mov_b64 exec, 0xff")
    e(f"ds_read_b32 v{T0+1}, v{T0} offset:{L_BINS}")
    e("s_mov_b64 exec, -1")
    e(f"s_sub_u32 s{S_TMP+1}, s{S_LB}, {L_LA}")
    e("s_waitcnt lgkmcnt(0)")
    e(f"v_mov_b32 v{T0+2}, v{T0+1}")
    wave_scan(T0 + 2, full=False)
    e(f"v_sub_u32 v{T0+3}, v{T0+2}, v{T0+1}")
    e(f"v_readlane_b32 s{S_CNT}, v{T0+2}, 7")
    e(f"v_add_u32 v{T0+3}, s{S_TMP+1}, v{T0+3}")
    e("s_mov_b64 exec, 0xff")
    e(f"ds_write_b32 v{T0}, v{T0+3} offset:{L_BINS}")
    e(f"s_lshr_b32 s{S_CNT}, s{S_CNT}, 2")
    e("s_mov_b64 exec, 1")
    e(f"v_mov_b32 v{T0}, {L_MAXC}")
    e(f"v_mov_b32 v{T0+1}, s{S_CNT}")
    e(f"ds_max_u32 v{T0}, v{T0+1}")
    e("s_mov_b64 exec, -1")
    e(f"{p}_NOSCAN:")
    e(f"s_mov_b32 s{S_U}, 0")
    pad_code()
    e("s_waitcnt lgkmcnt(0)")
    e("s_barrier")
    e(f"v_mov_b32 v{T0}, {L_MAXC}")
    e(f"ds_read_b64 v[{T0+1}:{T0+2}], v{T0}")
    for k in range(8):
        m = S_MASK + 2 * k
        e(f"s_mov_b64 exec, s[{m}:{m+1}]")
        e(f"ds_read_b32 v{A+k}, v{A+k}")
    e("s_mov_b64 exec, -1")
    e("s_waitcnt lgkmcnt(0)")
    e(f"v_readfirstlane_b32 s{S_MAXC}, v{T0+1}")
    e(f"v_readfirstlane_b32 s{S_MORE}, v{T0+2}")
    e(f"s_cmp_gt_u32 s{S_MAXC}, {TCAP}")
    e(f"s_cbranch_scc1 {p}_SLOWSC")
    for k in range(8):
        en = EN + 2 * k
        m = S_MASK + 2 * k
        e(f"s_mov_b64 exec, s[{m}:{m+1}]")
        if k & 1:
            e(f"s_cbranch_execz {p}_FS{k}")
        e(f"v_add_u32 v{POS+k}, v{POS+k}, v{A+k}")
        e(f"v_lshrrev_b32 v{A+k}, 1, v{POS+k}")
        e(f"ds_write_b32 v{POS+k}, v{en} offset:{L_LA}")
        e(f"ds_write_b16_d16_hi v{A+k}, v{en+1} offset:{L_LB}")
        if k & 1:
            e(f"{p}_FS{k}:")
    e("s_mov_b64 exec, -1")
    e(f"s_branch {p}_SCDONE")
    e(f"{p}_SLOWSC:")
    for k in range(8):
        e(f"v_add_u32 v{POS+k}, v{POS+k}, v{A+k}")
    e(f"{p}_SUB:")
    e(f"s_lshl_b32 s{S_TMP}, s{S_U}, 2")
    for k in range(8):
        en = EN + 2 * k
        m = S_MASK + 2 * k
        e(f"v_and_b32 v{T0+1}, 0xffff, v{en+1}")
        e(f"v_subrev_u32 v{T0}, s{S_TMP}, v{POS+k}")
        e(f"v_sub_u32 v{T0+1}, v{T0}, v{T0+1}")
        e(f"v_cmp_gt_u32 vcc, {TLA}, v{T0+1}")
        e(f"v_lshrrev_b32 v{T0+2}, 1, v{T0}")
        e(f"s_and_b64 exec, vcc, s[{m}:{m+1}]")
        e(f"ds_write_b32 v{T0}, v{en} offset:{L_LA}")
        e(f"ds_write_b16_d16_hi v{T0+2}, v{en+1} offset:{L_LB}")
        e("s_mov_b64 exec, -1")
    pad_code()
    e(f"{p}_SCDONE:")
    e(f"s_bfm_b32 s{S_MSK}, s{S_REM}, 0")
    e("s_waitcnt lgkmcnt(0)")
    e("s_barrier")
    e(f"{p}_ML:")
    (main_loop_d1 if D1 else main_loop)(p + "G")
    e(f"s_add_u32 s{S_NWIN}, s{S_NWIN}, 1")
    e(f"s_add_u32 s{S_U}, s{S_U}, {TCAP}")
    e(f"s_cmp_lt_u32 s{S_U}, s{S_MAXC}")
    e(f"s_cbranch_scc0 {p}_SUBDONE")
    e("s_barrier")
    e(f"s_branch {p}_SUB")
    e(f"{p}_SUBDONE:")
    e(f"s_cmp_eq_u32 s{S_MORE}, 0")
    e(f"s_cbranch_scc1 {p}_WINDONE")
    e(f"s_add_u32 s{S_W32}, s{S_W32}, 32")
    e("s_barrier")
    e(f"s_branch {p}_WIN")
    e(f"{p}_WINDONE:")


def tile_store(regs, srdn, base_off, mods, lbl):
    e(f"v_and_b32 v{T0}, 15, v1")
    e(f"v_lshlrev_b32 v{T0}, 7, v{T0}")
    e(f"v_and_b32 v{T0+1}, 48, v1")
    e(f"v_lshl_add_u32 v{T0}, v{T0+1}, 1, v{T0}")
    e(f"v_add_u32 v{T0}, s{S_SB}, v{T0}")
    e(f"ds_write_b128 v{T0}, v[{regs}:{regs+3}]")
    e(f"ds_write_b128 v{T0}, v[{regs+4}:{regs+7}] offset:16")
    e(f"v_add_u32 v{T0+1}, s{S_SB}, v{L16}")
    e(f"s_add_u32 s{S_TMP}, s{S_TOFF}, {base_off}")
    e(f"s_sub_i32 s{S_TMP+1}, s{S_ROWB}, 1024")
    e(f"v_cmp_gt_i32 vcc, s{S_TMP+1}, v{L16}")
    e(f"v_cmp_gt_i32 s[{S_X}:{S_X+1}], s{S_ROWB}, v{L16}")
    e("s_waitcnt lgkmcnt(0)")
    e(f"ds_read_b128 v[{A}:{A+3}], v{T0+1}")
    e(f"ds_read_b128 v[{A+4}:{A+7}], v{T0+1} offset:1024")
    e(f"s_mov_b64 exec, s[{S_X}:{S_X+1}]")
    e("s_waitcnt lgkmcnt(1)")
    e(f"buffer_store_dwordx4 v[{A}:{A+3}], v{L16}, s[{srdn}:{srdn+3}], s{S_TMP} offen{mods}")
    e("s_mov_b64 exec, vcc")
    e(f"s_cbranch_execz {lbl}")
    e("s_waitcnt lgkmcnt(0)")
    e(f"buffer_store_dwordx4 v[{A+4}:{A+7}], v{L16}, s[{srdn}:{srdn+3}], s{S_TMP} offen offset:1024{mods}")
    e(f"{lbl}:")
    e("s_mov_b64 exec, -1")


def gemm_xt1(dst):
    e(f"v_add_u32 v{T0+1}, {L_WF}, v{L16}")
    WB = [A, BF]
    steps = [(0, 0), (0, 1), (1, 0), (1, 1)]
    Bsrc = {0: XT, 1: T1T}

    def ldw(idx):
        k, s_ = steps[idx]
        wb = WB[idx & 1]
        for t in range(4):
            f = k * 8 + s_ * 4 + t
            e(f"ds_read_b128 v[{wb+4*t}:{wb+4*t+3}], v{T0+1} offset:{f*1024}")
    ldw(0)
    for idx in range(4):
        if idx + 1 < 4:
            ldw(idx + 1)
            e("s_waitcnt lgkmcnt(4)")
        else:
            e("s_waitcnt lgkmcnt(0)")
        k, s_ = steps[idx]
        wb = WB[idx & 1]
        b = Bsrc[k] + 4 * s_
        for t in range(4):
            c = dst + 4 * t
            src_c = "0" if idx == 0 else f"v[{c}:{c+3}]"
            e(f"v_mfma_f32_16x16x32_bf16 v[{c}:{c+3}], v[{wb+4*t}:{wb+4*t+3}], v[{b}:{b+3}], {src_c}")


def gen():
    name = "standalone__spectral_conv_chebnet__graph_kernel"
    e(".text")
    e(f".globl {name}")
    e(".p2align 8")
    e(f".type {name},@function")
    e(f"{name}:")
    e(f"s_cmp_ge_u32 s2, {NB}")
    e("s_cbranch_scc1 K_END")
    e("s_load_dwordx2 s[4:5], s[0:1], 0")
    e("s_load_dwordx2 s[6:7], s[0:1], 56")
    e("s_load_dwordx4 s[8:11], s[0:1], 40")
    e("v_and_b32 v1, 63, v0")
    e(f"v_lshrrev_b32 v{T0}, 6, v0")
    e(f"v_lshlrev_b32 v{L16}, 4, v1")
    e(f"v_readfirstlane_b32 s{S_TAU}, v{T0}")
    e(f"v_mov_b32 v{ONE}, 1")
    e(f"v_mov_b32 v{ZERO}, 0")
    if os.environ.get("CPF"):
        e(f"s_cmp_eq_u32 s{S_TAU}, 13")
        e("s_cbranch_scc0 CPF_END")
        e("s_getpc_b64 s[36:37]")
        e("v_lshlrev_b32 v4, 7, v1")
        e("v_add_u32 v5, 0x2000, v4")
        e("s_mov_b64 exec, -1")
        e("global_load_dword v6, v4, s[36:37]")
        e("s_mov_b64 exec, 0xff")
        e("global_load_dword v7, v5, s[36:37]")
        e("s_mov_b64 exec, -1")
        e("CPF_END:")
    phase0()
    stamp(2)
    e(f"s_and_b32 s{S_B}, s2, 7")
    e(f"s_lshl_b32 s{S_ROT}, s{S_B}, 17")
    e(f"s_mov_b32 s{S_ROT}, 0")
    e(f"s_lshl_b32 s{S_B}, s{S_B}, 5")
    e(f"s_lshr_b32 s{S_TMP}, s2, 3")
    e(f"s_add_u32 s{S_B}, s{S_B}, s{S_TMP}")
    e(f"s_mul_i32 s{S_NB0}, s{S_B}, {BN}")
    e(f"s_sub_u32 s{S_TMP}, {N}, s{S_NB0}")
    e(f"s_min_u32 s{S_TMP}, s{S_TMP}, {BN}")
    e(f"s_add_u32 s{S_NT}, s{S_TMP}, 15")
    e(f"s_lshr_b32 s{S_NT}, s{S_NT}, 4")
    e(f"s_lshl_b32 s{S_TMP+1}, s{S_TAU}, 4")
    e(f"s_sub_i32 s{S_ROWB}, s{S_TMP}, s{S_TMP+1}")
    e(f"s_min_i32 s{S_ROWB}, s{S_ROWB}, 16")
    e(f"s_lshl_b32 s{S_ROWB}, s{S_ROWB}, 7")
    e(f"s_add_u32 s{S_TOFF}, s{S_NB0}, s{S_TMP+1}")
    e(f"s_lshl_b32 s{S_TOFF}, s{S_TOFF}, 7")
    e(f"v_mov_b32 v{FOUR}, 4")
    e(f"s_movk_i32 s{S_128}, 128")
    e(f"s_mov_b32 s{S_F}, 0x000f000f")
    e(f"s_mov_b32 s{S_PERM}, 0x07060302")
    e(f"s_min_u32 s{S_TMP}, s{S_TAU}, 12")
    e(f"s_lshl_b32 s{S_SB}, s{S_TMP}, 13")
    e(f"s_add_u32 s{S_SB}, s{S_SB}, {L_STAGE}")
    e(f"s_mul_i32 s{S_LB}, s{S_TMP}, {TLA}")
    e(f"s_add_u32 s{S_LB}, s{S_LB}, {L_LA}")
    e(f"s_mov_b32 s{S_PASS}, 1")
    e(f"s_movk_i32 s{S_K}, 4026")
    srd(12, 4, 5, N * 128)
    srd(24, 8, 9, N * 128)
    lane_constants()

    def between1():
        e(f"s_cmp_eq_u32 s{S_TAU}, 0")
        e("s_cbranch_scc0 B1_END")
        e(f"v_lshlrev_b32 v{T0}, 2, v1")
        e(f"ds_write_b32 v{T0}, v{ZERO} offset:{L_BINS}")
        e("s_waitcnt lgkmcnt(0)")
        e("B1_END:")
    grid_barrier(0, between1)
    stamp(3)
    e(f"v_mov_b32 v{T0}, v{DESC}")
    e(f"v_mov_b32 v{T0+1}, v{DESC+2}")
    e(f"buffer_load_dword v{DESC}, v{T0}, s[16:19], 0 offen")
    e(f"buffer_load_dword v{DESC+1}, v{T0}, s[16:19], 0 offen offset:1024")
    e(f"buffer_load_dword v{DESC+2}, v{T0+1}, s[16:19], 0 offen offset:2048")
    e(f"buffer_load_dword v{DESC+3}, v{T0+1}, s[16:19], 0 offen offset:3072")
    fast_sort()
    generic_sort_and_loop("A")
    e(f"s_cmp_eq_u32 s{S_PASS}, 2")
    e("s_cbranch_scc1 EPI")
    stamp(6)
    e(f"s_cmp_ge_u32 s{S_TAU}, s{S_NT}")
    e("s_cbranch_scc1 T1_DONE")
    e("s_nop 7")
    for t in range(4):
        e(f"v_cvt_pk_bf16_f32 v{T1T+2*t}, v{ACC+4*t}, v{ACC+4*t+1}")
        e(f"v_cvt_pk_bf16_f32 v{T1T+2*t+1}, v{ACC+4*t+2}, v{ACC+4*t+3}")
    tile_store(T1T, 16, WS_T1P, " sc1", "TS1")
    e("T1_DONE:")
    for i in range(16):
        e(f"v_mov_b32 v{ACC+i}, 0")
    srd_off(12, 6, 7, WS_T1P, N * 128)
    e(f"s_mov_b32 s{S_PASS}, 2")

    def between2():
        e(f"s_cmp_ge_u32 s{S_TAU}, s{S_NT}")
        e("s_cbranch_scc1 B2_END")
        e(f"s_cmp_eq_u32 s{S_FAST}, 1")
        e("s_cbranch_scc0 B2_END")
        gemm_xt1(EN)
        e("B2_END:")
    grid_barrier(1, between2)
    stamp(7)
    e(f"s_cmp_eq_u32 s{S_FAST}, 1")
    e("s_cbranch_scc0 A_START")
    e(f"s_mov_b32 s{S_MSK}, s{S_HDR}")
    e(f"s_mov_b32 s{S_MAXC}, 0")
    e(f"s_mov_b32 s{S_MORE}, 0")
    e("s_branch A_ML")
    e("EPI:")
    e(f"s_cmp_ge_u32 s{S_TAU}, s{S_NT}")
    e("s_cbranch_scc1 K_END")
    stamp(8)
    e(f"s_cmp_eq_u32 s{S_FAST}, 1")
    e("s_cbranch_scc1 EPI2")
    gemm_xt1(EN)
    e("EPI2:")
    e(f"v_add_u32 v{T0+1}, {L_WF}, v{L16}")
    for s_ in range(2):
        wb = [A, BF][s_]
        for t in range(4):
            f = 16 + s_ * 4 + t
            e(f"ds_read_b128 v[{wb+4*t}:{wb+4*t+3}], v{T0+1} offset:{f*1024}")
    e(f"s_mov_b32 s{S_TMP+2}, 0xffff0000")
    e("s_nop 3")
    T2 = POS
    TMPA = SRC4
    for i in range(8):
        a = ACC + 2 * i
        e(f"v_cvt_pk_bf16_f32 v{TMPA}, v{a}, v{a+1}")
        e(f"v_lshlrev_b32 v{TMPA+1}, 16, v{XT+i}")
        e(f"v_and_b32 v{TMPA+2}, s{S_TMP+2}, v{XT+i}")
        e(f"v_lshlrev_b32 v{TMPA+3}, 16, v{TMPA}")
        e(f"v_and_b32 v{TMPA+4}, s{S_TMP+2}, v{TMPA}")
        e(f"v_fma_f32 v{TMPA+3}, 2.0, v{TMPA+3}, -v{TMPA+1}")
        e(f"v_fma_f32 v{TMPA+4}, 2.0, v{TMPA+4}, -v{TMPA+2}")
        e(f"v_cvt_pk_bf16_f32 v{T2+i}, v{TMPA+3}, v{TMPA+4}")
    e("s_waitcnt lgkmcnt(0)")
    e("s_nop 1")
    for s_ in range(2):
        wb = [A, BF][s_]
        b = T2 + 4 * s_
        for t in range(4):
            c = EN + 4 * t
            e(f"v_mfma_f32_16x16x32_bf16 v[{c}:{c+3}], v[{wb+4*t}:{wb+4*t+3}], v[{b}:{b+3}], v[{c}:{c+3}]")
    e("s_nop 7")
    e("s_nop 3")
    for t in range(4):
        e(f"v_cvt_pk_bf16_f32 v{ACC+2*t}, v{EN+4*t}, v{EN+4*t+1}")
        e(f"v_cvt_pk_bf16_f32 v{ACC+2*t+1}, v{EN+4*t+2}, v{EN+4*t+3}")
    tile_store(ACC, 24, 0, os.environ.get("OUTMOD", " sc1"), "TS2")
    if DIAG:
        stamp(9)
        e("s_waitcnt vmcnt(0)")
        stamp(10)
        e("s_mov_b64 exec, 1")
        e(f"s_lshl_b32 s{S_TMP}, s2, 4")
        e(f"s_add_u32 s{S_TMP}, s{S_TMP}, s{S_TAU}")
        e(f"s_lshl_b32 s{S_TMP}, s{S_TMP}, 6")
        e(f"s_add_u32 s{S_TMP}, s{S_TMP}, {WS_DIAG}")
        for i in range(11):
            e(f"v_mov_b32 v{T0+1}, s{S_ST+2*i}")
            e(f"buffer_store_dword v{T0+1}, v{ZERO}, s[16:19], s{S_TMP} offen offset:{4*i}")
    if os.environ.get("PROBE"):
        a_, b_ = [int(x) for x in os.environ["PROBE"].split(",")]
        e("s_cmp_eq_u32 s2, 0")
        e("s_cbranch_scc0 K_END")
        e(f"s_cmp_eq_u32 s{S_TAU}, 0")
        e("s_cbranch_scc0 K_END")
        e(f"s_sub_u32 s{S_TMP}, s{S_ST+2*b_}, s{S_ST+2*a_}")
        e(f"s_add_u32 s{S_TMP}, s{S_TMP}, 300")
        e("PRB:")
        e(f"s_memrealtime s[{S_TMP+2}:{S_TMP+3}]")
        e("s_waitcnt lgkmcnt(0)")
        e(f"s_sub_u32 s{S_TMP+1}, s{S_TMP+2}, s{S_ST+20}")
        e(f"s_cmp_lt_u32 s{S_TMP+1}, s{S_TMP}")
        e("s_cbranch_scc1 PRB")
    if os.environ.get("DBGST"):
        e("s_cmp_eq_u32 s2, 0")
        e("s_cbranch_scc0 K_END")
        e(f"s_cmp_eq_u32 s{S_TAU}, 0")
        e("s_cbranch_scc0 K_END")
        words = [1, 2, 3, 5, 6, 7, 8, 9, 10, 11]
        for i in range(1, 11):
            e(f"s_sub_u32 s{S_TMP}, s{S_ST+2*i}, s{S_ST}")
            e(f"v_mov_b32 v{T0+1}, s{S_TMP}")
            e(f"v_mov_b32 v{T0}, {words[i-1]*4}")
            e(f"global_store_dword v{T0}, v{T0+1}, s[10:11]")
    e("K_END:")
    e("s_endpgm")
    e('.section .rodata,"a"')
    e(".p2align 6")
    e(f".amdhsa_kernel {name}")
    e(f"  .amdhsa_next_free_vgpr {NV}")
    e(f"  .amdhsa_next_free_sgpr {NS}")
    e(f"  .amdhsa_accum_offset {NV}")
    e("  .amdhsa_group_segment_fixed_size 0")
    e("  .amdhsa_kernarg_size 64")
    e("  .amdhsa_user_sgpr_count 2")
    e("  .amdhsa_user_sgpr_kernarg_segment_ptr 1")
    e("  .amdhsa_system_sgpr_workgroup_id_x 1")
    e("  .amdhsa_float_denorm_mode_32 3")
    e("  .amdhsa_float_denorm_mode_16_64 3")
    e(".end_amdhsa_kernel")


HEADER = """; Kernarg layout for this problem (64 bytes, ptrs only, base s[0:1]):
;
;            and writes the 8-byte entries {src | ew<<16, dst} plus a (start,count) row to d_ws
"""


def main():
    out.append(HEADER.rstrip())
    out.append(f"; @launch grid=({NB},1,1) block=(1024,1,1) lds={L_TOTAL}")
    out.append('.amdgcn_target "amdgcn-amd-amdhsa--gfx950"')
    gen()
    path = sys.argv[1] if len(sys.argv) > 1 else "standalone__spectral_conv_chebnet__graph.s"
    open(path, "w").write("\n".join(out) + "\n")


if __name__ == "__main__":
    main()
```
